```python
import torch

def _softmax(x, axis=-1):
    return torch.softmax(x, dim=axis)
def _gelu(x):
    return torch.nn.functional.gelu(x, approximate="tanh")
def _silu(x):
    return torch.nn.functional.silu(x)
def _sigmoid(x):
    return torch.sigmoid(x)
def _layernorm(x, axis=-1, eps=1e-5):
    m = x.mean(dim=axis, keepdim=True)
    v = x.var(dim=axis, keepdim=True, unbiased=False)
    return (x - m) / torch.sqrt(v + eps)
def _scatter_add(tgt, idx, src, axis=0):
    return tgt.clone().index_add_(axis, idx, src)
def _segment_sum(src, seg, n):
    out = torch.zeros((n,) + src.shape[1:], dtype=src.dtype)
    return out.index_add_(0, seg, src)
def _pad(x, pw):
    flat = tuple(v for pair in reversed(pw) for v in pair)
    return torch.nn.functional.pad(x, flat)

kernel_name = 'interleave_layers__sliding_block__sliding_local_dilated__prompt'

def setup_inputs():

    _w = (lambda a: (lambda t: t.to(torch.bfloat16) if t.is_floating_point() else t)(torch.as_tensor(a)))
    def _A_setup():
        B, S, D = 1, 2048, 512
        return {
            "x": _w((lambda *s: torch.randn(*s, dtype=torch.bfloat16) * 0.05)(B, S, D)),
            "wqkv": _w((lambda *s: torch.randn(*s, dtype=torch.bfloat16) * 0.05)(D, 3 * D)),
            "wo": _w((lambda *s: torch.randn(*s, dtype=torch.bfloat16) * 0.05)(D, D)),
        }
    _A_in = _A_setup()

    def _B_setup():
        B, S, D = 1, 2048, 512
        return {
            "x": _w((lambda *s: torch.randn(*s, dtype=torch.bfloat16) * 0.05)(B, S, D)),
            "wqkv": _w((lambda *s: torch.randn(*s, dtype=torch.bfloat16) * 0.05)(D, 3 * D)),
            "wo": _w((lambda *s: torch.randn(*s, dtype=torch.bfloat16) * 0.05)(D, D)),
        }
    _B_in = _B_setup()

    return {
        "A_x": _A_in["x"],
        "A_wqkv": _A_in["wqkv"],
        "A_wo": _A_in["wo"],
        "B_x": _B_in["x"],
        "B_wqkv": _B_in["wqkv"],
        "B_wo": _B_in["wo"],
    }

def reference(A_x, A_wqkv, A_wo, B_x, B_wqkv, B_wo):
    def _A_ref(x, wqkv, wo):
        B, S, D = x.shape
        H = 32; Dh = D // H; W = 256
        qkv = (lambda x, *d: x.permute(*d))((x @ wqkv).reshape(B, S, 3, H, Dh), 2, 0, 3, 1, 4)
        q, k, v = qkv[0], qkv[1], qkv[2]
        scores = torch.einsum("bhqd,bhkd->bhqk", q, k) * (Dh ** -0.5)
        idx = torch.arange(S)
        mask = (idx[:, None] - idx[None, :] >= 0) & (idx[:, None] - idx[None, :] < W)
        scores = torch.where(mask[None, None], scores, -1e9)
        p = _softmax(scores, axis=-1)
        o = torch.einsum("bhqk,bhkd->bhqd", p, v)
        return (lambda x, *d: x.permute(*d))(o, 0, 2, 1, 3).reshape(B, S, D) @ wo

    def _B_ref(x, wqkv, wo):
        B, S, D = x.shape
        H = 32; Dh = D // H
        W, dil = 8, 2
        qkv = (lambda x, *d: x.permute(*d))((x @ wqkv).reshape(B, S, 3, H, Dh), 2, 0, 3, 1, 4)
        q, k, v = qkv[0], qkv[1], qkv[2]
        scale = Dh ** -0.5
        pos = torch.arange(S)
        off = torch.arange(W) * dil
        idx = pos[:, None] - off[None, :]
        mask = idx >= 0
        idx_c = torch.where(mask, idx, 0).reshape(-1)
        kg = k[:, :, idx_c, :].reshape(B, H, S, W, Dh)
        vg = v[:, :, idx_c, :].reshape(B, H, S, W, Dh)
        logits = torch.einsum("bhsd,bhswd->bhsw", q, kg) * scale
        logits = torch.where(mask[None, None, :, :], logits, -1e9)
        attn = _softmax(logits, axis=-1)
        o = torch.einsum("bhsw,bhswd->bhsd", attn, vg)
        return (lambda x, *d: x.permute(*d))(o, 0, 2, 1, 3).reshape(B, S, D) @ wo

    x = A_x
    x = x + _A_ref(_layernorm(x, axis=-1), A_wqkv, A_wo)
    x = x + _B_ref(_layernorm(x, axis=-1), B_wqkv, B_wo)
    x = x + _A_ref(_layernorm(x, axis=-1), A_wqkv, A_wo)
    x = x + _B_ref(_layernorm(x, axis=-1), B_wqkv, B_wo)
    return x
```

```python
import sys, os
sys.path.insert(0, "work")
from asmlib import Asm

NAME = "interleave_layers__sliding_block__sliding_local_dilated__prompt_kernel"

XB = lambda l: (l - 1) * 0x200000
OB = lambda l: 0x600000 + l * 0x200000
KV = lambda l: 0xE00000 + l * 0x400000
ST = lambda l: 0x1E00000 + l * 0x40000
WOF = 0x1F00000
WS_USED = 0x2000000
WS_DBG = 0x2000000
WS_SIZE = 0x2800000
L_KVO = 0
L_OT = 16384
L_XR = 49152
L_CSF = 57344
L_RS = 58880
L_W = 65536
LDS_BYTES = 160 * 1024
sW, sR, sM, sL, sFAST = "s3", "s4", "s5", "s6", "s7"
SRD_X, SRD_WQA, SRD_WQB, SRD_WOA, SRD_WOB, SRD_OUT, SRD_DBG, SRD_WS, SRD_WN = 8, 12, 16, 20, 24, 28, 32, 36, 40
def srd(i): return f"s[{i}:{i+3}]"
sCHK = "s[44:45]"
sT0, sT1, sT2, sT3, sT4, sT5 = "s46", "s47", "s48", "s49", "s50", "s51"
sTRY = "s52"
sXCC = "s53"
sT = "s54"
sRT = "s55"
sCT = "s56"
sXBin, sOBl, sKVl, sSTin, sXBout, sSTout = "s57", "s58", "s59", "s60", "s61", "s62"
sEXEC = "s[64:65]"
sLO32 = "s[66:67]"
sMSK = "s[68:69]"
sCSF = "s70"
sERR = "s71"
sPT = 72
sRET = "s[90:91]"
sU0, sU1, sU2, sU3 = "s92", "s93", "s94", "s95"
vTID, vLANE, vC, vH, vL16 = "v0", "v1", "v2", "v3", "v4"
vTR = 5
vWD = "v11"
vRSTD, vRSTDC = "v12", "v13"
vT0, vT1 = "v14", "v15"
vQ = 16
vONES = 24
vMASK = 32
vLACC = 48
vS0, vS1 = 64, 80
vO0, vO1 = 96, 112
vXF = 128
ACC_K, ACC_V, ACC_Q = 64, 80, 96
WF1 = [48, 56, 112, 120]
WF2 = [48, 52, 56, 60]
vRS = 112
vOWN = 240
SPIN_LIMIT = 40000
NEG_INF = 0xFF800000
QSCALE = 0.25 * 1.4426950408889634

def R(b, n=4): return f"v[{b}:{b+n-1}]"
def AR(b, n=4): return f"a[{b}:{b+n-1}]"
def f32hex(x):
    import struct
    return "0x%08x" % struct.unpack("<I", struct.pack("<f", x))[0]

class Gen:
    def __init__(self, dbg=False):
        self.a = Asm()
        self.tail = Asm()
        self.dbg = dbg
        self.nl = 0
    def lab(self, p):
        self.nl += 1
        return f"L_{p}_{self.nl}"

    def maxtree(self, a, regs, dst):
        regs = list(regs)
        if len(regs) == 1:
            a(f"v_mov_b32 {dst}, v{regs[0]}"); return
        if len(regs) == 2:
            a(f"v_max_u32 {dst}, v{regs[0]}, v{regs[1]}"); return
        a(f"v_max3_u32 {dst}, v{regs[0]}, v{regs[1]}, v{regs[2]}")
        i = 3
        while i < len(regs):
            if i + 1 < len(regs):
                a(f"v_max3_u32 {dst}, {dst}, v{regs[i]}, v{regs[i+1]}"); i += 2
            else:
                a(f"v_max_u32 {dst}, {dst}, v{regs[i]}"); i += 1
    def check_or_poll(self, chk_regs, reload_fn, tmp, errcode):
        a, t = self.a, self.tail
        slow, back, loop = self.lab("slow"), self.lab("back"), self.lab("sloop")
        self.maxtree(a, chk_regs, tmp)
        a(f"v_cmp_eq_u32 vcc, -1, {tmp}")
        a(f"s_and_b64 vcc, vcc, {sCHK}")
        a(f"s_cbranch_vccnz {slow}")
        a.label(back)
        t.label(slow)
        t(f"s_mov_b32 {sTRY}, 0")
        t.label(loop)
        reload_fn(t)
        t("s_waitcnt vmcnt(0)")
        self.maxtree(t, chk_regs, tmp)
        t(f"v_cmp_eq_u32 vcc, -1, {tmp}")
        t(f"s_cbranch_vccz {back}")
        t(f"s_add_u32 {sTRY}, {sTRY}, 1")
        t(f"s_cmp_lt_u32 {sTRY}, {SPIN_LIMIT}")
        t(f"s_cbranch_scc1 {loop}")
        t(f"s_mov_b64 {sCHK}, 0")
        t(f"s_mov_b32 {sERR}, {errcode}")
        t(f"s_branch {back}")

    def store_msg(self, data, voff, soff, imm=0, width="dwordx4"):
        a = self.a
        l1, l2 = self.lab("stsl"), self.lab("stdn")
        o = f" offset:{imm}" if imm else ""
        a(f"s_cmp_eq_u32 {sFAST}, 0")
        a(f"s_cbranch_scc1 {l1}")
        for d, s, im in data:
            o = f" offset:{im}" if im else ""
            a(f"buffer_store_{width} {d}, {voff}, {srd(SRD_WS)}, {s} offen{o}")
        a(f"s_branch {l2}")
        a.label(l1)
        for d, s, im in data:
            o = f" offset:{im}" if im else ""
            a(f"buffer_store_{width} {d}, {voff}, {srd(SRD_WS)}, {s} offen{o} sc1")
        a.label(l2)

    def w_dma(self, cts):
        a = self.a
        a(f"s_mul_i32 {sT0}, {sW}, {16*3072}")
        a(f"s_lshl_b32 {sT1}, {sM}, 6")
        a(f"s_add_u32 {sT0}, {sT0}, {sT1}")
        a(f"s_lshl_b32 {sT1}, {sW}, 10")
        for ct in cts:
            for i in range(8):
                a(f"s_add_u32 m0, {sT1}, {L_W + ct*32768 + i*4096}")
                a(f"s_add_u32 {sT2}, {sT0}, {i*64*3072 + ct*1024}")
                a(f"buffer_load_dwordx4 {vWD}, {srd(SRD_WN)}, {sT2} offen lds")

    def colsum(self, mat):
        a = self.a
        a(f"s_lshl_b32 {sT0}, {sW}, 13")
        a(f"v_mov_b32 v20, 0x3f803f80")
        for ct in range(3):
            a(f"v_add_u32 {vT0}, {sT0}, v{vTR+2*ct}")
            a(f"v_add_u32 {vT1}, {sT0}, v{vTR+2*ct+1}")
            for s in range(8):
                a(f"ds_read_b64_tr_b16 {R(64+4*s,2)}, {vT0} offset:{s*1024}")
                a(f"ds_read_b64_tr_b16 {R(66+4*s,2)}, {vT1} offset:{s*1024}")
            a(f"v_mov_b32 v{21+ct}, 0")
            a("s_waitcnt lgkmcnt(0)")
            for j in range(32):
                a(f"v_dot2_f32_bf16 v{21+ct}, v{64+j}, v20, v{21+ct}")
        a(f"v_lshlrev_b32 {vT0}, 2, {vLANE}")
        a(f"s_lshl_b32 {sT0}, {sW}, 8")
        a(f"v_add_u32 {vT0}, {sT0}, {vT0}")
        a("s_nop 2")
        for ct in range(3):
            a(f"ds_write_b32 {vT0}, v{21+ct} offset:{L_OT + ct*1024}")
        a("s_waitcnt lgkmcnt(0)")
        a("s_barrier")
        lskip = self.lab("cssk")
        a(f"s_cmp_ge_u32 {sW}, 3")
        a(f"s_cbranch_scc1 {lskip}")
        a(f"s_lshl_b32 {sT0}, {sW}, 10")
        a(f"v_lshlrev_b32 {vT0}, 2, {vC}")
        a(f"v_add_u32 {vT0}, {sT0}, {vT0}")
        for p in range(8):
            a(f"ds_read_b32 v{64+p}, {vT0} offset:{L_OT + p*128}")
        a("s_waitcnt lgkmcnt(0)")
        for p in range(1, 8):
            a(f"v_add_f32 v64, v64, v{64+p}")
        a("v_cvt_pk_bf16_f32 v65, v64, v64")
        a("v_and_b32 v66, 0xffff0000, v65")
        a("v_sub_f32 v67, v64, v66")
        a("v_cvt_pk_bf16_f32 v68, v67, v67")
        a("v_and_b32 v69, 0xffff0000, v68")
        a("v_sub_f32 v70, v67, v69")
        a("v_cvt_pk_bf16_f32 v71, v70, v70")
        a("v_lshrrev_b32 v72, 16, v66")
        a("v_or_b32 v72, v72, v69")
        a("v_and_b32 v73, 0xffff, v71")
        a(f"s_lshl_b32 {sT0}, {sW}, 8")
        a(f"v_lshlrev_b32 {vT0}, 3, {vC}")
        a(f"v_add_u32 {vT0}, {sT0}, {vT0}")
        a(f"ds_write_b64 {vT0}, v[72:73] offset:{L_CSF + mat*768}")
        a("s_waitcnt lgkmcnt(0)")
        a.label(lskip)
        a("s_barrier")

    def set_tr_addr(self, permuted):
        a = self.a
        a(f"v_bfe_u32 {vT0}, {vLANE}, 2, 2")
        a(f"v_lshlrev_b32 {vT0}, 6, {vT0}")
        a(f"v_bfe_u32 {vT1}, {vLANE}, 4, 1")
        a(f"v_lshl_add_u32 {vT0}, {vT1}, 5, {vT0}")
        a(f"v_and_b32 {vT1}, 3, {vLANE}")
        a(f"v_lshl_add_u32 {vT0}, {vT1}, 3, {vT0}")
        a(f"v_lshl_add_u32 {vT0}, {vH}, {8 if permuted else 9}, {vT0}")
        for ct in range(3):
            a(f"v_add_u32 v{vTR+2*ct}, {L_W + ct*32768}, {vT0}")
            a(f"v_add_u32 v{vTR+2*ct+1}, {L_W + ct*32768 + (512 if permuted else 256)}, {vT0}")

    def xstats_store(self, src16, soff_s):
        a = self.a
        a(f"v_add_f32 v20, v{src16}, v{src16+1}")
        a(f"v_mul_f32 v21, v{src16}, v{src16}")
        a(f"v_fmac_f32 v21, v{src16+1}, v{src16+1}")
        for i in range(2, 16):
            a(f"v_add_f32 v20, v20, v{src16+i}")
            a(f"v_fmac_f32 v21, v{src16+i}, v{src16+i}")
        a("v_mov_b32 v22, v20")
        a("v_mov_b32 v23, v21")
        a("s_nop 1")
        a("v_permlane32_swap_b32 v20, v22")
        a("v_permlane32_swap_b32 v21, v23")
        a("s_nop 1")
        a("v_add_f32 v20, v20, v22")
        a("v_add_f32 v21, v21, v23")
        a("v_min_u32 v20, 0xfffffffe, v20")
        a(f"v_lshlrev_b32 {vT0}, 7, {vC}")
        a(f"s_mov_b64 exec, {sLO32}")
        self.store_msg([("v[20:21]", soff_s, 0)], vT0, None, width="dwordx2")
        a("s_mov_b64 exec, -1")

    def set_masks(self, kind, dst):
        a = self.a
        a(f"v_lshlrev_b32 {vT1}, 2, {vH}")
        a(f"v_sub_u32 {vT0}, {vC}, {vT1}")
        a(f"v_mov_b32 v12, {NEG_INF:#x}")
        for r in range(16):
            b0 = 8 * (r // 4) + r % 4
            if kind == 'diagA':
                a(f"v_cmp_le_i32 vcc, {b0}, {vT0}")
            else:
                off = -b0 if kind == 'diagB' else 32 - b0
                a(f"v_add_u32 {vT1}, {off}, {vT0}")
                a(f"v_and_b32 {vT1}, 0xfffffff1, {vT1}")
                a(f"v_cmp_eq_u32 vcc, 0, {vT1}")
            a("s_nop 1")
            a(f"v_cndmask_b32_e64 v{dst+r}, v12, 0, vcc")

    def prologue(self):
        a = self.a
        a(f"""
        s_cmp_ge_u32 s2, 256
        s_cbranch_scc1 L_end
        s_load_dwordx16 s[{sPT}:{sPT+15}], s[0:1], 0
        s_load_dwordx2 s[88:89], s[0:1], 64
        v_and_b32 {vLANE}, 63, v0
        v_lshrrev_b32 {vT0}, 6, v0
        v_and_b32 {vC}, 31, v0
        v_readfirstlane_b32 {sW}, {vT0}
        v_bfe_u32 {vH}, v0, 5, 1
        v_lshlrev_b32 {vL16}, 4, {vLANE}
        s_and_b32 {sT0}, s2, 7
        s_lshr_b32 {sT1}, s2, 3
        s_lshl_b32 {sR}, {sT0}, 1
        s_lshr_b32 {sT2}, {sT1}, 4
        s_add_u32 {sR}, {sR}, {sT2}
        s_and_b32 {sM}, {sT1}, 15
        s_getreg_b32 {sXCC}, hwreg(HW_REG_XCC_ID)
        s_and_b32 {sXCC}, {sXCC}, 15
        s_mov_b32 {sL}, 0
        s_mov_b32 {sFAST}, 0
        s_mov_b32 {sERR}, 0
        s_mov_b64 {sCHK}, 0
        s_mov_b32 s66, -1
        s_mov_b32 s67, 0
        s_lshl_b32 {sT}, {sR}, 2
        s_lshr_b32 {sT0}, {sM}, 2
        s_add_u32 {sRT}, {sT}, {sT0}
        s_add_u32 {sT}, {sT}, {sW}
        s_and_b32 {sCT}, {sM}, 3
        s_lshl_b32 {sCT}, {sCT}, 2
        s_add_u32 {sCT}, {sCT}, {sW}
        ; W dma voffset = (l/4)*3072 + (l%4)*16
        v_lshrrev_b32 {vT0}, 2, {vLANE}
        v_mul_u32_u24 {vWD}, 3072, {vT0}
        v_and_b32 {vT0}, 3, {vLANE}
        v_lshl_add_u32 {vWD}, {vT0}, 4, {vWD}
        s_waitcnt lgkmcnt(0)
        """)
        def mk(d, p, size):
            a(f"s_mov_b32 s{d}, s{p}")
            a(f"s_and_b32 s{d+1}, s{p+1}, 0xffff")
            a(f"s_mov_b32 s{d+2}, {size}")
            a(f"s_mov_b32 s{d+3}, 0x20000")
        mk(SRD_X, sPT + 0, 2048 * 1024)
        mk(SRD_WQA, sPT + 2, 512 * 3072)
        mk(SRD_WOA, sPT + 4, 512 * 1024)
        mk(SRD_WQB, sPT + 8, 512 * 3072)
        mk(SRD_WOB, sPT + 10, 512 * 1024)
        mk(SRD_OUT, sPT + 12, 2048 * 1024)
        mk(SRD_DBG, sPT + 14, 256)
        mk(SRD_WS, 88, WS_SIZE if self.dbg else WS_USED)
        mk(SRD_WN, sPT + 2, 512 * 3072)
        a("v_mov_b32 v20, -1\nv_mov_b32 v21, -1\nv_mov_b32 v22, -1\nv_mov_b32 v23, -1")
        a(f"s_lshl_b32 {sT0}, {sT}, 15")
        a(f"s_lshl_b32 {sT1}, {sM}, 11")
        a(f"s_add_u32 {sOBl}, {sT0}, {sT1}")
        a(f"s_add_u32 {sOBl}, {sOBl}, {OB(0)}")
        a(f"buffer_store_dwordx4 v[20:23], {vL16}, {srd(SRD_WS)}, {sOBl} offen sc1")
        a(f"buffer_store_dwordx4 v[20:23], {vL16}, {srd(SRD_WS)}, {sOBl} offen offset:1024 sc1")
        a(f"s_lshl_b32 {sT0}, {sT}, 16")
        a(f"s_lshl_b32 {sT1}, {sM}, 12")
        a(f"s_add_u32 {sKVl}, {sT0}, {sT1}")
        a(f"s_add_u32 {sKVl}, {sKVl}, {KV(0)}")
        for l in range(4):
            a(f"s_add_u32 {sT0}, {sKVl}, {KV(l)-KV(0)}")
            for f in range(4):
                a(f"buffer_store_dwordx4 v[20:23], {vL16}, {srd(SRD_WS)}, {sT0} offen offset:{f*1024} sc1")
        a(f"s_lshl_b32 {sT0}, {sRT}, 12")
        a(f"s_lshl_b32 {sT1}, {sCT}, 3")
        a(f"s_add_u32 {sSTout}, {sT0}, {sT1}")
        a(f"s_add_u32 {sSTout}, {sSTout}, {ST(0)}")
        a(f"v_lshlrev_b32 {vT0}, 7, {vC}")
        a(f"buffer_store_dwordx2 v[20:21], {vT0}, {srd(SRD_WS)}, {sSTout} offen sc1")
        a(f"v_lshlrev_b32 {vT0}, 10, {vC}")
        a(f"v_lshl_add_u32 {vT0}, {vH}, 4, {vT0}")
        a(f"s_lshl_b32 {sT0}, {sT}, 15")
        for s in range(32):
            a(f"buffer_load_dwordx4 {R(vXF+4*s)}, {vT0}, {srd(SRD_X)}, {sT0} offen offset:{s*32}")
        self.w_dma([0, 1, 2])
        a("s_waitcnt vmcnt(40)")
        a(f"v_lshlrev_b32 {vT0}, 10, {vC}")
        a(f"v_lshl_add_u32 {vT0}, {vH}, 3, {vT0}")
        a(f"s_lshl_b32 {sT0}, {sRT}, 15")
        a(f"s_lshl_b32 {sT1}, {sCT}, 6")
        a(f"s_add_u32 {sT0}, {sT0}, {sT1}")
        for q in range(4):
            a(f"buffer_load_dwordx2 {R(64+2*q,2)}, {vT0}, {srd(SRD_X)}, {sT0} offen offset:{q*16}")
        a(f"s_lshl_b32 {sT0}, s2, 2")
        a(f"s_add_u32 {sT0}, {sT0}, {sW}")
        a(f"s_and_b32 {sT1}, {sT0}, 31")
        a(f"s_bfe_u32 {sT2}, {sT0}, 0x40005")
        a(f"s_lshl_b32 {sT3}, {sT1}, 14")
        a(f"s_lshl_b32 {sT4}, {sT2}, 6")
        a(f"s_add_u32 {sT3}, {sT3}, {sT4}")
        a(f"v_lshlrev_b32 {vT1}, 1, {vC}")
        a(f"v_lshl_add_u32 {vT1}, {vH}, 12, {vT1}")
        lB, lD = self.lab("wob"), self.lab("wod")
        a(f"s_add_u32 {sT4}, {sT3}, 8192")
        a(f"s_cmp_ge_u32 {sT0}, 512")
        a(f"s_cbranch_scc1 {lB}")
        for S_, lab in ((SRD_WOA, None), (SRD_WOB, lB)):
            if lab: a.label(lab)
            for j in range(8):
                so = sT3 if j < 4 else sT4
                a(f"buffer_load_ushort v{80+j}, {vT1}, {srd(S_)}, {so} offen offset:{(j%4)*1024}")
            if not lab: a(f"s_branch {lD}")
        a.label(lD)
        a(f"s_lshl_b32 {sU0}, {sT0}, 10")
        a(f"s_add_u32 {sU0}, {sU0}, {WOF}")
        a(f"v_mov_b32 {vT0}, 0x3f803f80")
        a(f"v_cmp_gt_u32 vcc, 16, {vC}")
        a("s_nop 1")
        for i in range(4):
            a(f"v_cndmask_b32_e64 v{vONES+i}, 0, {vT0}, vcc")
            a(f"v_cndmask_b32_e64 v{vONES+4+i}, {vT0}, 0, vcc")
        self.set_tr_addr(False)
        a("s_waitcnt vmcnt(0)")
        for j in range(4):
            a(f"v_lshl_or_b32 v{88+j}, v{80+2*j+1}, 16, v{80+2*j}")
        a(f"buffer_store_dwordx4 v[88:91], {vL16}, {srd(SRD_WS)}, {sU0} offen sc1")
        a("s_barrier")
        a(f"s_lshl_b32 {sT0}, {sR}, 4")
        a(f"s_add_u32 {sT0}, {sT0}, {sM}")
        a(f"s_and_b32 {sT1}, {sT0}, 3")
        a(f"s_lshl_b32 {sT1}, {sT1}, 3")
        a(f"s_or_b32 {sT2}, {sXCC}, 0x80")
        a(f"s_lshl_b32 {sU1}, {sT2}, {sT1}")
        a(f"s_lshl_b32 {sU2}, 0x40, {sT1}")
        a(f"s_and_b32 {sU3}, {sT0}, 0xfc")
        lsk = self.lab("hs")
        a(f"s_cmp_lg_u32 {sW}, 0")
        a(f"s_cbranch_scc1 {lsk}")
        a(f"v_mov_b32 v20, {sU1}")
        a(f"v_mov_b32 v21, 0")
        a("s_mov_b64 exec, 1")
        a(f"buffer_atomic_or v20, v21, {srd(SRD_DBG)}, {sU3} offen sc1")
        a("s_mov_b64 exec, -1")
        a.label(lsk)
        a(f"s_lshl_b32 {sT0}, {sW}, 11")
        a(f"v_add_u32 {vT0}, {sT0}, {vL16}")
        a(f"ds_write_b128 {vT0}, v[64:67] offset:{L_XR}")
        a(f"ds_write_b128 {vT0}, v[68:71] offset:{L_XR+1024}")
        for i in range(8):
            a(f"v_lshlrev_b32 v{96+2*i}, 16, v{64+i}")
            a(f"v_and_b32 v{97+2*i}, 0xffff0000, v{64+i}")
        self.xstats_store(96, sSTout)
        self.colsum(0)
        a("s_waitcnt vmcnt(0)")
        a("s_barrier")
        lsk = self.lab("hs2")
        a(f"s_cmp_lg_u32 {sW}, 0")
        a(f"s_cbranch_scc1 {lsk}")
        a(f"v_mov_b32 v20, {sU2}")
        a(f"v_mov_b32 v21, 0")
        a("s_mov_b64 exec, 1")
        a(f"buffer_atomic_or v20, v21, {srd(SRD_DBG)}, {sU3} offen sc1")
        a("s_mov_b64 exec, -1")
        a.label(lsk)
        a(f"s_lshl_b32 {sT0}, {sT}, 12")
        a(f"s_add_u32 {sSTin}, {sT0}, {ST(0)}")
        a(f"s_lshl_b32 {sT0}, {sT}, 15")
        a(f"s_add_u32 {sXBin}, {sT0}, {XB(1) - 0x200000}")
        a(f"s_lshl_b32 {sT0}, {sRT}, 15")
        a(f"s_lshl_b32 {sT1}, {sCT}, 11")
        a(f"s_add_u32 {sXBout}, {sT0}, {sT1}")
        a(f"s_add_u32 {sXBout}, {sXBout}, {XB(1)}")
        a(f"s_add_u32 {sSTout}, {sSTout}, 0x40000")
        a(f"s_mov_b32 {sCSF}, {L_CSF}")

    def handshake_wait(self, bit, setfast):
        a = self.a
        loop, done = self.lab("hw"), self.lab("hwd")
        m = bit * 0x01010101
        a(f"s_mov_b32 {sTRY}, 0")
        a(f"v_lshlrev_b32 {vT0}, 2, {vLANE}")
        a.label(loop)
        a(f"buffer_load_dword v20, {vT0}, {srd(SRD_DBG)}, 0 offen sc1")
        a("s_waitcnt vmcnt(0)")
        a(f"v_and_b32 v21, {m:#x}, v20")
        a(f"v_cmp_ne_u32 vcc, {m:#x}, v21")
        a(f"s_cbranch_vccz {done}")
        a(f"s_add_u32 {sTRY}, {sTRY}, 1")
        a(f"s_cmp_lt_u32 {sTRY}, {SPIN_LIMIT}")
        a(f"s_cbranch_scc1 {loop}")
        a(f"s_mov_b32 {sERR}, 100")
        a.label(done)
        if setfast:
            a(f"s_mul_i32 {sT0}, {sXCC}, 0x01010101")
            a(f"v_and_b32 v21, 0x0f0f0f0f, v20")
            a(f"v_cmp_eq_u32 vcc, {sT0}, v21")
            a(f"s_lshl_b32 {sT1}, {sR}, 2")
            a(f"s_lshr_b64 {sMSK}, vcc, {sT1}")
            a(f"s_and_b32 {sT0}, s68, 15")
            a(f"s_cmp_eq_u32 {sT0}, 15")
            a(f"s_cselect_b32 {sFAST}, 1, 0")
            if os.environ.get("NOFAST"): a(f"s_mov_b32 {sFAST}, 0")
            a(f"s_cmp_eq_u32 {sERR}, 0")
            a(f"s_cselect_b64 {sCHK}, -1, 0")

    def x_loads(self, t, g):
        t(f"s_add_u32 {sT0}, {sXBin}, {g*8192}")
        t(f"s_add_u32 {sT1}, {sXBin}, {g*8192+4096}")
        for i in range(8):
            s = 8 * g + i
            t(f"buffer_load_dwordx4 {R(vXF+4*s)}, {vL16}, {srd(SRD_WS)}, {sT0 if i < 4 else sT1} offen offset:{(i%4)*1024} sc1")

    def st_loads(self, t):
        t(f"v_lshlrev_b32 {vT0}, 7, {vC}")
        t(f"v_lshl_add_u32 {vT0}, {vH}, 6, {vT0}")
        for i in range(4):
            t(f"buffer_load_dwordx4 {R(ACC_Q+4*i)}, {vT0}, {srd(SRD_WS)}, {sSTin} offen offset:{i*16} sc1")

    def gemm(self):
        a = self.a
        lskip = self.lab("g0skip")
        a(f"s_cmp_eq_u32 {sL}, 0")
        a(f"s_cbranch_scc1 {lskip}")
        self.x_loads(a, 0)
        a("s_waitcnt vmcnt(0)")
        self.check_or_poll([vXF + 4 * s for s in range(8)], lambda t: self.x_loads(t, 0), "v20", 1)
        for g in (1, 2, 3): self.x_loads(a, g)
        a("s_barrier")
        a.label(lskip)
        def rd1(s):
            b = WF1[s % 4]
            if s < 32:
                return [f"ds_read_b64_tr_b16 {R(b,2)}, v{vTR+2} offset:{s*1024}",
                        f"ds_read_b64_tr_b16 {R(b+2,2)}, v{vTR+3} offset:{s*1024}",
                        f"ds_read_b64_tr_b16 {R(b+4,2)}, v{vTR+4} offset:{s*1024}",
                        f"ds_read_b64_tr_b16 {R(b+6,2)}, v{vTR+5} offset:{s*1024}"]
            if s == 32:
                return [f"ds_read_b64 {R(b,2)}, v23 offset:256", f"ds_read_b64 {R(b+4,2)}, v23 offset:512", "s_nop 0", "s_nop 0"]
            return []
        a(f"v_lshlrev_b32 v23, 3, {vC}")
        a(f"v_add_u32 v23, {sCSF}, v23")
        PF = 2
        for s in range(PF):
            for x in rd1(s): a(x)
        for s in range(32):
            if s in (8, 16, 24):
                g = s // 8
                lz = self.lab("l0sk")
                a(f"s_cmp_eq_u32 {sL}, 0")
                a(f"s_cbranch_scc1 {lz}")
                a(f"s_waitcnt vmcnt({ {8:16, 16:12, 24:4}[s] })")
                self.check_or_poll([vXF + 4 * k for k in range(s, s + 8)], lambda t, g=g: self.x_loads(t, g), "v20", 1 + g)
                a.label(lz)
                if s == 8:
                    l2 = self.lab("nohs")
                    a(f"s_cmp_lg_u32 {sL}, 0")
                    a(f"s_cbranch_scc1 {l2}")
                    self.handshake_wait(0x80, True)
                    a.label(l2)
                    self.st_loads(a)
            b = WF1[s % 4]
            nxt = rd1(s + PF)
            later = sum(len([x for x in rd1(k) if x.startswith("ds_")]) for k in range(s + 1, s + PF))
            a(f"s_waitcnt lgkmcnt({later})")
            c0 = "0" if s == 0 else None
            a(f"v_mfma_f32_32x32x16_bf16 {R(ACC_K,16)}, {R(b)}, {R(vXF+4*s)}, {c0 or R(ACC_K,16)}")
            for x in nxt[:2]: a(x)
            a(f"v_mfma_f32_32x32x16_bf16 {R(ACC_V,16)}, {R(vXF+4*s)}, {R(b+4)}, {c0 or R(ACC_V,16)}")
            for x in nxt[2:]: a(x)
        a("s_waitcnt vmcnt(0)")
        self.check_or_poll([ACC_Q + 2 * i for i in range(8)], lambda t: self.st_loads(t), "v20", 5)
        q = ACC_Q
        for i in range(1, 8):
            a(f"v_add_f32 v{q}, v{q}, v{q+2*i}")
            a(f"v_add_f32 v{q+1}, v{q+1}, v{q+2*i+1}")
        a(f"""
        v_mov_b32 v{q+2}, v{q}
        v_mov_b32 v{q+3}, v{q+1}
        s_nop 1
        v_permlane32_swap_b32 v{q}, v{q+2}
        v_permlane32_swap_b32 v{q+1}, v{q+3}
        s_nop 1
        v_add_f32 v{q}, v{q}, v{q+2}
        v_add_f32 v{q+1}, v{q+1}, v{q+3}
        v_mul_f32 v{q}, {f32hex(1/512)}, v{q}
        v_mul_f32 v{q+1}, {f32hex(1/512)}, v{q+1}
        v_fma_f32 v{q+1}, -v{q}, v{q}, v{q+1}
        v_max_f32 v{q+1}, 0, v{q+1}
        v_cvt_pk_bf16_f32 v{q+2}, v{q}, v{q+1}
        v_and_b32 v{q+3}, 0xffff0000, v{q+2}
        v_add_f32 v{q+3}, {f32hex(1e-5)}, v{q+3}
        v_cvt_pk_bf16_f32 v{q+3}, v{q+3}, v{q+3}
        v_and_b32 v{q+3}, 0xffff0000, v{q+3}
        v_sqrt_f32 v{q+3}, v{q+3}
        v_and_b32 v{q+2}, 0xffff, v{q+2}
        v_xor_b32 v{q+2}, 0x8000, v{q+2}
        v_cvt_pk_bf16_f32 v{q+3}, v{q+3}, v{q+3}
        v_and_b32 v{q+3}, 0xffff0000, v{q+3}
        v_rcp_f32 {vRSTD}, v{q+3}
        v_cndmask_b32_e64 v17, 0, v{q+2}, {sLO32}
        v_lshl_or_b32 v16, v17, 16, v17
        v_mov_b32 v18, 0
        v_mov_b32 v19, 0
        v_mul_f32 {vRSTDC}, {f32hex(QSCALE)}, {vRSTD}
        s_lshl_b32 {sT0}, {sW}, 7
        v_lshlrev_b32 {vT0}, 2, {vC}
        v_add_u32 {vT0}, {sT0}, {vT0}
        ds_write_b32 {vT0}, {vRSTD} offset:{L_RS}
        """)
        b = WF1[32 % 4]
        a("s_waitcnt lgkmcnt(0)")
        a(f"v_mfma_f32_32x32x16_bf16 {R(ACC_K,16)}, {R(b)}, v[16:19], {R(ACC_K,16)}")
        a(f"v_mfma_f32_32x32x16_bf16 {R(ACC_V,16)}, v[16:19], {R(b+4)}, {R(ACC_V,16)}")
        a(f"v_lshlrev_b32 {vT0}, 4, {vH}")
        a(f"v_add_u32 {vT0}, {sT0}, {vT0}")
        for qq in range(4):
            a(f"ds_read_b128 {R(vRS+4*qq)}, {vT0} offset:{L_RS + qq*32}")
        order = [28, 29, 30, 31] + list(range(28)) + [32]
        def rd2(i):
            if i >= len(order): return []
            s = order[i]; b = WF2[i % 4]
            if s == 32: return [f"ds_read_b64 {R(b,2)}, v23 offset:0"]
            return [f"ds_read_b64_tr_b16 {R(b,2)}, v{vTR} offset:{s*1024}",
                    f"ds_read_b64_tr_b16 {R(b+2,2)}, v{vTR+1} offset:{s*1024}"]
        epi = []
        for r in range(16): epi.append(f"v_mul_f32 v{ACC_K+r}, {vRSTD}, v{ACC_K+r}")
        for j in range(8): epi.append(f"v_cvt_pk_bf16_f32 v{vOWN+j}, v{ACC_K+2*j}, v{ACC_K+2*j+1}")
        for r in range(16): epi.append(f"v_mul_f32 v{ACC_V+r}, v{vRS+r}, v{ACC_V+r}")
        for j in range(8): epi.append(f"v_cvt_pk_bf16_f32 v{vOWN+8+j}, v{ACC_V+2*j}, v{ACC_V+2*j+1}")
        for f in range(4): epi.append(f"v_min_u32 v{vOWN+4*f}, 0xfffffffe, v{vOWN+4*f}")
        PF2 = 3
        a("s_waitcnt lgkmcnt(0)")
        for i in range(PF2):
            for x in rd2(i): a(x)
        ei = 0
        published = False
        for i, s in enumerate(order):
            b = WF2[i % 4]
            later = sum(len(rd2(k)) for k in range(i + 1, i + PF2))
            extra = 4 if (published and not self._pub_done) else 0
            a(f"s_waitcnt lgkmcnt({later})")
            c0 = "0" if i == 0 else None
            bop = "v[16:19]" if s == 32 else R(vXF + 4 * s)
            a(f"v_mfma_f32_32x32x16_bf16 {R(ACC_Q,16)}, {R(b)}, {bop}, {c0 or R(ACC_Q,16)}")
            for x in rd2(i + PF2): a(x)
            if i >= 4:
                for x in epi[ei:ei + 4]: a(x)
                ei += 4
                if ei >= len(epi) and not published:
                    published = True; self._pub_done = True
                    self.kv_publish()
        assert published
        a("s_nop 7\ns_nop 3")
        for r in range(16): a(f"v_mul_f32 v{ACC_Q+r}, {vRSTDC}, v{ACC_Q+r}")
        for j in range(8): a(f"v_cvt_pk_bf16_f32 v{vQ+j}, v{ACC_Q+2*j}, v{ACC_Q+2*j+1}")
        a("s_waitcnt lgkmcnt(0)")
        a("s_barrier")

    def kv_publish(self):
        a = self.a
        lsk = self.lab("kvsk")
        ldo = self.lab("kvdo")
        a(f"s_bitcmp0_b32 {sL}, 0")
        a(f"s_cbranch_scc1 {ldo}")
        a(f"s_cmp_lg_u32 {sW}, 3")
        a(f"s_cbranch_scc1 {lsk}")
        a.label(ldo)
        for f in range(4):
            a(f"buffer_store_dwordx4 {R(vOWN+4*f)}, {vL16}, {srd(SRD_WS)}, {sKVl} offen offset:{f*1024} sc1")
        a.label(lsk)
        a(f"s_lshl_b32 {sT0}, {sW}, 12")
        a(f"v_add_u32 {vT0}, {sT0}, {vL16}")
        for f in range(4):
            a(f"ds_write_b128 {vT0}, {R(vOWN+4*f)} offset:{L_KVO + f*1024}")
        l3 = self.lab("clr3")
        a(f"s_cmp_eq_u32 {sL}, 3")
        a(f"s_cbranch_scc1 {l3}")
        a("v_mov_b32 v20, -1\nv_mov_b32 v21, -1\nv_mov_b32 v22, -1")
        a(f"v_mov_b32 {vT1}, v23")
        a("v_mov_b32 v23, -1")
        a(f"s_add_u32 {sT0}, {sOBl}, 0x200000")
        self.store_msg([("v[20:23]", sXBout, 0), ("v[20:23]", sXBout, 1024), ("v[20:23]", sT0, 0), ("v[20:23]", sT0, 1024)], vL16, None)
        a(f"v_lshlrev_b32 {vT0}, 7, {vC}")
        self.store_msg([("v[20:21]", sSTout, 0)], vT0, None, width="dwordx2")
        a("s_nop 1")
        a(f"v_mov_b32 v23, {vT1}")
        a.label(l3)

    def tile_S(self, S, slot, h, cmask):
        self.a(f"v_mfma_f32_32x32x16_bf16 {R(S,16)}, {R(slot+4*h)}, {R(vQ+4*h)}, {cmask}")
    def tile_exp(self, S):
        a = self.a
        for r in range(16): a(f"v_exp_f32 v{S+r}, v{S+r}")
        a("s_nop 0")
        for j in range(8): a(f"v_cvt_pk_bf16_f32 v{S+j}, v{S+2*j}, v{S+2*j+1}")
        a("s_nop 1")
    def tile_PV(self, S, slot, h, first, firstL):
        a = self.a
        O = vO0 if h == 0 else vO1
        a(f"v_mfma_f32_32x32x16_bf16 {R(O,16)}, {R(slot+8)}, {R(S)}, {'0' if first else R(O,16)}")
        a(f"v_mfma_f32_32x32x16_bf16 {R(vLACC,16)}, {R(vONES+4*h)}, {R(S)}, {'0' if firstL else R(vLACC,16)}")
        a(f"v_mfma_f32_32x32x16_bf16 {R(O,16)}, {R(slot+12)}, {R(S+4)}, {R(O,16)}")
        a(f"v_mfma_f32_32x32x16_bf16 {R(vLACC,16)}, {R(vONES+4*h)}, {R(S+4)}, {R(vLACC,16)}")
    def tile(self, slot, cmask, first=False):
        a = self.a
        self.tile_S(vS0, slot, 0, cmask)
        self.tile_S(vS1, slot, 1, cmask)
        a("s_nop 7\ns_nop 2")
        self.tile_exp(vS0)
        self.tile_PV(vS0, slot, 0, first, first)
        self.tile_exp(vS1)
        self.tile_PV(vS1, slot, 1, first, False)

    def slot_base(self, i): return vXF + 16 * ((i - 1) % 7) if i == 8 else vXF + 16 * (i - 1)
    def slot_gload(self, t, i):
        b = self.slot_base(i)
        t(f"s_sub_u32 {sT0}, {sKVl}, {i*65536}")
        t(f"s_cmp_lt_u32 {sT}, {i}")
        t(f"s_cselect_b32 {sT0}, 0x7f000000, {sT0}")
        for f in range(4):
            t(f"buffer_load_dwordx4 {R(b+4*f)}, {vL16}, {srd(SRD_WS)}, {sT0} offen offset:{f*1024} sc1")
    def slot_load(self, i):
        a = self.a
        b = self.slot_base(i)
        if i <= 3:
            lg, ld = self.lab("slg"), self.lab("sld")
            a(f"s_cmp_lt_u32 {sW}, {i}")
            a(f"s_cbranch_scc1 {lg}")
            a(f"s_sub_u32 {sT0}, {sW}, {i}")
            a(f"s_lshl_b32 {sT0}, {sT0}, 12")
            a(f"v_add_u32 {vT0}, {sT0}, {vL16}")
            for f in range(4):
                a(f"ds_read_b128 {R(b+4*f)}, {vT0} offset:{L_KVO + f*1024}")
            a(f"s_branch {ld}")
            a.label(lg)
            self.slot_gload(a, i)
            a.label(ld)
        else:
            self.slot_gload(a, i)

    def next_w(self):
        a = self.a
        lsk = self.lab("nw")
        a(f"s_cmp_eq_u32 {sL}, 3")
        a(f"s_cbranch_scc1 {lsk}")
        a(f"s_bitcmp0_b32 {sL}, 0")
        a(f"s_cselect_b32 s{SRD_WN}, s{SRD_WQB}, s{SRD_WQA}")
        a(f"s_cselect_b32 s{SRD_WN+1}, s{SRD_WQB+1}, s{SRD_WQA+1}")
        self.w_dma([0, 1, 2])
        a.label(lsk)

    def attn_finish(self):
        a = self.a
        a("s_nop 7\ns_nop 3")
        a(f"v_rcp_f32 v20, v{vLACC}")
        a(f"v_rcp_f32 v21, v{vLACC+8}")
        a("s_nop 0")
        for r in range(8): a(f"v_mul_f32 v{vO0+r}, v20, v{vO0+r}")
        for r in range(8): a(f"v_mul_f32 v{vO1+8+r}, v21, v{vO1+8+r}")
        for j in range(4): a(f"v_cvt_pk_bf16_f32 v{vS0+j}, v{vO0+2*j}, v{vO0+2*j+1}")
        for j in range(4): a(f"v_cvt_pk_bf16_f32 v{vS0+4+j}, v{vO1+8+2*j}, v{vO1+8+2*j+1}")
        a(f"v_min_u32 v{vS0}, 0xfffffffe, v{vS0}")
        a(f"v_min_u32 v{vS0+4}, 0xfffffffe, v{vS0+4}")
        a("s_waitcnt vmcnt(0)")
        self.store_msg([(R(vS0), sOBl, 0), (R(vS0 + 4), sOBl, 1024)], vL16, None)

    def attn_A(self):
        a = self.a
        for i in range(1, 8): self.slot_load(i)
        self.tile(vOWN, R(vMASK, 16), first=True)
        ldone = self.lab("adone")
        for i in range(1, 9):
            a(f"s_cmp_lt_u32 {sT}, {i}")
            a(f"s_cbranch_scc1 {ldone}")
            b = self.slot_base(i)
            if i <= 7:
                n = 4 * (7 - i) + (4 if i >= 2 else 0)
                a(f"s_waitcnt vmcnt({n}) lgkmcnt(0)")
            else:
                a("s_waitcnt vmcnt(0)")
                for r in range(16): a(f"v_xor_b32 v{vMASK+r}, {NEG_INF:#x}, v{vMASK+r}")
            self.check_or_poll([b, b + 4, b + 8, b + 12], lambda t, i=i: self.slot_gload(t, i), vT0, 10 + i)
            self.tile(b, R(vMASK, 16) if i == 8 else "0")
            if i == 1: self.slot_load(8)
        a.label(ldone)
        self.next_w()
        self.attn_finish()

    def attn_B(self):
        a = self.a
        self.slot_load(1)
        self.set_masks('prevB', vXF + 32)
        self.tile(vOWN, R(vMASK, 16), first=True)
        ldone = self.lab("bdone")
        a(f"s_cmp_lt_u32 {sT}, 1")
        a(f"s_cbranch_scc1 {ldone}")
        b = self.slot_base(1)
        a("s_waitcnt vmcnt(0) lgkmcnt(0)")
        self.check_or_poll([b, b + 4, b + 8, b + 12], lambda t: self.slot_gload(t, 1), vT0, 20)
        self.tile(b, R(vXF + 32, 16))
        a.label(ldone)
        self.next_w()
        self.attn_finish()

    def wo_load(self):
        a = self.a
        self.handshake_wait(0x40, False)
        for mat in range(2):
            for g in range(4):
                a(f"s_add_u32 {sT0}, {sW}, {g}")
                a(f"s_and_b32 {sT0}, {sT0}, 3")
                a(f"s_lshl_b32 {sT0}, {sT0}, 13")
                a(f"s_lshl_b32 {sT1}, {sCT}, 15")
                a(f"s_add_u32 {sT0}, {sT0}, {sT1}")
                a(f"s_add_u32 {sT0}, {sT0}, {WOF + mat*0x80000}")
                a(f"s_add_u32 {sT1}, {sT0}, 4096")
                for i in range(8):
                    a(f"buffer_load_dwordx4 {AR(mat*128 + (g*8+i)*4)}, {vL16}, {srd(SRD_WS)}, {sT0 if i < 4 else sT1} offen offset:{(i%4)*1024} sc1")
            a("s_waitcnt vmcnt(0)")

    def o_loads(self, t):
        t(f"s_add_u32 {sT1}, {sU0}, 4096")
        for i in range(8):
            t(f"buffer_load_dwordx4 {R(vXF+4*i)}, {vL16}, {srd(SRD_WS)}, {sU0 if i < 4 else sT1} offen offset:{(i%4)*1024} sc1")

    def outproj(self):
        a = self.a
        ACC = 64
        a(f"s_lshl_b32 {sT0}, {sL}, 21")
        a(f"s_lshl_b32 {sT1}, {sRT}, 15")
        a(f"s_add_u32 {sU0}, {sT0}, {sT1}")
        a(f"s_lshl_b32 {sT1}, {sW}, 13")
        a(f"s_add_u32 {sU0}, {sU0}, {sT1}")
        a(f"s_add_u32 {sU0}, {sU0}, {OB(0)}")
        self.o_loads(a)
        a(f"s_lshl_b32 {sT0}, {sW}, 11")
        a(f"v_add_u32 {vT0}, {sT0}, {vL16}")
        a(f"ds_read_b128 v[96:99], {vT0} offset:{L_XR}")
        a(f"ds_read_b128 v[100:103], {vT0} offset:{L_XR+1024}")
        a("s_waitcnt lgkmcnt(0)")
        for i in range(8):
            a(f"v_lshlrev_b32 v{ACC+2*i}, 16, v{96+i}")
            a(f"v_and_b32 v{ACC+2*i+1}, 0xffff0000, v{96+i}")
        a(f"s_lshl_b32 {sT0}, {sW}, 13")
        a(f"v_add_u32 v104, {sT0}, {vL16}")
        for g in (1, 2, 3):
            a(f"s_add_u32 {sT0}, {sW}, {g}")
            a(f"s_and_b32 {sT0}, {sT0}, 3")
            a(f"s_lshl_b32 {sT0}, {sT0}, 13")
            a(f"v_add_u32 v{104+g}, {sT0}, {vL16}")
        a("s_waitcnt vmcnt(0)")
        self.check_or_poll([vXF + 4 * i for i in range(8)], lambda t: self.o_loads(t), "v20", 30)
        for i in range(8):
            a(f"ds_write_b128 v104, {R(vXF+4*i)} offset:{L_OT + i*1024}")
        lB, lD = self.lab("opB"), self.lab("opD")
        a(f"s_bitcmp1_b32 {sL}, 0")
        a(f"s_cbranch_scc1 {lB}")
        for mat in range(2):
            if mat: a.label(lB)
            for i in range(8):
                a(f"v_mfma_f32_32x32x16_bf16 {R(ACC,16)}, {AR(mat*128+4*i)}, {R(vXF+4*i)}, {R(ACC,16)}")
            a("s_waitcnt lgkmcnt(0)")
            a("s_barrier")
            for i in range(8, 32):
                a(f"ds_read_b128 {R(vXF+4*i)}, v{104 + i//8} offset:{L_OT + (i%8)*1024}")
            for i in range(8, 32):
                a(f"s_waitcnt lgkmcnt({min(15, 31 - i)})")
                a(f"v_mfma_f32_32x32x16_bf16 {R(ACC,16)}, {AR(mat*128+4*i)}, {R(vXF+4*i)}, {R(ACC,16)}")
            if not mat: a(f"s_branch {lD}")
        a.label(lD)
        a("s_nop 7\ns_nop 3")
        for j in range(8): a(f"v_cvt_pk_bf16_f32 v{96+j}, v{ACC+2*j}, v{ACC+2*j+1}")
        llast, lnext = self.lab("last"), self.lab("nextl")
        a(f"s_cmp_eq_u32 {sL}, 3")
        a(f"s_cbranch_scc1 {llast}")
        a(f"v_min_u32 v96, 0xfffffffe, v96")
        a(f"v_min_u32 v100, 0xfffffffe, v100")
        self.store_msg([("v[96:99]", sXBout, 0), ("v[100:103]", sXBout, 1024)], vL16, None)
        a(f"s_lshl_b32 {sT0}, {sW}, 11")
        a(f"v_add_u32 {vT0}, {sT0}, {vL16}")
        a(f"ds_write_b128 {vT0}, v[96:99] offset:{L_XR}")
        a(f"ds_write_b128 {vT0}, v[100:103] offset:{L_XR+1024}")
        for i in range(8):
            a(f"v_lshlrev_b32 v{ACC+2*i}, 16, v{96+i}")
            a(f"v_and_b32 v{ACC+2*i+1}, 0xffff0000, v{96+i}")
        self.xstats_store(ACC, sSTout)
        return llast

    def build(self):
        a = self.a
        self._pub_done = False
        self.prologue()
        a.label("L_layer")
        lb, ld = self.lab("mB"), self.lab("mD")
        a(f"s_bitcmp1_b32 {sL}, 0")
        a(f"s_cbranch_scc1 {lb}")
        self.set_masks('diagA', vMASK)
        a(f"s_branch {ld}")
        a.label(lb)
        self.set_masks('diagB', vMASK)
        a.label(ld)
        self.gemm()
        lb, ld = self.lab("aB"), self.lab("aD")
        a(f"s_bitcmp1_b32 {sL}, 0")
        a(f"s_cbranch_scc1 {lb}")
        self.attn_A()
        a(f"s_branch {ld}")
        a.label(lb)
        self.attn_B()
        a.label(ld)
        l1 = self.lab("nl0")
        a(f"s_cmp_lg_u32 {sL}, 0")
        a(f"s_cbranch_scc1 {l1}")
        self.wo_load()
        a("s_barrier")
        self.colsum(1)
        self.set_tr_addr(True)
        a.label(l1)
        llast = self.outproj()
        a(f"s_add_u32 {sL}, {sL}, 1")
        a(f"s_add_u32 {sXBin}, {sXBin}, 0x200000")
        a(f"s_add_u32 {sXBout}, {sXBout}, 0x200000")
        a(f"s_add_u32 {sOBl}, {sOBl}, 0x200000")
        a(f"s_add_u32 {sKVl}, {sKVl}, 0x400000")
        a(f"s_add_u32 {sSTin}, {sSTin}, 0x40000")
        a(f"s_add_u32 {sSTout}, {sSTout}, 0x40000")
        a(f"s_xor_b32 {sCSF}, {sCSF}, {L_CSF ^ (L_CSF + 768)}")
        a("s_branch L_layer")
        a.label(llast)
        a(f"v_lshlrev_b32 {vT0}, 10, {vC}")
        a(f"v_lshl_add_u32 {vT0}, {vH}, 3, {vT0}")
        a(f"s_lshl_b32 {sT0}, {sRT}, 15")
        a(f"s_lshl_b32 {sT1}, {sCT}, 6")
        a(f"s_add_u32 {sT0}, {sT0}, {sT1}")
        for q in range(4):
            a(f"buffer_store_dwordx2 {R(96+2*q,2)}, {vT0}, {srd(SRD_OUT)}, {sT0} offen offset:{q*16}")
        if self.dbg:
            a(f"v_mov_b32 v20, {sERR}")
            a(f"v_mov_b32 v21, {sFAST}")
            a(f"s_lshl_b32 {sT0}, s2, 5")
            a(f"s_lshl_b32 {sT1}, {sW}, 3")
            a(f"s_add_u32 {sT0}, {sT0}, {sT1}")
            a(f"s_add_u32 {sT0}, {sT0}, {WS_DBG}")
            a("v_mov_b32 v22, 0")
            a("s_mov_b64 exec, 1")
            a(f"buffer_store_dwordx2 v[20:21], v22, {srd(SRD_WS)}, {sT0} offen")
        a.label("L_end")
        a("s_endpgm")
        return a.text() + self.tail.text()

HEADER = open("interleave_layers__sliding_block__sliding_local_dilated__prompt.s.ref").read().split("; Override launch")[0]

def full(dbg=False):
    g = Gen(dbg)
    body = g.build()
    return (HEADER + f"; @launch grid=(256,1,1) block=(256,1,1) lds={LDS_BYTES}\n" +
            '.amdgcn_target "amdgcn-amd-amdhsa--gfx950"\n' + f""".text
.globl {NAME}
.p2align 8
.type {NAME},@function
{NAME}:
{body}
.section .rodata,"a"
.p2align 6
.amdhsa_kernel {NAME}
  .amdhsa_next_free_vgpr 512
  .amdhsa_next_free_sgpr 102
  .amdhsa_accum_offset 256
  .amdhsa_group_segment_fixed_size 0
  .amdhsa_kernarg_size 72
  .amdhsa_user_sgpr_count 2
  .amdhsa_user_sgpr_kernarg_segment_ptr 1
  .amdhsa_system_sgpr_workgroup_id_x 1
.end_amdhsa_kernel
""")

if __name__ == "__main__":
    dbg = "--dbg" in sys.argv
    out = [x for x in sys.argv[1:] if not x.startswith("--")]
    txt = full(dbg)
    open(out[0], "w").write(txt)
    from asmlib import build
    build(txt, out[0].replace(".s", ".co"), NAME)
    print("ok", len(txt.splitlines()), "lines")
```

```python
import sys, os
sys.path.insert(0, "work")
from asmlib import Asm

NAME = "interleave_layers__sliding_block__sliding_local_dilated__prompt_kernel"

XB = lambda l: (l - 1) * 0x200000
OB = lambda l: 0x600000 + l * 0x200000
KV = lambda l: 0xE00000 + l * 0x400000
ST = lambda l: 0x1E00000 + l * 0x40000
WOF = 0x1F00000
WQF = 0x2000000
WS_USED = 0x2300000
WS_DBG = 0x2400000
WS_SIZE = 0x2800000
L_KV = 0
L_OT = 0
L_XR = 49152
L_CSF = 57344
L_RS = 58880
L_SCR = 32768
L_MT = 59392
L_W = 65536
LDS_BYTES = 160 * 1024
sW, sR, sM, sL, sFAST = "s3", "s4", "s5", "s6", "s7"
SRD_X, SRD_WQA, SRD_WQB, SRD_WOA, SRD_WOB, SRD_OUT, SRD_DBG, SRD_WS, SRD_WN = 8, 12, 16, 20, 24, 28, 32, 36, 40
def srd(i): return f"s[{i}:{i+3}]"
sCHK = "s[44:45]"
sT0, sT1, sT2, sT3, sT4, sT5 = "s46", "s47", "s48", "s49", "s50", "s51"
sTRY = "s52"
sXCC = "s53"
sT = "s54"
sRT = "s55"
sCT = "s56"
sXBin, sOBl, sKVl, sSTin, sXBout, sSTout = "s57", "s58", "s59", "s60", "s61", "s62"
sOIN = "s63"
sLO32 = "s[66:67]"
sMSK = "s[68:69]"
sCSF = "s70"
sERR = "s71"
sPT = 72
sH0 = "s[72:73]"
sH1 = "s[74:75]"
sNB0, sNB1 = "s76", "s77"
sL0EX = "s[84:85]"
sWNEX = "s[86:87]"
sWQN = "s90"
sWOB = "s91"
sU0, sU1, sU2, sU3 = "s92", "s93", "s94", "s95"
vTID, vLANE, vC, vH, vL16 = "v0", "v1", "v2", "v3", "v4"
vTR = 5
vWD = "v11"
vRSTD, vRSTDC = "v12", "v13"
vT0, vT1 = "v14", "v15"
vCSA = "v15"
vQ = 16
vMASK = 32
vCZ = 48
vSA = (64, 80)
vO = (96, 112)
vSB = (128, 144)
vSL = (160, 184, 208)
vXF = 128
vSTG = 128
ACC_K, ACC_V, ACC_Q = 64, 80, 96
WF = [24, 36, 48]
vRS = 112
vSTAT = 112
vOWNK = 160
vOWNV = 184
SPIN_LIMIT = 40000
NEG_INF = 0xFF800000
QSCALE = 0.25 * 1.4426950408889634
CODE_KB = 40

def R(b, n=4): return f"v[{b}:{b+n-1}]"
def AR(b, n=4): return f"a[{b}:{b+n-1}]"
def f32hex(x):
    import struct
    return "0x%08x" % struct.unpack("<I", struct.pack("<f", x))[0]
MFMA = "v_mfma_f32_32x32x16_bf16"

def interleave(valu, extras):
    out = []
    ex = sorted(extras, key=lambda e: e[0])
    k = 0
    for i, v in enumerate(valu + [None]):
        while k < len(ex) and ex[k][0] <= i:
            out += ex[k][1]; k += 1
        if v is not None: out.append(v)
    while k < len(ex):
        out += ex[k][1]; k += 1
    return out

class Gen:
    def __init__(self, dbg=False):
        self.a = Asm()
        self.tail = Asm()
        self.dbg = dbg
        self.nl = 0
    def lab(self, p):
        self.nl += 1
        return f"L_{p}_{self.nl}"

    def stamp(self, p, inloop=True):
        if not self.dbg: return
        a = self.a
        a("s_memrealtime s[96:97]")
        if inloop:
            a(f"s_mul_i32 s98, {sL}, 12")
            a(f"s_add_u32 m0, s98, {p + 8}")
        else:
            a(f"s_mov_b32 m0, {p}")
        a("s_waitcnt lgkmcnt(0)")
        a("v_writelane_b32 v0, s96, m0")

    def maxtree(self, a, regs, dst):
        regs = list(regs)
        a(f"v_max3_u32 {dst}, v{regs[0]}, v{regs[1]}, v{regs[2]}")
        i = 3
        while i < len(regs):
            if i + 1 < len(regs):
                a(f"v_max3_u32 {dst}, {dst}, v{regs[i]}, v{regs[i+1]}"); i += 2
            else:
                a(f"v_max_u32 {dst}, {dst}, v{regs[i]}"); i += 1
    def check_or_poll(self, chk_regs, reload_fn, tmp, errcode):
        a, t = self.a, self.tail
        slow, back, loop = self.lab("slow"), self.lab("back"), self.lab("sloop")
        self.maxtree(a, chk_regs, tmp)
        a(f"v_cmp_eq_u32 vcc, -1, {tmp}")
        a(f"s_and_b64 vcc, vcc, {sCHK}")
        a(f"s_cbranch_vccnz {slow}")
        a.label(back)
        t.label(slow)
        t(f"s_mov_b32 {sTRY}, 0")
        t.label(loop)
        if self.dbg:
            c = "s84" if errcode <= 4 else "s85" if errcode == 5 else "s86" if errcode == 10 else "s87"
            t(f"s_add_u32 {c}, {c}, 1")
        reload_fn(t)
        t("s_waitcnt vmcnt(0)")
        self.maxtree(t, chk_regs, tmp)
        t(f"v_cmp_eq_u32 vcc, -1, {tmp}")
        t(f"s_cbranch_vccz {back}")
        t(f"s_add_u32 {sTRY}, {sTRY}, 1")
        t(f"s_cmp_lt_u32 {sTRY}, {SPIN_LIMIT}")
        t(f"s_cbranch_scc1 {loop}")
        t(f"s_mov_b64 {sCHK}, 0")
        t(f"s_mov_b32 {sERR}, {errcode}")
        t(f"s_branch {back}")

    def probe(self, voff, sbase, va, vb, errcode):
        a = self.a
        loop, done, tmo = self.lab("pl"), self.lab("pd"), self.lab("pt")
        ld = lambda v: a(f"buffer_load_dword {v}, {voff}, {srd(SRD_WS)}, {sbase} offen sc1")
        a(f"s_mov_b32 {sTRY}, 0")
        ld(va);
        a("s_sleep 1")
        ld(vb)
        a.label(loop)
        for v in (va, vb):
            a("s_waitcnt vmcnt(1)")
            a(f"v_cmp_eq_u32 vcc, -1, {v}")
            a(f"s_and_b64 vcc, vcc, {sCHK}")
            a(f"s_cbranch_vccz {done}")
            ld(v)
        a(f"s_add_u32 {sTRY}, {sTRY}, 1")
        a(f"s_cmp_lt_u32 {sTRY}, {SPIN_LIMIT}")
        a(f"s_cbranch_scc1 {loop}")
        a(f"s_mov_b64 {sCHK}, 0")
        a(f"s_mov_b32 {sERR}, {errcode}")
        a.label(done)

    def store_msg(self, data, voff, width="dwordx4"):
        a, t = self.a, self.tail
        l1, l2 = self.lab("stsl"), self.lab("stdn")
        a(f"s_cmp_eq_u32 {sFAST}, 0")
        a(f"s_cbranch_scc1 {l1}")
        for d, s, im in data:
            o = f" offset:{im}" if im else ""
            a(f"buffer_store_{width} {d}, {voff}, {srd(SRD_WS)}, {s} offen{o}")
        a.label(l2)
        t.label(l1)
        for d, s, im in data:
            o = f" offset:{im}" if im else ""
            t(f"buffer_store_{width} {d}, {voff}, {srd(SRD_WS)}, {s} offen{o} sc1")
        t(f"s_branch {l2}")

    def w_dma(self, cts):
        a = self.a
        a(f"s_mul_i32 {sT0}, {sW}, {16*3072}")
        a(f"s_lshl_b32 {sT1}, {sM}, 6")
        a(f"s_add_u32 {sT0}, {sT0}, {sT1}")
        a(f"s_lshl_b32 {sT1}, {sW}, 10")
        for i in range(8):
            for ct in cts:
                a(f"s_add_u32 m0, {sT1}, {L_W + ct*32768 + i*4096}")
                a(f"s_add_u32 {sT2}, {sT0}, {i*64*3072 + ct*1024}")
                a(f"buffer_load_dwordx4 {vWD}, {srd(SRD_WN)}, {sT2} offen lds")

    def colsum(self, mat, tb=64, skipq=False):
        a = self.a
        a(f"s_lshl_b32 {sT0}, {sW}, 13")
        a(f"v_mov_b32 v20, 0x3f803f80")
        jobs = [(ct, hf) for ct in range(3) for hf in range(2)]
        def rd(n):
            ct, hf = jobs[n]; b = tb + 16 * (n % 2)
            a(f"v_add_u32 {vT0}, {sT0}, v{vTR+2*ct}")
            a(f"v_add_u32 {vT1}, {sT0}, v{vTR+2*ct+1}")
            for s in range(4):
                a(f"ds_read_b64_tr_b16 {R(b+4*s,2)}, {vT0} offset:{(hf*4+s)*1024}")
                a(f"ds_read_b64_tr_b16 {R(b+4*s+2,2)}, {vT1} offset:{(hf*4+s)*1024}")
        for ct in range(3): a(f"v_mov_b32 v{21+ct}, 0")
        rd(0)
        for n in range(6):
            if n + 1 < 6: rd(n + 1)
            a(f"s_waitcnt lgkmcnt({8 if n + 1 < 6 else 0})")
            ct = jobs[n][0]; b = tb + 16 * (n % 2)
            for j in range(16):
                a(f"v_dot2_f32_bf16 v{21+ct}, v{b+j}, v20, v{21+ct}")
        a(f"v_lshlrev_b32 {vT0}, 2, {vLANE}")
        a(f"s_lshl_b32 {sT0}, {sW}, 8")
        a(f"v_add_u32 {vT0}, {sT0}, {vT0}")
        a("s_nop 2")
        for ct in range(3):
            a(f"ds_write_b32 {vT0}, v{21+ct} offset:{L_SCR + ct*1024}")
        a("s_waitcnt lgkmcnt(0)")
        a("s_barrier")
        lskip = self.lab("cssk")
        a(f"s_cmp_ge_u32 {sW}, 3")
        a(f"s_cbranch_scc1 {lskip}")
        a(f"s_lshl_b32 {sT0}, {sW}, 10")
        a(f"v_lshlrev_b32 {vT0}, 2, {vC}")
        a(f"v_add_u32 {vT0}, {sT0}, {vT0}")
        t = tb
        for p in range(8):
            a(f"ds_read_b32 v{t+p}, {vT0} offset:{L_SCR + p*128}")
        a("s_waitcnt lgkmcnt(0)")
        for p in range(1, 8):
            a(f"v_add_f32 v{t}, v{t}, v{t+p}")
        a(f"""
        v_cvt_pk_bf16_f32 v{t+1}, v{t}, v{t}
        v_and_b32 v{t+2}, 0xffff0000, v{t+1}
        v_sub_f32 v{t+3}, v{t}, v{t+2}
        v_cvt_pk_bf16_f32 v{t+4}, v{t+3}, v{t+3}
        v_and_b32 v{t+5}, 0xffff0000, v{t+4}
        v_sub_f32 v{t+6}, v{t+3}, v{t+5}
        v_cvt_pk_bf16_f32 v{t+7}, v{t+6}, v{t+6}
        v_lshrrev_b32 v{t+8}, 16, v{t+2}
        v_or_b32 v{t+8}, v{t+8}, v{t+5}
        v_and_b32 v{t+9}, 0xffff, v{t+7}
        s_lshl_b32 {sT0}, {sW}, 8
        v_lshlrev_b32 {vT0}, 3, {vC}
        v_add_u32 {vT0}, {sT0}, {vT0}
        ds_write_b64 {vT0}, v[{t+8}:{t+9}] offset:{L_CSF + mat*768}
        s_waitcnt lgkmcnt(0)
        """)
        a.label(lskip)

    def set_tr_addr(self, permuted):
        a = self.a
        a(f"v_bfe_u32 {vT0}, {vLANE}, 2, 2")
        a(f"v_lshlrev_b32 {vT0}, 6, {vT0}")
        a(f"v_bfe_u32 {vT1}, {vLANE}, 4, 1")
        a(f"v_lshl_add_u32 {vT0}, {vT1}, 5, {vT0}")
        a(f"v_and_b32 {vT1}, 3, {vLANE}")
        a(f"v_lshl_add_u32 {vT0}, {vT1}, 3, {vT0}")
        a(f"v_lshl_add_u32 {vT0}, {vH}, {8 if permuted else 9}, {vT0}")
        for ct in range(3):
            a(f"v_add_u32 v{vTR+2*ct}, {L_W + ct*32768}, {vT0}")
            a(f"v_add_u32 v{vTR+2*ct+1}, {L_W + ct*32768 + (512 if permuted else 256)}, {vT0}")

    def xstats_store(self, src16, soff_s):
        a = self.a
        a(f"v_add_f32 v20, v{src16}, v{src16+1}")
        a(f"v_mul_f32 v21, v{src16}, v{src16}")
        a(f"v_fmac_f32 v21, v{src16+1}, v{src16+1}")
        for i in range(2, 16):
            a(f"v_add_f32 v20, v20, v{src16+i}")
            a(f"v_fmac_f32 v21, v{src16+i}, v{src16+i}")
        a("v_mov_b32 v22, v20")
        a("v_mov_b32 v23, v21")
        a("s_nop 1")
        a("v_permlane32_swap_b32 v20, v22")
        a("v_permlane32_swap_b32 v21, v23")
        a(f"v_lshlrev_b32 {vT0}, 3, {vC}")
        a("s_nop 0")
        a("v_add_f32 v20, v20, v22")
        a("v_add_f32 v21, v21, v23")
        a("v_min_u32 v20, 0xfffffffe, v20")
        a(f"s_mov_b64 exec, {sLO32}")
        self.store_msg([("v[20:21]", soff_s, 0)], vT0, width="dwordx2")
        a("s_mov_b64 exec, -1")

    def mask_tables(self):
        a = self.a
        a(f"v_mov_b32 v12, {NEG_INF:#x}")
        a(f"v_lshlrev_b32 {vT0}, 2, {vLANE}")
        a(f"v_cmp_ge_u32 vcc, 32, {vLANE}")
        a(f"v_sub_u32 {vT1}, 32, {vLANE}")
        a(f"v_cndmask_b32_e64 v20, v12, 0, vcc")
        a(f"v_cndmask_b32_e64 v21, 0, v12, vcc")
        a(f"v_and_b32 v22, 0xfffffff1, {vT1}")
        a(f"v_cmp_eq_u32 vcc, 0, v22")
        a(f"v_add_u32 {vT1}, 32, {vT1}")
        a(f"v_and_b32 v23, 0xfffffff1, {vT1}")
        a(f"v_cndmask_b32_e64 v22, v12, 0, vcc")
        a(f"v_cmp_eq_u32 vcc, 0, v23")
        a(f"v_mov_b32 v13, 0")
        a("s_nop 0")
        a(f"v_cndmask_b32_e64 v23, v12, 0, vcc")
        for k, r in enumerate(["v20", "v21", "v22", "v23", "v13", "v12"]):
            a(f"ds_write_b32 {vT0}, {r} offset:{L_MT + k*256}")

    def mask_load(self, dst, tbl, tmp):
        L = [f"v_lshlrev_b32 {tmp}, 2, {vH}", f"v_sub_u32 {tmp}, {tmp}, {vC}", f"v_lshlrev_b32 {tmp}, 2, {tmp}"]
        if isinstance(tbl, int): L += [f"v_add_u32 {tmp}, {L_MT + 128 + tbl*256}, {tmp}"]
        else: L += [f"v_add_u32 {tmp}, {L_MT + 128}, {tmp}", f"v_add_u32 {tmp}, {tbl}, {tmp}"]
        for k in range(8):
            b0 = 8 * (k // 2) + 2 * (k % 2)
            L += [f"ds_read2_b32 {R(dst+2*k,2)}, {tmp} offset0:{b0} offset1:{b0+1}"]
        return L

    def flag_set(self, sval):
        a = self.a
        lsk = self.lab("hs")
        a(f"s_cmp_lg_u32 {sW}, 0")
        a(f"s_cbranch_scc1 {lsk}")
        a(f"v_mov_b32 {vT0}, {sval}")
        a(f"v_mov_b32 v20, 0")
        a("s_mov_b64 exec, 1")
        a(f"buffer_atomic_or {vT0}, v20, {srd(SRD_DBG)}, {sU3} offen sc1")
        a("s_mov_b64 exec, -1")
        a.label(lsk)

    def prologue(self):
        a = self.a
        a(f"""
        s_cmp_ge_u32 s2, 256
        s_cbranch_scc1 L_end
        s_load_dwordx16 s[{sPT}:{sPT+15}], s[0:1], 0
        s_load_dwordx2 s[88:89], s[0:1], 64
        s_getpc_b64 s[40:41]
        L_pc:
        v_and_b32 {vLANE}, 63, v0
        v_lshrrev_b32 {vT0}, 6, v0
        v_and_b32 {vC}, 31, v0
        v_readfirstlane_b32 {sW}, {vT0}
        s_and_b32 s41, s41, 0xffff
        s_mov_b32 s42, L_codeend-L_pc
        s_mov_b32 s43, 0x20000
        v_lshlrev_b32 {vT1}, 7, v0
        buffer_load_dword v24, {vT1}, s[40:43], 0 offen
        s_mov_b32 {sT0}, 32768
        buffer_load_dword v25, {vT1}, s[40:43], {sT0} offen
        v_bfe_u32 {vH}, v0, 5, 1
        v_lshlrev_b32 {vL16}, 4, {vLANE}
        s_and_b32 {sT0}, s2, 7
        s_lshr_b32 {sT1}, s2, 3
        s_lshl_b32 {sR}, {sT0}, 1
        s_lshr_b32 {sT2}, {sT1}, 4
        s_add_u32 {sR}, {sR}, {sT2}
        s_and_b32 {sM}, {sT1}, 15
        s_getreg_b32 {sXCC}, hwreg(HW_REG_XCC_ID)
        s_and_b32 {sXCC}, {sXCC}, 15
        s_mov_b32 {sL}, 0
        s_mov_b32 {sFAST}, 0
        s_mov_b32 {sERR}, 0
        s_mov_b64 {sCHK}, 0
        s_mov_b32 s66, -1
        s_mov_b32 s67, 0
        s_lshl_b32 {sT}, {sR}, 2
        s_lshr_b32 {sT0}, {sM}, 2
        s_add_u32 {sRT}, {sT}, {sT0}
        s_add_u32 {sT}, {sT}, {sW}
        s_and_b32 {sCT}, {sM}, 3
        s_lshl_b32 {sCT}, {sCT}, 2
        s_add_u32 {sCT}, {sCT}, {sW}
        v_lshrrev_b32 {vT0}, 2, {vLANE}
        v_mul_u32_u24 {vWD}, 3072, {vT0}
        v_and_b32 {vT0}, 3, {vLANE}
        v_lshl_add_u32 {vWD}, {vT0}, 4, {vWD}
        s_waitcnt lgkmcnt(0)
        """)
        self.stamp(0, False)
        if self.dbg:
            a("s_memtime s[96:97]\ns_waitcnt lgkmcnt(0)\nv_writelane_b32 v0, s96, 60")
        def mk(d, p, size):
            a(f"s_mov_b32 s{d}, s{p}")
            a(f"s_and_b32 s{d+1}, s{p+1}, 0xffff")
            a(f"s_mov_b32 s{d+2}, {size}")
            a(f"s_mov_b32 s{d+3}, 0x20000")
        mk(SRD_WS, 88, WS_SIZE if self.dbg else WS_USED)
        mk(SRD_WN, sPT + 2, 512 * 3072)
        mk(SRD_X, sPT + 0, 2048 * 1024)
        mk(SRD_WQA, sPT + 2, 512 * 3072)
        mk(SRD_WOA, sPT + 4, 512 * 1024)
        mk(SRD_WQB, sPT + 8, 512 * 3072)
        mk(SRD_WOB, sPT + 10, 512 * 1024)
        self.w_dma([1, 2, 0])
        self.stamp(5, False)
        a(f"s_lshl_b32 {sT0}, {sT}, 15")
        a(f"s_lshl_b32 {sT1}, {sM}, 11")
        a(f"s_add_u32 {sOBl}, {sT0}, {sT1}")
        a(f"s_add_u32 {sOBl}, {sOBl}, {OB(0)}")
        a(f"s_lshl_b32 {sT0}, {sT}, 16")
        a(f"s_lshl_b32 {sT1}, {sM}, 12")
        a(f"s_add_u32 {sKVl}, {sT0}, {sT1}")
        a(f"s_add_u32 {sKVl}, {sKVl}, {KV(0)}")
        a(f"""
        v_lshrrev_b32 {vT0}, 3, {vLANE}
        v_lshlrev_b32 v16, 10, {vT0}
        v_and_b32 {vT0}, 7, {vLANE}
        v_lshrrev_b32 {vT1}, 4, {vLANE}
        v_xor_b32 {vT0}, {vT0}, {vT1}
        v_lshl_add_u32 v16, {vT0}, 4, v16
        v_xor_b32 v17, 64, v16
        s_lshl_b32 {sU0}, {sT}, 15
        s_mul_i32 {sU2}, {sW}, 12288
        """)
        for p in range(3): self.x_piece_dma(p)
        self.stamp(4, False)
        a(f"s_mov_b32 s64, {sU0}")
        a(f"s_mov_b32 s65, {sU2}")
        self.producer_loads()
        a(f"s_mov_b32 s100, {sU0}")
        a(f"s_mov_b32 s101, {sU2}")
        a(f"s_mov_b32 {sU0}, s64")
        a(f"s_mov_b32 {sU2}, s65")
        a("v_mov_b32 v20, -1\nv_mov_b32 v21, -1\nv_mov_b32 v22, -1\nv_mov_b32 v23, -1")
        a(f"buffer_store_dwordx4 v[20:23], {vL16}, {srd(SRD_WS)}, {sOBl} offen sc1")
        a(f"buffer_store_dwordx4 v[20:23], {vL16}, {srd(SRD_WS)}, {sOBl} offen offset:1024 sc1")
        for l in (0,):
            a(f"s_add_u32 {sT0}, {sKVl}, {KV(l)-KV(0)}")
            for f in range(4):
                a(f"buffer_store_dwordx4 v[20:23], {vL16}, {srd(SRD_WS)}, {sT0} offen offset:{f*1024} sc1")
        mk(SRD_OUT, sPT + 12, 2048 * 1024)
        mk(SRD_DBG, sPT + 14, 256)
        a(f"s_lshl_b32 {sT0}, {sRT}, 12")
        a(f"s_lshl_b32 {sT1}, {sCT}, 8")
        a(f"s_add_u32 {sSTout}, {sT0}, {sT1}")
        a(f"s_add_u32 {sSTout}, {sSTout}, {ST(1)}")
        a(f"s_lshl_b32 {sT0}, {sT}, 12")
        a(f"s_add_u32 {sSTin}, {sT0}, {ST(0)}")
        a(f"s_lshl_b32 {sT0}, {sT}, 15")
        a(f"s_add_u32 {sXBin}, {sT0}, {(XB(1) - 0x200000) & 0xffffffff}")
        a(f"s_lshl_b32 {sT0}, {sRT}, 15")
        a(f"s_lshl_b32 {sT1}, {sCT}, 11")
        a(f"s_add_u32 {sXBout}, {sT0}, {sT1}")
        a(f"s_add_u32 {sXBout}, {sXBout}, {XB(1)}")
        a(f"s_lshl_b32 {sT1}, {sW}, 13")
        a(f"s_add_u32 {sOIN}, {sT0}, {sT1}")
        a(f"s_add_u32 {sOIN}, {sOIN}, {OB(0)}")
        a(f"s_mov_b32 {sCSF}, {L_CSF}")
        a(f"s_lshl_b32 {sWOB}, {sCT}, 15")
        a(f"s_add_u32 {sWOB}, {sWOB}, {WOF}")
        a(f"s_mul_i32 {sWQN}, {sM}, 98304")
        a(f"s_add_u32 {sWQN}, {sWQN}, {WQF + 16*98304}")
        a(f"s_lshl_b32 {sT0}, {sR}, 4")
        a(f"s_add_u32 {sT0}, {sT0}, {sM}")
        a(f"s_and_b32 {sT1}, {sT0}, 3")
        a(f"s_lshl_b32 {sT1}, {sT1}, 3")
        a(f"s_or_b32 {sT2}, {sXCC}, 0x80")
        a(f"s_lshl_b32 {sU1}, {sT2}, {sT1}")
        a(f"s_lshl_b32 s99, 0x40, {sT1}")
        a(f"s_and_b32 {sU3}, {sT0}, 0xfc")
        a(f"""
        v_bfe_u32 {vT0}, {vC}, 1, 3
        v_xor_b32 {vT0}, {vT0}, {vH}
        v_lshlrev_b32 {vT0}, 4, {vT0}
        v_lshl_add_u32 {vT0}, {vC}, 7, {vT0}
        v_add_u32 v18, {sU2}, {vT0}
        v_xor_b32 v19, 32, v18
        v_xor_b32 v28, 64, v18
        v_xor_b32 v29, 0x60, v18
        """)
        a(f"v_cmp_gt_u32 {sH0}, 16, {vC}")
        a(f"v_cmp_le_u32 {sH1}, 16, {vC}")
        a(f"s_mov_b64 {sL0EX}, 0")
        mk(SRD_WN, 88, WS_SIZE if self.dbg else WS_USED)
        a(f"s_mov_b64 {sWNEX}, 0")
        self.set_tr_addr(False)
        self.stamp(1, False)
        self.mask_tables()
        q = vSTAT
        a("v_mov_b32 v22, 0x3f803f80")
        for i in range(16): a(f"v_mov_b32 v{q+i}, 0")
        ra = ["v18", "v19", "v28", "v29"]
        for p in range(8):
            n = [29, 29, 29, 8, 12, 12, 4, 0][p]
            a(f"s_waitcnt vmcnt({n})")
            for k in range(4):
                a(f"ds_read_b128 {R(vXF + 4*(4*p+k))}, {ra[k]} offset:{(p%3)*4096}")
            a("s_waitcnt lgkmcnt(0)")
            if p == 3: self.producer_stores()
            if p + 3 < 8: self.x_piece_dma(p + 3)
            for j in range(16):
                r = vXF + 16 * p + j
                a(f"v_dot2_f32_bf16 v{q+2*(j%2)}, v{r}, v22, v{q+2*(j%2)}")
                a(f"v_dot2_f32_bf16 v{q+1+2*(j%2)}, v{r}, v{r}, v{q+1+2*(j%2)}")
        self.stamp(6, False)
        a("s_barrier")
        self.stamp(2, False)
        self.flag_set(sU1)
        self.colsum(0, tb=64)
        self.layer_start()
        a("s_barrier")
        self.stamp(3, False)

    def x_piece_dma(self, p):
        a = self.a
        for d in range(4):
            a(f"s_add_u32 m0, {sU2}, {(p%3)*4096 + d*1024}")
            a(f"s_add_u32 {sT2}, {sU0}, {d*8192 + p*128}")
            a(f"buffer_load_dwordx4 v{16 + d%2}, {srd(SRD_X)}, {sT2} offen lds")

    def producer_loads(self):
        a = self.a
        a(f"s_lshl_b32 {sT0}, s2, 2")
        a(f"s_add_u32 {sT0}, {sT0}, {sW}")
        a(f"s_and_b32 {sT1}, {sT0}, 31")
        a(f"s_bfe_u32 {sT2}, {sT0}, 0x40005")
        a(f"s_lshl_b32 {sT3}, {sT1}, 14")
        a(f"s_lshl_b32 {sT4}, {sT2}, 6")
        a(f"s_add_u32 {sT3}, {sT3}, {sT4}")
        a(f"v_lshlrev_b32 {vT1}, 1, {vC}")
        a(f"v_lshl_add_u32 {vT1}, {vH}, 12, {vT1}")
        lB, lD = self.lab("wob"), self.lab("wod")
        a(f"s_add_u32 {sT4}, {sT3}, 8192")
        a(f"s_cmp_ge_u32 {sT0}, 512")
        a(f"s_cbranch_scc1 {lB}")
        for S_, lab in ((SRD_WOA, None), (SRD_WOB, lB)):
            if lab: a.label(lab)
            for j in range(8):
                so = sT3 if j < 4 else sT4
                a(f"buffer_load_ushort v{32+j}, {vT1}, {srd(S_)}, {so} offen offset:{(j%4)*1024}")
            if not lab: a(f"s_branch {lD}")
        a.label(lD)
        a(f"s_lshl_b32 {sU0}, {sT0}, 10")
        a(f"s_add_u32 {sU0}, {sU0}, {WOF}")
        a(f"s_mul_i32 {sT3}, {sT1}, {16*3072}")
        a(f"s_lshl_b32 {sT4}, {sT2}, 6")
        a(f"s_add_u32 {sT3}, {sT3}, {sT4}")
        lB, lD = self.lab("wqb"), self.lab("wqd")
        a(f"s_cmp_ge_u32 {sT0}, 512")
        a(f"s_cbranch_scc1 {lB}")
        for S_, lab in ((SRD_WQA, None), (SRD_WQB, lB)):
            if lab: a.label(lab)
            for ct in range(3):
                a(f"buffer_load_dwordx4 {R(48+4*ct)}, {vWD}, {srd(S_)}, {sT3} offen offset:{ct*1024}")
            if not lab: a(f"s_branch {lD}")
        a.label(lD)
        a(f"s_lshr_b32 {sT3}, {sT0}, 5")
        a(f"s_mul_i32 {sT3}, {sT3}, 98304")
        a(f"s_lshl_b32 {sT4}, {sT1}, 10")
        a(f"s_add_u32 {sU2}, {sT3}, {sT4}")
        a(f"s_add_u32 {sU2}, {sU2}, {WQF}")
        a(f"v_lshlrev_b32 {vT0}, 10, {vC}")
        a(f"v_lshl_add_u32 {vT0}, {vH}, 3, {vT0}")
        a(f"s_lshl_b32 {sT0}, {sRT}, 15")
        a(f"s_lshl_b32 {sT1}, {sCT}, 6")
        a(f"s_add_u32 {sT0}, {sT0}, {sT1}")
        for q in range(4):
            a(f"buffer_load_dwordx2 {R(40+2*q,2)}, {vT0}, {srd(SRD_X)}, {sT0} offen offset:{q*16}")

    def producer_stores(self):
        a = self.a
        for j in range(4):
            a(f"v_lshl_or_b32 v{24+j}, v{32+2*j+1}, 16, v{32+2*j}")
        a(f"buffer_store_dwordx4 v[24:27], {vL16}, {srd(SRD_WS)}, s100 offen sc1")
        for ct in range(3):
            a(f"s_add_u32 {sT0}, s101, {ct*32768}")
            a(f"buffer_store_dwordx4 {R(48+4*ct)}, {vL16}, {srd(SRD_WS)}, {sT0} offen sc1")
        a(f"s_lshl_b32 {sT0}, {sW}, 11")
        a(f"v_add_u32 {vT0}, {sT0}, {vL16}")
        a(f"ds_write_b128 {vT0}, v[40:43] offset:{L_XR}")
        a(f"ds_write_b128 {vT0}, v[44:47] offset:{L_XR+1024}")
        a("s_nop 1")

    def flag_load(self, dst):
        a = self.a
        a(f"v_lshlrev_b32 {vT0}, 2, {vLANE}")
        a(f"buffer_load_dword {dst}, {vT0}, {srd(SRD_DBG)}, 0 offen sc1")

    def flag_check(self, x, y, bit, setfast, layer=0):
        a, t = self.a, self.tail
        skip, slow, loop, back = self.lab("fsk"), self.lab("fsl"), self.lab("flp"), self.lab("fbk")
        m = bit * 0x01010101
        a(f"s_cmp_lg_u32 {sL}, {layer}")
        a(f"s_cbranch_scc1 {skip}")
        a(f"v_and_b32 {y}, {m:#x}, {x}")
        a(f"v_cmp_ne_u32 vcc, {m:#x}, {y}")
        a(f"s_cbranch_vccnz {slow}")
        a.label(back)
        t.label(slow)
        t(f"s_mov_b32 {sTRY}, 0")
        t(f"v_lshlrev_b32 {vT0}, 2, {vLANE}")
        t.label(loop)
        t("s_sleep 8")
        t(f"buffer_load_dword {x}, {vT0}, {srd(SRD_DBG)}, 0 offen sc1")
        t("s_waitcnt vmcnt(0)")
        t(f"v_and_b32 {y}, {m:#x}, {x}")
        t(f"v_cmp_ne_u32 vcc, {m:#x}, {y}")
        t(f"s_cbranch_vccz {back}")
        t(f"s_add_u32 {sTRY}, {sTRY}, 1")
        t(f"s_cmp_lt_u32 {sTRY}, {SPIN_LIMIT}")
        t(f"s_cbranch_scc1 {loop}")
        t(f"s_mov_b32 {sERR}, 100")
        t(f"s_branch {back}")
        if setfast:
            a(f"s_mul_i32 {sT0}, {sXCC}, 0x01010101")
            a(f"v_and_b32 {y}, 0x0f0f0f0f, {x}")
            a(f"v_cmp_eq_u32 vcc, {sT0}, {y}")
            a(f"s_lshl_b32 {sT1}, {sR}, 2")
            a(f"s_lshr_b64 {sMSK}, vcc, {sT1}")
            a(f"s_and_b32 {sT0}, s68, 15")
            a(f"s_cmp_eq_u32 {sT0}, 15")
            a(f"s_cselect_b32 {sFAST}, 1, 0")
            if os.environ.get("NOFAST"): a(f"s_mov_b32 {sFAST}, 0")
            a(f"s_cmp_eq_u32 {sERR}, 0")
            a(f"s_cselect_b64 {sCHK}, -1, 0")
        a.label(skip)

    def flag_wait(self, bit, setfast):
        a = self.a
        loop, done = self.lab("hw"), self.lab("hwd")
        m = bit * 0x01010101
        a(f"s_mov_b32 {sTRY}, 0")
        a(f"v_lshlrev_b32 {vT0}, 2, {vLANE}")
        a.label(loop)
        a(f"buffer_load_dword v20, {vT0}, {srd(SRD_DBG)}, 0 offen sc1")
        a("s_waitcnt vmcnt(0)")
        a(f"v_and_b32 v21, {m:#x}, v20")
        a(f"v_cmp_ne_u32 vcc, {m:#x}, v21")
        a(f"s_cbranch_vccz {done}")
        a("s_sleep 2")
        a(f"s_add_u32 {sTRY}, {sTRY}, 1")
        a(f"s_cmp_lt_u32 {sTRY}, {SPIN_LIMIT}")
        a(f"s_cbranch_scc1 {loop}")
        a(f"s_mov_b32 {sERR}, 100")
        a.label(done)
        if setfast:
            a(f"s_mul_i32 {sT0}, {sXCC}, 0x01010101")
            a(f"v_and_b32 v21, 0x0f0f0f0f, v20")
            a(f"v_cmp_eq_u32 vcc, {sT0}, v21")
            a(f"s_lshl_b32 {sT1}, {sR}, 2")
            a(f"s_lshr_b64 {sMSK}, vcc, {sT1}")
            a(f"s_and_b32 {sT0}, s68, 15")
            a(f"s_cmp_eq_u32 {sT0}, 15")
            a(f"s_cselect_b32 {sFAST}, 1, 0")
            if os.environ.get("NOFAST"): a(f"s_mov_b32 {sFAST}, 0")
            a(f"s_cmp_eq_u32 {sERR}, 0")
            a(f"s_cselect_b64 {sCHK}, -1, 0")

    def x_loads(self, t, g):
        t(f"s_add_u32 {sT0}, {sXBin}, {g*8192}")
        t(f"s_add_u32 {sT1}, {sXBin}, {g*8192+4096}")
        for i in range(8):
            s = 8 * g + i
            t(f"buffer_load_dwordx4 {R(vXF+4*s)}, {vL16}, {srd(SRD_WS)}, {sT0 if i < 4 else sT1} offen offset:{(i%4)*1024} sc1")

    def st_loads(self, t):
        t(f"v_lshlrev_b32 {vT0}, 3, {vC}")
        t(f"v_lshl_add_u32 {vT0}, {vH}, 11, {vT0}")
        for i in range(8):
            t(f"buffer_load_dwordx2 {R(vSTAT+2*i,2)}, {vT0}, {srd(SRD_WS)}, {sSTin} offen offset:{i*256} sc1")

    def layer_start(self):
        a = self.a
        a("v_mov_b32 v20, -1\nv_mov_b32 v21, -1\nv_mov_b32 v22, -1\nv_mov_b32 v23, -1")
        lk = self.lab("clrk")
        a(f"s_bitcmp1_b32 {sL}, 0")
        a(f"s_cbranch_scc1 {lk}")
        a(f"s_cmp_lg_u32 {sW}, 3")
        a(f"s_cbranch_scc1 {lk}")
        a(f"s_add_u32 {sT0}, {sKVl}, 0x400000")
        for f in range(4):
            a(f"buffer_store_dwordx4 v[20:23], {vL16}, {srd(SRD_WS)}, {sT0} offen offset:{f*1024} sc1")
        a.label(lk)

    def group_clears(self):
        a = self.a
        l3 = self.lab("clr3")
        a(f"s_cmp_eq_u32 {sL}, 3")
        a(f"s_cbranch_scc1 {l3}")
        a("v_mov_b32 v20, -1\nv_mov_b32 v21, -1\nv_mov_b32 v22, -1\nv_mov_b32 v23, -1")
        a(f"s_add_u32 {sT0}, {sOBl}, 0x200000")
        self.store_msg([("v[20:23]", sXBout, 0), ("v[20:23]", sXBout, 1024), ("v[20:23]", sT0, 0), ("v[20:23]", sT0, 1024)], vL16)
        a(f"v_lshlrev_b32 {vT0}, 3, {vC}")
        self.store_msg([("v[20:21]", sSTout, 0)], vT0, width="dwordx2")
        a.label(l3)

    def kv2_clear(self, half):
        L = []
        if half == 0: L += ["v_mov_b32 v28, -1", "v_mov_b32 v29, -1", "v_mov_b32 v30, -1", "v_mov_b32 v31, -1", f"s_add_u32 {sT5}, {sKVl}, {KV(2)-KV(0)}"]
        L += [f"s_mov_b64 exec, {sL0EX}"]
        for f in (2 * half, 2 * half + 1):
            L += [f"buffer_store_dwordx4 v[28:31], {vL16}, {srd(SRD_WS)}, {sT5} offen offset:{f*1024} sc1"]
        L += ["s_mov_b64 exec, -1"]
        return L

    def nb_loads(self, t):
        for k, s in enumerate((sNB0, sNB1)):
            for f in range(4):
                t(f"buffer_load_dwordx4 {R(vSTG+16*k+4*f)}, {vL16}, {srd(SRD_WS)}, {s} offen offset:{f*1024} sc1")

    def stats_ops(self):
        q = vSTAT
        L = []
        for i in range(1, 8):
            L.append(f"v_add_f32 v{q}, v{q}, v{q+2*i}")
            L.append(f"v_add_f32 v{q+1}, v{q+1}, v{q+2*i+1}")
        L += [x.strip() for x in f"""
        v_mov_b32 v{q+2}, v{q}
        v_mov_b32 v{q+3}, v{q+1}
        v_mov_b32 v18, 0
        v_mov_b32 v19, 0
        v_permlane32_swap_b32 v{q}, v{q+2}
        v_permlane32_swap_b32 v{q+1}, v{q+3}
        s_lshl_b32 {sT0}, {sW}, 7
        v_lshlrev_b32 {vT0}, 2, {vC}
        v_add_f32 v{q}, v{q}, v{q+2}
        v_add_f32 v{q+1}, v{q+1}, v{q+3}
        v_mul_f32 v{q}, {f32hex(1/512)}, v{q}
        v_mul_f32 v{q+1}, {f32hex(1/512)}, v{q+1}
        v_fma_f32 v{q+1}, -v{q}, v{q}, v{q+1}
        v_max_f32 v{q+1}, 0, v{q+1}
        v_cvt_pk_bf16_f32 v{q+2}, v{q}, v{q+1}
        v_and_b32 v{q+3}, 0xffff0000, v{q+2}
        v_add_f32 v{q+3}, {f32hex(1e-5)}, v{q+3}
        v_cvt_pk_bf16_f32 v{q+3}, v{q+3}, v{q+3}
        v_and_b32 v{q+3}, 0xffff0000, v{q+3}
        v_sqrt_f32 v{q+3}, v{q+3}
        v_and_b32 v{q+2}, 0xffff, v{q+2}
        v_xor_b32 v{q+2}, 0x8000, v{q+2}
        v_cvt_pk_bf16_f32 v{q+3}, v{q+3}, v{q+3}
        v_and_b32 v{q+3}, 0xffff0000, v{q+3}
        v_rcp_f32 {vRSTD}, v{q+3}
        v_cndmask_b32_e64 v17, 0, v{q+2}, {sLO32}
        v_lshl_or_b32 v16, v17, 16, v17
        v_add_u32 {vT0}, {sT0}, {vT0}
        v_mul_f32 {vRSTDC}, {f32hex(QSCALE)}, {vRSTD}
        v_lshlrev_b32 v21, 4, {vH}
        v_add_u32 v21, {sT0}, v21
        """.strip().split("\n")]
        return L

    def x_load1(self, s):
        so = ["s78", "s79", "s80", "s81", "s82", "s83", "s64", "s65"][s // 4]
        return f"buffer_load_dwordx4 {R(vXF+4*s)}, {vL16}, {srd(SRD_WS)}, {so} offen offset:{(s%4)*1024} sc1"

    def pass1(self, first):
        a = self.a
        UP = 10
        def rd1(s):
            b = WF[s % 3]
            if s < 32:
                L = [f"ds_read_b64_tr_b16 {R(b,2)}, v{vTR+2} offset:{s*1024}",
                     f"ds_read_b64_tr_b16 {R(b+2,2)}, v{vTR+3} offset:{s*1024}",
                     f"ds_read_b64_tr_b16 {R(b+4,2)}, v{vTR+4} offset:{s*1024}",
                     f"ds_read_b64_tr_b16 {R(b+6,2)}, v{vTR+5} offset:{s*1024}"]
                if s >= 8:
                    L += [f"ds_read_b64_tr_b16 {R(b+8,2)}, v{vTR} offset:{s*1024}",
                          f"ds_read_b64_tr_b16 {R(b+10,2)}, v{vTR+1} offset:{s*1024}"]
                return L
            if s == 32:
                return [f"ds_read_b64 {R(b,2)}, {vCSA} offset:256", f"ds_read_b64 {R(b+4,2)}, {vCSA} offset:512"]
            return []
        issued = []
        def vm(tag, ins): a(ins); issued.append(tag)
        def wait(tag):
            n = len(issued) - 1 - max(i for i, t in enumerate(issued) if t == tag)
            a(f"s_waitcnt vmcnt({n})")
        if not first:
            for k in range(UP): vm(k, self.x_load1(k))
            a(f"v_lshlrev_b32 v22, 3, {vC}")
            a(f"v_lshl_add_u32 v22, {vH}, 11, v22")
            a("v_mov_b32 v60, 0")
        a(f"v_lshlrev_b32 {vCSA}, 3, {vC}")
        a(f"v_add_u32 {vCSA}, {sCSF}, {vCSA}")
        PF = 2
        for s in range(PF):
            for x in rd1(s): a(x)
        st = self.stats_ops(); si = 0
        tch = self.wn_touch("v23")
        for s in range(32):
            if not first:
                wait(s)
                if s == 26:
                    wait("st")
                    for i in range(0, 8, 2): a(f"v_max3_u32 v60, v60, v{vSTAT+2*i}, v{vSTAT+2*i+2}")
            b = WF[s % 3]
            nxt = rd1(s + PF)
            later = sum(len(rd1(k)) for k in range(s + 1, s + PF))
            a(f"s_waitcnt lgkmcnt({later})")
            c0 = "0" if s == 0 else None
            def fill():
                nonlocal si
                if s >= 26:
                    for x in st[si:si + 3]: a(x)
                    si += 3
            a(f"{MFMA} {R(ACC_K,16)}, {R(b)}, {R(vXF+4*s)}, {c0 or R(ACC_K,16)}")
            for x in nxt[:2]: a(x)
            fill()
            if not first:
                if s + UP < 32: vm(s + UP, self.x_load1(s + UP))
                if s % 2 == 1: a(f"v_max3_u32 v60, v60, v{vXF+4*s}, v{vXF+4*s-4}")
            a(f"{MFMA} {R(ACC_V,16)}, {R(vXF+4*s)}, {R(b+4)}, {c0 or R(ACC_V,16)}")
            for x in nxt[2:4]: a(x)
            fill()
            if not first:
                if 10 <= s < 18:
                    vm("st", f"buffer_load_dwordx2 {R(vSTAT+2*(s-10),2)}, v22, {srd(SRD_WS)}, {sSTin} offen offset:{(s-10)*256} sc1")
            if s == 23:
                self.flag_load("v20"); issued.append("f")
            if s >= 8:
                a(f"{MFMA} {R(ACC_Q,16)}, {R(b+8)}, {R(vXF+4*s)}, {'0' if s == 8 else R(ACC_Q,16)}")
            for x in nxt[4:]: a(x)
            fill()
        assert si >= len(st)

    def gemm(self):
        a, t = self.a, self.tail
        self.stamp(0)
        l0, ljoin, lredo, lrl = self.lab("g_l0"), self.lab("g_join"), self.lab("g_redo"), self.lab("g_rl")
        a(f"s_cmp_eq_u32 {sL}, 0")
        a(f"s_cbranch_scc1 {l0}")
        self.layer_start()
        for k, so in enumerate(["s78", "s79", "s80", "s81", "s82", "s83", "s64", "s65"]):
            a(f"s_add_u32 {so}, {sXBin}, {k*4096}")
        a(f"v_and_b32 {vT0}, 15, {vLANE}")
        a(f"v_lshlrev_b32 {vT0}, 11, {vT0}")
        a(f"v_add_u32 {vT0}, 2032, {vT0}")
        self.probe(vT0, sXBin, "v20", "v21", 1)
        self.stamp(1)
        self.pass1(False)
        a("v_cmp_eq_u32 vcc, -1, v60")
        a(f"s_and_b64 vcc, vcc, {sCHK}")
        a(f"s_cbranch_vccz {ljoin}")
        a(f"s_branch {lredo}")
        t.label(lredo)
        t(f"s_mov_b32 {sTRY}, 0")
        t("s_waitcnt vmcnt(0) lgkmcnt(0)")
        t("s_nop 7\ns_nop 7")
        t.label(lrl)
        if self.dbg: t("s_add_u32 s84, s84, 1")
        for g in range(4): self.x_loads(t, g)
        self.st_loads(t)
        t("s_waitcnt vmcnt(0)")
        self.maxtree(t, [vXF + 4 * k for k in range(32)] + [vSTAT + 2 * i for i in range(8)], vT0)
        t(f"v_cmp_eq_u32 vcc, -1, {vT0}")
        t(f"s_cbranch_vccz {l0}")
        t(f"s_add_u32 {sTRY}, {sTRY}, 1")
        t(f"s_cmp_lt_u32 {sTRY}, {SPIN_LIMIT}")
        t(f"s_cbranch_scc1 {lrl}")
        t(f"s_mov_b64 {sCHK}, 0")
        t(f"s_mov_b32 {sERR}, 2")
        t(f"s_branch {l0}")
        a.label(l0)
        self.stamp(1)
        self.pass1(True)
        a.label(ljoin)
        self.stamp(2)
        a(f"ds_write_b32 {vT0}, {vRSTD} offset:{L_RS}")
        b = WF[32 % 3]
        a("s_waitcnt lgkmcnt(1)")
        a(f"{MFMA} {R(ACC_K,16)}, {R(b)}, v[16:19], {R(ACC_K,16)}")
        a(f"{MFMA} {R(ACC_V,16)}, v[16:19], {R(b+4)}, {R(ACC_V,16)}")
        for qq in range(4):
            a(f"ds_read_b128 {R(vRS+4*qq)}, v21 offset:{L_RS + qq*32}")
        order = list(range(8)) + [32]
        W2 = [24, 28, 32]
        def rd2(i):
            if i >= len(order): return []
            s = order[i]; b = W2[i % 3]
            if s == 32: return [f"ds_read_b64 {R(b,2)}, {vCSA} offset:0"]
            return [f"ds_read_b64_tr_b16 {R(b,2)}, v{vTR} offset:{s*1024}",
                    f"ds_read_b64_tr_b16 {R(b+2,2)}, v{vTR+1} offset:{s*1024}"]
        for i in range(2):
            for x in rd2(i): a(x)
        lfs = self.lab("nofl")
        a("s_waitcnt vmcnt(0)")
        a(f"s_bitcmp1_b32 {sL}, 0")
        a(f"s_cbranch_scc1 {lfs}")
        self.flag_check("v20", "v21", 0x80, True)
        self.flag_check("v20", "v21", 0x20, False, layer=2)
        a.label(lfs)
        self.stamp(3)
        epi = []
        for r in range(16): epi.append(f"v_mul_f32 v{ACC_K+r}, {vRSTD}, v{ACC_K+r}")
        for j in range(8): epi.append(f"v_cvt_pk_bf16_f32 v{vOWNK+j}, v{ACC_K+2*j}, v{ACC_K+2*j+1}")
        for r in range(16): epi.append(f"v_mul_f32 v{ACC_V+r}, v{vRS+r}, v{ACC_V+r}")
        for j in range(8): epi.append(f"v_cvt_pk_bf16_f32 v{vOWNV+j}, v{ACC_V+2*j}, v{ACC_V+2*j+1}")
        for f in (vOWNK, vOWNK + 4, vOWNV, vOWNV + 4): epi.append(f"v_min_u32 v{f}, 0xfffffffe, v{f}")
        ones = [f"v_mov_b32 v{sl+k}, 0x3f803f80" for sl in vSL for k in range(8, 24)]
        ei = 0
        for i, s in enumerate(order):
            b = W2[i % 3]
            later = sum(len(rd2(k)) for k in range(i + 1, i + 2))
            a(f"s_waitcnt lgkmcnt({later})")
            bop = "v[16:19]" if s == 32 else R(vXF + 4 * s)
            a(f"{MFMA} {R(ACC_Q,16)}, {R(b)}, {bop}, {R(ACC_Q,16)}")
            for x in rd2(i + 2): a(x)
            if i == 0:
                for x in ones[:6]: a(x)
            else:
                for x in epi[ei:ei + 7]: a(x)
                ei += 7
        assert ei >= len(epi)
        self.kv_publish()
        self.group_clears()
        self.nb_issue()
        a(f"s_bitcmp1_b32 {sL}, 0")
        a(f"s_cselect_b32 {sT2}, 512, 0")
        a(f"s_cselect_b32 {sT3}, 3, 4")
        a(f"s_cmp_eq_u32 {sT}, 0")
        a(f"s_cselect_b32 {sT3}, 5, {sT3}")
        a(f"s_lshl_b32 {sT3}, {sT3}, 8")
        for x in self.mask_load(vMASK, sT2, vT0): a(x)
        for x in self.mask_load(vCZ, sT3, vT0): a(x)
        for x in ones[6:]: a(x)
        a(f"s_lshl_b32 {sT0}, {sW}, 12")
        a(f"v_add_u32 v24, {sT0}, {vL16}")
        for x in self.rd_tile(0, k=False): a(x)
        for r in range(16): a(f"v_mul_f32 v{ACC_Q+r}, {vRSTDC}, v{ACC_Q+r}")
        for j in range(8): a(f"v_cvt_pk_bf16_f32 v{vQ+j}, v{ACC_Q+2*j}, v{ACC_Q+2*j+1}")
        a("s_waitcnt lgkmcnt(4)")
        self.stamp(4)

    def kv_publish(self):
        a = self.a
        OWN = [vOWNK, vOWNK + 4, vOWNV, vOWNV + 4]
        lsk = self.lab("kvsk")
        ldo = self.lab("kvdo")
        a(f"s_bitcmp0_b32 {sL}, 0")
        a(f"s_cbranch_scc1 {ldo}")
        a(f"s_cmp_lg_u32 {sW}, 3")
        a(f"s_cbranch_scc1 {lsk}")
        a.label(ldo)
        for f in range(4):
            a(f"buffer_store_dwordx4 {R(OWN[f])}, {vL16}, {srd(SRD_WS)}, {sKVl} offen offset:{f*1024} sc1")
        a.label(lsk)
        a(f"s_lshl_b32 {sT0}, {sW}, 12")
        a(f"v_add_u32 {vT0}, {sT0}, {vL16}")
        for f in range(4):
            a(f"ds_write_b128 {vT0}, {R(OWN[f])} offset:{L_KV + 32768 + f*1024}")

    def nb_issue(self):
        a = self.a
        a(f"s_sub_u32 {sT0}, {sW}, 8")
        a(f"s_lshl_b32 {sT1}, {sT0}, 16")
        a(f"s_add_u32 {sNB0}, {sKVl}, {sT1}")
        a(f"s_add_u32 {sNB1}, {sNB0}, 65536")
        a(f"s_add_i32 {sT0}, {sT0}, {sT}")
        a(f"s_cmp_lt_i32 {sT0}, 0")
        a(f"s_cselect_b32 {sNB0}, 0x7f000000, {sNB0}")
        a(f"s_cselect_b32 {sNB1}, 0x7f000000, {sNB1}")
        lA = self.lab("nbA")
        a(f"s_bitcmp0_b32 {sL}, 0")
        a(f"s_cbranch_scc1 {lA}")
        a(f"s_mov_b32 {sNB0}, 0x7f000000")
        a(f"s_cmp_lg_u32 {sW}, 3")
        a(f"s_cselect_b32 {sNB1}, 0x7f000000, {sNB1}")
        self.nb_loads(a)
        a.label(lA)

    def flag_wait_safe(self):
        a = self.a
        loop, done = self.lab("hw"), self.lab("hwd")
        m = 0x80808080
        x, y = f"v{vSTG}", f"v{vSTG+1}"
        a(f"s_mov_b32 {sTRY}, 0")
        a(f"v_lshlrev_b32 {vT0}, 2, {vLANE}")
        a.label(loop)
        a(f"buffer_load_dword {x}, {vT0}, {srd(SRD_DBG)}, 0 offen sc1")
        a("s_waitcnt vmcnt(0)")
        a(f"v_and_b32 {y}, {m:#x}, {x}")
        a(f"v_cmp_ne_u32 vcc, {m:#x}, {y}")
        a(f"s_cbranch_vccz {done}")
        a("s_sleep 2")
        a(f"s_add_u32 {sTRY}, {sTRY}, 1")
        a(f"s_cmp_lt_u32 {sTRY}, {SPIN_LIMIT}")
        a(f"s_cbranch_scc1 {loop}")
        a(f"s_mov_b32 {sERR}, 100")
        a.label(done)
        a(f"s_mul_i32 {sT0}, {sXCC}, 0x01010101")
        a(f"v_and_b32 {y}, 0x0f0f0f0f, {x}")
        a(f"v_cmp_eq_u32 vcc, {sT0}, {y}")
        a(f"s_lshl_b32 {sT1}, {sR}, 2")
        a(f"s_lshr_b64 {sMSK}, vcc, {sT1}")
        a(f"s_and_b32 {sT0}, s68, 15")
        a(f"s_cmp_eq_u32 {sT0}, 15")
        a(f"s_cselect_b32 {sFAST}, 1, 0")
        if os.environ.get("NOFAST"): a(f"s_mov_b32 {sFAST}, 0")
        a(f"s_cmp_eq_u32 {sERR}, 0")
        a(f"s_cselect_b64 {sCHK}, -1, 0")

    def rd_tile(self, i, k=True):
        sl = vSL[i % 3]; o = L_KV + (8 - i) * 4096
        r = []
        if k:
            r += [f"ds_read_b128 {R(sl)}, v24 offset:{o}", f"ds_read_b128 {R(sl+4)}, v24 offset:{o+1024}"]
        r += [f"s_mov_b64 exec, {sH0}",
              f"ds_read_b128 {R(sl+8)}, v24 offset:{o+2048}", f"ds_read_b128 {R(sl+12)}, v24 offset:{o+3072}",
              f"s_mov_b64 exec, {sH1}",
              f"ds_read_b128 {R(sl+16)}, v24 offset:{o+2048}", f"ds_read_b128 {R(sl+20)}, v24 offset:{o+3072}",
              "s_mov_b64 exec, -1"]
        return r
    def Sbuf(self, i, h): return (vSA if i % 2 == 0 else vSB)[h]
    def S_mfma(self, i, h, cm):
        ksrc = vSL[i % 3] + 4 * h
        return f"{MFMA} {R(self.Sbuf(i,h),16)}, {R(ksrc)}, {R(vQ+4*h)}, {R(cm,16)}"
    def PV(self, i, h, f):
        S = self.Sbuf(i, h); sl = vSL[i % 3]
        c = "0" if (i == 0 and f == 0) else R(vO[h], 16)
        return f"{MFMA} {R(vO[h],16)}, {R(sl+8+8*h+4*f)}, {R(S+4*f)}, {c}"
    def expcvt(self, i, h):
        S = self.Sbuf(i, h)
        v = [f"v_exp_f32 v{S+r}, v{S+r}" for r in range(16)]
        v += [f"v_cvt_pk_bf16_f32 v{S+j}, v{S+2*j}, v{S+2*j+1}" for j in range(8)]
        return v

    def attention(self, n, cmask, extra_at=None, bg=None, per=1):
        a = self.a
        a("s_nop 0")
        a(self.S_mfma(0, 0, cmask(0)))
        a(self.S_mfma(0, 1, cmask(0)))
        def take():
            L = []
            for _ in range(per):
                if bg: L += bg.pop(0)
            return L
        for t in range(n + 1):
            ex = []
            if t == 0:
                ex += [(0, ["s_nop 7", "s_nop 3"])]
            if t >= 1:
                ex += [(1, [self.PV(t - 1, 1, 0)]), (7, [self.PV(t - 1, 1, 1)])]
                if t + 1 <= n:
                    pre = self.invalid_fix(t + 1) if self.fix_invalid else []
                    ex += [(14, pre + ["s_waitcnt lgkmcnt(0)", self.S_mfma(t + 1, 0, cmask(t + 1))])]
                ex += [(4, take()), (18, take())]
            for x in interleave(self.expcvt(t, 0), ex): a(x)
            if t == 0:
                if n == 8:
                    a(f"v_and_b32 {vT0}, 1, {vLANE}")
                    a(f"v_lshlrev_b32 {vT0}, 16, {vT0}")
                    a(f"v_add_u32 {vT0}, 4080, {vT0}")
                    self.probe(vT0, sNB0, "v25", "v26", 11)
                    self.nb_loads(a)
                a("s_waitcnt vmcnt(0)")
                self.check_or_poll([vSTG + 4 * f for f in range(8)], lambda t_: self.nb_loads(t_), vT0, 10)
                a(f"s_lshl_b32 {sT0}, {sW}, 13")
                a(f"v_add_u32 {vT0}, {sT0}, {vL16}")
                for f in range(8):
                    a(f"ds_write_b128 {vT0}, {R(vSTG+4*f)} offset:{L_KV + f*1024}")
                a("s_waitcnt lgkmcnt(0)")
                a("s_barrier")
                self.stamp(5)
                for x in self.rd_tile(1): a(x)
            if extra_at and t in extra_at: extra_at[t]()
            ex = []
            if t == 0:
                ex += [(1, [self.PV(0, 0, 0)]), (6, [self.PV(0, 0, 1)])]
                pre = self.invalid_fix(1) if self.fix_invalid else []
                ex += [(11, pre + ["s_waitcnt lgkmcnt(0)", self.S_mfma(1, 0, cmask(1))])]
                if 2 <= n: ex += [(12, self.rd_tile(2))]
                ex += [(17, [self.S_mfma(1, 1, cmask(1))])]
                ex += [(3, take()), (20, take())]
            else:
                if t + 2 <= n: ex += [(0, self.rd_tile(t + 2))]
                ex += [(2, [self.PV(t, 0, 0)]), (8, [self.PV(t, 0, 1)])]
                if t + 1 <= n: ex += [(14, [self.S_mfma(t + 1, 1, cmask(t + 1))])]
                ex += [(5, take()), (18, take())]
            for x in interleave(self.expcvt(t, 1), ex): a(x)
        a("s_nop 1")
        a(self.PV(n, 1, 0)); a(self.PV(n, 1, 1))
        while bg:
            for x in bg.pop(0): a(x)

    def invalid_fix(self, i):
        t = self.tail
        lf, lb = self.lab("fix"), self.lab("fixb")
        t.label(lf)
        t("s_nop 7\ns_nop 7")
        t(f"v_mov_b32 {vT0}, {NEG_INF:#x}")
        for r in range(16): t(f"v_mov_b32 v{vCZ+r}, {vT0}")
        t("s_nop 1")
        t(f"s_branch {lb}")
        return [f"s_cmp_eq_u32 {sT}, {i-1}", f"s_cbranch_scc1 {lf}", f"{lb}:"]

    def attn_finish(self):
        a = self.a
        self.stamp(6)
        a("s_nop 7\ns_nop 3")
        a(f"v_rcp_f32 v20, v{vO[0]+8}")
        a(f"v_rcp_f32 v21, v{vO[1]}")
        a("s_nop 0")
        for r in range(8): a(f"v_mul_f32 v{vO[0]+r}, v20, v{vO[0]+r}")
        for r in range(8): a(f"v_mul_f32 v{vO[1]+8+r}, v21, v{vO[1]+8+r}")
        d = vSA[0]
        for j in range(4): a(f"v_cvt_pk_bf16_f32 v{d+j}, v{vO[0]+2*j}, v{vO[0]+2*j+1}")
        for j in range(4): a(f"v_cvt_pk_bf16_f32 v{d+4+j}, v{vO[1]+8+2*j}, v{vO[1]+8+2*j+1}")
        a(f"v_min_u32 v{d}, 0xfffffffe, v{d}")
        a(f"v_min_u32 v{d+4}, 0xfffffffe, v{d+4}")
        self.store_msg([(R(d), sOBl, 0), (R(d + 4), sOBl, 1024)], vL16)
        self.stamp(7)

    def attn_A(self):
        a = self.a
        self.fix_invalid = True
        def first_mask():
            a(f"s_cmp_ge_u32 {sT}, 8")
            a(f"s_cselect_b32 {sT2}, 1, 5")
            a(f"s_lshl_b32 {sT2}, {sT2}, 8")
            for x in self.mask_load(vMASK, sT2, vT0): a(x)
        bg = self.wn_groups() + self.l0_groups()
        self.attention(8, lambda i: vMASK if i in (0, 8) else vCZ, {3: first_mask}, bg)
        self.attn_finish()

    def attn_B(self):
        self.fix_invalid = False
        self.attention(1, lambda i: vMASK if i == 0 else vCZ, None, self.wn_groups(), 1)
        self.attn_finish()

    def l0_groups(self):
        gs = []
        for mat in range(2):
            for g in range(4):
                for hf in range(2):
                    l = self.lab("l0g")
                    L = [f"s_cbranch_scc1 {l}"]
                    L = [f"s_cmp_lg_u32 {sL}, 0"] + L
                    L += [f"s_add_u32 {sT3}, {sW}, {g}", f"s_and_b32 {sT3}, {sT3}, 3", f"s_lshl_b32 {sT3}, {sT3}, 13",
                          f"s_add_u32 {sT3}, {sT3}, {sWOB}", f"s_add_u32 {sT3}, {sT3}, {mat*0x80000 + hf*4096}"]
                    for k in range(4):
                        L += [f"buffer_load_dwordx4 {AR(mat*128 + (g*8+hf*4+k)*4)}, {vL16}, {srd(SRD_WS)}, {sT3} offen offset:{k*1024}"]
                    L += [f"{l}:"]
                    gs.append(L)
        l = self.lab("l0g")
        L = [f"s_cmp_lg_u32 {sL}, 0", f"s_cbranch_scc1 {l}", "v_mov_b32 v28, -1", "v_mov_b32 v29, -1", "v_mov_b32 v30, -1", "v_mov_b32 v31, -1", f"s_add_u32 {sT3}, {sKVl}, {KV(2)-KV(0)}"]
        for f in range(4):
            L += [f"buffer_store_dwordx4 v[28:31], {vL16}, {srd(SRD_WS)}, {sT3} offen offset:{f*1024} sc1"]
        L += [f"{l}:"]
        gs.append(L)
        return gs

    def wn_groups(self):
        gs = []
        for n in range(6):
            L = []
            if n == 0: L += [f"s_mul_i32 {sT4}, {sW}, 24576", f"s_add_u32 {sT5}, {sT4}, {sWQN}"]
            L += [f"s_add_u32 m0, {sT4}, {L_W + n*4096}", f"s_add_u32 {sT3}, {sT5}, {n*4096}"]
            for k in range(4):
                L += [f"buffer_load_dwordx4 {vL16}, {srd(SRD_WN)}, {sT3} offen offset:{k*1024} lds"]
            gs.append(L)
        return gs

    def wn_touch(self, dst):
        return [f"s_and_b32 {sT0}, {sR}, 1", f"s_lshl_b32 {sT0}, {sT0}, 2", f"s_add_u32 {sT0}, {sT0}, {sW}",
                f"s_mul_i32 {sT0}, {sT0}, 12288", f"s_add_u32 {sT0}, {sT0}, {sWQN}", f"s_add_u32 {sT1}, {sT0}, 8192",
                f"v_lshlrev_b32 {vT0}, 7, {vLANE}",
                f"buffer_load_dword {dst}, {vT0}, {srd(SRD_WN)}, {sT0} offen",
                f"buffer_load_dword {dst}, {vT0}, {srd(SRD_WN)}, {sT1} offen"]

    def o_loads(self, t):
        t(f"s_add_u32 {sT1}, {sOIN}, 4096")
        for i in range(8):
            t(f"buffer_load_dwordx4 {R(vXF+4*i)}, {vL16}, {srd(SRD_WS)}, {sOIN if i < 4 else sT1} offen offset:{(i%4)*1024} sc1")

    def outproj(self):
        a = self.a
        ACC = 64
        self.stamp(8)
        a(f"s_lshl_b32 {sT0}, {sW}, 11")
        a(f"v_add_u32 {vT0}, {sT0}, {vL16}")
        a(f"ds_read_b128 v[96:99], {vT0} offset:{L_XR}")
        a(f"ds_read_b128 v[100:103], {vT0} offset:{L_XR+1024}")
        a(f"s_lshl_b32 {sT0}, {sW}, 13")
        a(f"v_add_u32 v104, {sT0}, {vL16}")
        for g in (1, 2, 3):
            a(f"s_add_u32 {sT0}, {sW}, {g}")
            a(f"s_and_b32 {sT0}, {sT0}, 3")
            a(f"s_lshl_b32 {sT0}, {sT0}, 13")
            a(f"v_add_u32 v{104+g}, {sT0}, {vL16}")
        a("s_waitcnt lgkmcnt(0)")
        for i in range(8):
            a(f"v_lshlrev_b32 v{ACC+2*i}, 16, v{96+i}")
            a(f"v_and_b32 v{ACC+2*i+1}, 0xffff0000, v{96+i}")
        a("s_waitcnt vmcnt(2)")
        a("s_barrier")
        l0 = self.lab("trp")
        a(f"s_cmp_lg_u32 {sL}, 0")
        a(f"s_cbranch_scc1 {l0}")
        a(f"s_lshr_b32 s99, s99, 1")
        self.flag_set("s99")
        self.set_tr_addr(True)
        self.colsum(1, tb=160)
        a.label(l0)
        a(f"v_and_b32 {vT0}, 3, {vLANE}")
        a(f"v_lshlrev_b32 {vT0}, 11, {vT0}")
        a(f"v_add_u32 {vT0}, 2032, {vT0}")
        self.probe(vT0, sOIN, "v20", "v21", 31)
        self.o_loads(a)
        a("s_waitcnt vmcnt(0)")
        self.check_or_poll([vXF + 4 * i for i in range(8)], lambda t: self.o_loads(t), vT0, 30)
        self.stamp(9)
        for i in range(8):
            a(f"ds_write_b128 v104, {R(vXF+4*i)} offset:{L_OT + i*1024}")
        lB, lD = self.lab("opB"), self.lab("opD")
        a(f"s_bitcmp1_b32 {sL}, 0")
        a(f"s_cbranch_scc1 {lB}")
        for mat in range(2):
            if mat: a.label(lB)
            for i in range(8):
                a(f"{MFMA} {R(ACC,16)}, {AR(mat*128+4*i)}, {R(vXF+4*i)}, {R(ACC,16)}")
            a("s_waitcnt lgkmcnt(0)")
            a("s_barrier")
            for i in range(8, 32):
                a(f"ds_read_b128 {R(vXF+4*i)}, v{104 + i//8} offset:{L_OT + (i%8)*1024}")
            for i in range(8, 32):
                a(f"s_waitcnt lgkmcnt({min(15, 31 - i)})")
                a(f"{MFMA} {R(ACC,16)}, {AR(mat*128+4*i)}, {R(vXF+4*i)}, {R(ACC,16)}")
            if not mat: a(f"s_branch {lD}")
        a.label(lD)
        self.stamp(10)
        a("s_nop 7\ns_nop 3")
        for j in range(8): a(f"v_cvt_pk_bf16_f32 v{96+j}, v{ACC+2*j}, v{ACC+2*j+1}")
        llast = self.lab("last")
        a(f"s_cmp_eq_u32 {sL}, 3")
        a(f"s_cbranch_scc1 {llast}")
        a(f"v_min_u32 v96, 0xfffffffe, v96")
        a(f"v_min_u32 v100, 0xfffffffe, v100")
        self.store_msg([("v[96:99]", sXBout, 0), ("v[100:103]", sXBout, 1024)], vL16)
        for i in range(8):
            a(f"v_lshlrev_b32 v{ACC+2*i}, 16, v{96+i}")
            a(f"v_and_b32 v{ACC+2*i+1}, 0xffff0000, v{96+i}")
        self.xstats_store(ACC, sSTout)
        a(f"s_add_u32 {sXBin}, {sXBin}, 0x200000")
        a(f"s_lshl_b32 {sT0}, {sW}, 11")
        a(f"v_add_u32 {vT0}, {sT0}, {vL16}")
        a(f"ds_write_b128 {vT0}, v[96:99] offset:{L_XR}")
        a(f"ds_write_b128 {vT0}, v[100:103] offset:{L_XR+1024}")
        return llast

    def build(self):
        a = self.a
        self.prologue()
        a.label("L_layer")
        self.gemm()
        lb, ld = self.lab("aB"), self.lab("aD")
        a(f"s_bitcmp1_b32 {sL}, 0")
        a(f"s_cbranch_scc1 {lb}")
        self.attn_A()
        a(f"s_branch {ld}")
        a.label(lb)
        self.attn_B()
        a.label(ld)
        llast = self.outproj()
        a(f"s_add_u32 {sL}, {sL}, 1")
        a(f"s_add_u32 {sXBout}, {sXBout}, 0x200000")
        a(f"s_add_u32 {sOBl}, {sOBl}, 0x200000")
        a(f"s_add_u32 {sOIN}, {sOIN}, 0x200000")
        a(f"s_add_u32 {sKVl}, {sKVl}, 0x400000")
        a(f"s_add_u32 {sSTin}, {sSTin}, 0x40000")
        a(f"s_add_u32 {sSTout}, {sSTout}, 0x40000")
        a(f"s_xor_b32 {sCSF}, {sCSF}, {L_CSF ^ (L_CSF + 768)}")
        a(f"s_bitcmp1_b32 {sL}, 0")
        a(f"s_mov_b32 {sT1}, {16*98304}")
        a(f"s_cselect_b32 {sT0}, {(-16*98304) & 0xffffffff}, {sT1}")
        a(f"s_add_u32 {sWQN}, {sWQN}, {sT0}")
        a(f"s_cmp_eq_u32 {sL}, 3")
        a(f"s_cselect_b32 s{SRD_WN+2}, 0, s{SRD_WN+2}")
        a("s_branch L_layer")
        a.label(llast)
        a(f"v_lshlrev_b32 {vT0}, 10, {vC}")
        a(f"v_lshl_add_u32 {vT0}, {vH}, 3, {vT0}")
        a(f"s_lshl_b32 {sT0}, {sRT}, 15")
        a(f"s_lshl_b32 {sT1}, {sCT}, 6")
        a(f"s_add_u32 {sT0}, {sT0}, {sT1}")
        for q in range(4):
            a(f"buffer_store_dwordx2 {R(96+2*q,2)}, {vT0}, {srd(SRD_OUT)}, {sT0} offen offset:{q*16}")
        if self.dbg:
            self.stamp(11)
            a("s_memtime s[96:97]\ns_waitcnt lgkmcnt(0)\nv_writelane_b32 v0, s96, 61")
            a("v_writelane_b32 v0, s84, 56\nv_writelane_b32 v0, s85, 57\nv_writelane_b32 v0, s86, 58\nv_writelane_b32 v0, s87, 59")
            a(f"s_lshl_b32 {sT0}, s2, 10")
            a(f"s_lshl_b32 {sT1}, {sW}, 8")
            a(f"s_add_u32 {sT0}, {sT0}, {sT1}")
            a(f"s_add_u32 {sT0}, {sT0}, {WS_DBG + 0x10000}")
            a(f"v_lshlrev_b32 v22, 2, {vLANE}")
            a(f"buffer_store_dword v0, v22, {srd(SRD_WS)}, {sT0} offen")
            a(f"v_mov_b32 v20, {sERR}")
            a(f"v_mov_b32 v21, {sFAST}")
            a(f"s_lshl_b32 {sT0}, s2, 5")
            a(f"s_lshl_b32 {sT1}, {sW}, 3")
            a(f"s_add_u32 {sT0}, {sT0}, {sT1}")
            a(f"s_add_u32 {sT0}, {sT0}, {WS_DBG}")
            a("v_mov_b32 v22, 0")
            a("s_mov_b64 exec, 1")
            a(f"buffer_store_dwordx2 v[20:21], v22, {srd(SRD_WS)}, {sT0} offen")
        a.label("L_end")
        a("s_endpgm")
        return a.text() + self.tail.text() + "L_codeend:\n"

HEADER = open("interleave_layers__sliding_block__sliding_local_dilated__prompt.s.ref").read().split("; Override launch")[0]

def full(dbg=False):
    g = Gen(dbg)
    body = g.build()
    return (HEADER + f"; @launch grid=(256,1,1) block=(256,1,1) lds={LDS_BYTES}\n" +
            '.amdgcn_target "amdgcn-amd-amdhsa--gfx950"\n' + f""".text
.globl {NAME}
.p2align 8
.type {NAME},@function
{NAME}:
{body}
.section .rodata,"a"
.p2align 6
.amdhsa_kernel {NAME}
  .amdhsa_next_free_vgpr 512
  .amdhsa_next_free_sgpr 102
  .amdhsa_accum_offset 256
  .amdhsa_group_segment_fixed_size 0
  .amdhsa_kernarg_size 72
  .amdhsa_user_sgpr_count 2
  .amdhsa_user_sgpr_kernarg_segment_ptr 1
  .amdhsa_system_sgpr_workgroup_id_x 1
.end_amdhsa_kernel
""")

if __name__ == "__main__":
    dbg = "--dbg" in sys.argv
    out = [x for x in sys.argv[1:] if not x.startswith("--")]
    txt = full(dbg)
    open(out[0], "w").write(txt)
    from asmlib import build
    build(txt, out[0].replace(".s", ".co"), NAME)
    print("ok", len(txt.splitlines()), "lines")
```

```python
import sys, os
sys.path.insert(0, "work")
from asmlib import Asm

NAME = "interleave_layers__sliding_block__sliding_local_dilated__prompt_kernel"

XB = lambda l: (l - 1) * 0x200000
OB = lambda l: 0x600000 + l * 0x200000
KV = lambda l: 0xE00000 + l * 0x400000
ST = lambda l: 0x1E00000 + l * 0x40000
WOF = 0x1F00000
WQF = 0x2000000
WS_USED = 0x2300000
WS_DBG = 0x2400000
WS_SIZE = 0x2800000
L_KV = 0
L_OT = 0
L_XR = 49152
L_CSF = 57344
L_RS = 58880
L_SCR = 32768
L_MT = 59392
L_W = 65536
LDS_BYTES = 160 * 1024
sW, sR, sM, sL, sFAST = "s3", "s4", "s5", "s6", "s7"
SRD_X, SRD_WQA, SRD_WQB, SRD_WOA, SRD_WOB, SRD_OUT, SRD_DBG, SRD_WS, SRD_WN = 8, 12, 16, 20, 24, 28, 32, 36, 40
def srd(i): return f"s[{i}:{i+3}]"
sCHK = "s[44:45]"
sT0, sT1, sT2, sT3, sT4, sT5 = "s46", "s47", "s48", "s49", "s50", "s51"
sTRY = "s52"
sXCC = "s53"
sT = "s54"
sRT = "s55"
sCT = "s56"
sXBin, sOBl, sKVl, sSTin, sXBout, sSTout = "s57", "s58", "s59", "s60", "s61", "s62"
sOIN = "s63"
sLO32 = "s[66:67]"
sMSK = "s[68:69]"
sCSF = "s70"
sERR = "s71"
sPT = 72
sH0 = "s[72:73]"
sH1 = "s[74:75]"
sNB0, sNB1 = "s76", "s77"
sL0EX = "s[84:85]"
sWNEX = "s[86:87]"
sWQN = "s90"
sWOB = "s91"
sBIG, sTINY = "s100", "s101"
sU0, sU1, sU2, sU3 = "s92", "s93", "s94", "s95"
vTID, vLANE, vC, vH, vL16 = "v0", "v1", "v2", "v3", "v4"
vTR = 5
vWD = "v11"
vRSTD, vRSTDC = "v12", "v13"
vT0, vT1 = "v14", "v15"
vCSA = "v15"
vQ = 16
vMASK = 32
vCZ = 48
vSA = (64, 80)
vO = (96, 112)
vSB = (128, 144)
vSL = (160, 184, 208)
vXF = 128
vSTG = 128
ACC_K, ACC_V, ACC_Q = 64, 80, 96
WF = [24, 36, 48]
vRS = 112
vSTAT = 112
vOWNK = 160
vOWNV = 184
SPIN_LIMIT = 40000
NEG_INF = 0xFF800000
QSCALE = 0.25 * 1.4426950408889634
CODE_KB = 40

def R(b, n=4): return f"v[{b}:{b+n-1}]"
def AR(b, n=4): return f"a[{b}:{b+n-1}]"
def f32hex(x):
    import struct
    return "0x%08x" % struct.unpack("<I", struct.pack("<f", x))[0]
MFMA = "v_mfma_f32_32x32x16_bf16"

def interleave(valu, extras):
    out = []
    ex = sorted(extras, key=lambda e: e[0])
    k = 0
    for i, v in enumerate(valu + [None]):
        while k < len(ex) and ex[k][0] <= i:
            out += ex[k][1]; k += 1
        if v is not None: out.append(v)
    while k < len(ex):
        out += ex[k][1]; k += 1
    return out

class Gen:
    def __init__(self, dbg=False):
        self.a = Asm()
        self.tail = Asm()
        self.dbg = dbg
        self.nl = 0
    def lab(self, p):
        self.nl += 1
        return f"L_{p}_{self.nl}"

    def stamp(self, p, inloop=True):
        if not self.dbg: return
        a = self.a
        a("s_memrealtime s[96:97]")
        if inloop:
            a(f"s_mul_i32 s98, {sL}, 12")
            a(f"s_add_u32 m0, s98, {p + 8}")
        else:
            a(f"s_mov_b32 m0, {p}")
        a("s_waitcnt lgkmcnt(0)")
        a("v_writelane_b32 v0, s96, m0")

    def maxtree(self, a, regs, dst):
        regs = list(regs)
        a(f"v_max3_u32 {dst}, v{regs[0]}, v{regs[1]}, v{regs[2]}")
        i = 3
        while i < len(regs):
            if i + 1 < len(regs):
                a(f"v_max3_u32 {dst}, {dst}, v{regs[i]}, v{regs[i+1]}"); i += 2
            else:
                a(f"v_max_u32 {dst}, {dst}, v{regs[i]}"); i += 1
    def check_or_poll(self, chk_regs, reload_fn, tmp, errcode):
        a, t = self.a, self.tail
        slow, back, loop = self.lab("slow"), self.lab("back"), self.lab("sloop")
        self.maxtree(a, chk_regs, tmp)
        a(f"v_cmp_eq_u32 vcc, -1, {tmp}")
        a(f"s_and_b64 vcc, vcc, {sCHK}")
        a(f"s_cbranch_vccnz {slow}")
        a.label(back)
        t.label(slow)
        t(f"s_mov_b32 {sTRY}, 0")
        t.label(loop)
        if self.dbg:
            c = "s84" if errcode <= 4 else "s85" if errcode == 5 else "s86" if errcode == 10 else "s87"
            t(f"s_add_u32 {c}, {c}, 1")
        reload_fn(t)
        t("s_waitcnt vmcnt(0)")
        self.maxtree(t, chk_regs, tmp)
        t(f"v_cmp_eq_u32 vcc, -1, {tmp}")
        t(f"s_cbranch_vccz {back}")
        t(f"s_add_u32 {sTRY}, {sTRY}, 1")
        t(f"s_cmp_lt_u32 {sTRY}, {SPIN_LIMIT}")
        t(f"s_cbranch_scc1 {loop}")
        t(f"s_mov_b64 {sCHK}, 0")
        t(f"s_mov_b32 {sERR}, {errcode}")
        t(f"s_branch {back}")

    def probe(self, voff, sbase, va, vb, errcode):
        a = self.a
        loop, done, tmo = self.lab("pl"), self.lab("pd"), self.lab("pt")
        ld = lambda v: a(f"buffer_load_dword {v}, {voff}, {srd(SRD_WS)}, {sbase} offen sc1")
        a(f"s_mov_b32 {sTRY}, 0")
        ld(va);
        a("s_sleep 1")
        ld(vb)
        a.label(loop)
        for v in (va, vb):
            a("s_waitcnt vmcnt(1)")
            a(f"v_cmp_eq_u32 vcc, -1, {v}")
            a(f"s_and_b64 vcc, vcc, {sCHK}")
            a(f"s_cbranch_vccz {done}")
            ld(v)
        a(f"s_add_u32 {sTRY}, {sTRY}, 1")
        a(f"s_cmp_lt_u32 {sTRY}, {SPIN_LIMIT}")
        a(f"s_cbranch_scc1 {loop}")
        a(f"s_mov_b64 {sCHK}, 0")
        a(f"s_mov_b32 {sERR}, {errcode}")
        a.label(done)

    def store_msg(self, data, voff, width="dwordx4"):
        a, t = self.a, self.tail
        l1, l2 = self.lab("stsl"), self.lab("stdn")
        a(f"s_cmp_eq_u32 {sFAST}, 0")
        a(f"s_cbranch_scc1 {l1}")
        for d, s, im in data:
            o = f" offset:{im}" if im else ""
            a(f"buffer_store_{width} {d}, {voff}, {srd(SRD_WS)}, {s} offen{o}")
        a.label(l2)
        t.label(l1)
        for d, s, im in data:
            o = f" offset:{im}" if im else ""
            t(f"buffer_store_{width} {d}, {voff}, {srd(SRD_WS)}, {s} offen{o} sc1")
        t(f"s_branch {l2}")

    def w_dma(self, cts):
        a = self.a
        a(f"s_mul_i32 {sT0}, {sW}, {16*3072}")
        a(f"s_lshl_b32 {sT1}, {sM}, 6")
        a(f"s_add_u32 {sT0}, {sT0}, {sT1}")
        a(f"s_lshl_b32 {sT1}, {sW}, 10")
        for i in range(8):
            for ct in cts:
                a(f"s_add_u32 m0, {sT1}, {L_W + ct*32768 + i*4096}")
                a(f"s_add_u32 {sT2}, {sT0}, {i*64*3072 + ct*1024}")
                a(f"buffer_load_dwordx4 {vWD}, {srd(SRD_WN)}, {sT2} offen lds")

    def colsum(self, mat, tb=64, skipq=False):
        a = self.a
        a(f"s_lshl_b32 {sT0}, {sW}, 13")
        a(f"v_mov_b32 v20, 0x3f803f80")
        jobs = [(ct, hf) for ct in range(3) for hf in range(2)]
        def rd(n):
            ct, hf = jobs[n]; b = tb + 16 * (n % 2)
            a(f"v_add_u32 {vT0}, {sT0}, v{vTR+2*ct}")
            a(f"v_add_u32 {vT1}, {sT0}, v{vTR+2*ct+1}")
            for s in range(4):
                a(f"ds_read_b64_tr_b16 {R(b+4*s,2)}, {vT0} offset:{(hf*4+s)*1024}")
                a(f"ds_read_b64_tr_b16 {R(b+4*s+2,2)}, {vT1} offset:{(hf*4+s)*1024}")
        for ct in range(3): a(f"v_mov_b32 v{21+ct}, 0")
        rd(0)
        for n in range(6):
            if n + 1 < 6: rd(n + 1)
            a(f"s_waitcnt lgkmcnt({8 if n + 1 < 6 else 0})")
            ct = jobs[n][0]; b = tb + 16 * (n % 2)
            for j in range(16):
                a(f"v_dot2_f32_bf16 v{21+ct}, v{b+j}, v20, v{21+ct}")
        a(f"v_lshlrev_b32 {vT0}, 2, {vLANE}")
        a(f"s_lshl_b32 {sT0}, {sW}, 8")
        a(f"v_add_u32 {vT0}, {sT0}, {vT0}")
        a("s_nop 2")
        for ct in range(3):
            a(f"ds_write_b32 {vT0}, v{21+ct} offset:{L_SCR + ct*1024}")
        a("s_waitcnt lgkmcnt(0)")
        a("s_barrier")
        lskip = self.lab("cssk")
        a(f"s_cmp_ge_u32 {sW}, 3")
        a(f"s_cbranch_scc1 {lskip}")
        a(f"s_lshl_b32 {sT0}, {sW}, 10")
        a(f"v_lshlrev_b32 {vT0}, 2, {vC}")
        a(f"v_add_u32 {vT0}, {sT0}, {vT0}")
        t = tb
        for p in range(8):
            a(f"ds_read_b32 v{t+p}, {vT0} offset:{L_SCR + p*128}")
        a("s_waitcnt lgkmcnt(0)")
        for p in range(1, 8):
            a(f"v_add_f32 v{t}, v{t}, v{t+p}")
        a(f"""
        v_cvt_pk_bf16_f32 v{t+1}, v{t}, v{t}
        v_and_b32 v{t+2}, 0xffff0000, v{t+1}
        v_sub_f32 v{t+3}, v{t}, v{t+2}
        v_cvt_pk_bf16_f32 v{t+4}, v{t+3}, v{t+3}
        v_and_b32 v{t+5}, 0xffff0000, v{t+4}
        v_sub_f32 v{t+6}, v{t+3}, v{t+5}
        v_cvt_pk_bf16_f32 v{t+7}, v{t+6}, v{t+6}
        v_lshrrev_b32 v{t+8}, 16, v{t+2}
        v_or_b32 v{t+8}, v{t+8}, v{t+5}
        v_and_b32 v{t+9}, 0xffff, v{t+7}
        s_lshl_b32 {sT0}, {sW}, 8
        v_lshlrev_b32 {vT0}, 3, {vC}
        v_add_u32 {vT0}, {sT0}, {vT0}
        ds_write_b64 {vT0}, v[{t+8}:{t+9}] offset:{L_CSF + mat*768}
        s_waitcnt lgkmcnt(0)
        """)
        a.label(lskip)

    def set_tr_addr(self, permuted):
        a = self.a
        a(f"v_bfe_u32 {vT0}, {vLANE}, 2, 2")
        a(f"v_lshlrev_b32 {vT0}, 6, {vT0}")
        a(f"v_bfe_u32 {vT1}, {vLANE}, 4, 1")
        a(f"v_lshl_add_u32 {vT0}, {vT1}, 5, {vT0}")
        a(f"v_and_b32 {vT1}, 3, {vLANE}")
        a(f"v_lshl_add_u32 {vT0}, {vT1}, 3, {vT0}")
        a(f"v_lshl_add_u32 {vT0}, {vH}, {8 if permuted else 9}, {vT0}")
        for ct in range(3):
            a(f"v_add_u32 v{vTR+2*ct}, {L_W + ct*32768}, {vT0}")
            a(f"v_add_u32 v{vTR+2*ct+1}, {L_W + ct*32768 + (512 if permuted else 256)}, {vT0}")

    def xstats_store(self, src16, soff_s):
        a = self.a
        a(f"v_add_f32 v20, v{src16}, v{src16+1}")
        a(f"v_mul_f32 v21, v{src16}, v{src16}")
        a(f"v_fmac_f32 v21, v{src16+1}, v{src16+1}")
        for i in range(2, 16):
            a(f"v_add_f32 v20, v20, v{src16+i}")
            a(f"v_fmac_f32 v21, v{src16+i}, v{src16+i}")
        a("v_mov_b32 v22, v20")
        a("v_mov_b32 v23, v21")
        a("s_nop 1")
        a("v_permlane32_swap_b32 v20, v22")
        a("v_permlane32_swap_b32 v21, v23")
        a(f"v_lshlrev_b32 {vT0}, 3, {vC}")
        a("s_nop 0")
        a("v_add_f32 v20, v20, v22")
        a("v_add_f32 v21, v21, v23")
        a("v_min_u32 v20, 0xfffffffe, v20")
        a(f"s_mov_b64 exec, {sLO32}")
        self.store_msg([("v[20:21]", soff_s, 0)], vT0, width="dwordx2")
        a("s_mov_b64 exec, -1")

    def mask_tables(self):
        a = self.a
        a(f"v_mov_b32 v12, {NEG_INF:#x}")
        a(f"v_lshlrev_b32 {vT0}, 2, {vLANE}")
        a(f"v_cmp_ge_u32 vcc, 32, {vLANE}")
        a(f"v_sub_u32 {vT1}, 32, {vLANE}")
        a(f"v_cndmask_b32_e64 v20, v12, 0, vcc")
        a(f"v_cndmask_b32_e64 v21, 0, v12, vcc")
        a(f"v_and_b32 v22, 0xfffffff1, {vT1}")
        a(f"v_cmp_eq_u32 vcc, 0, v22")
        a(f"v_add_u32 {vT1}, 32, {vT1}")
        a(f"v_and_b32 v23, 0xfffffff1, {vT1}")
        a(f"v_cndmask_b32_e64 v22, v12, 0, vcc")
        a(f"v_cmp_eq_u32 vcc, 0, v23")
        a(f"v_mov_b32 v13, 0")
        a("s_nop 0")
        a(f"v_cndmask_b32_e64 v23, v12, 0, vcc")
        for k, r in enumerate(["v20", "v21", "v22", "v23", "v13", "v12"]):
            a(f"ds_write_b32 {vT0}, {r} offset:{L_MT + k*256}")

    def mask_load(self, dst, tbl, tmp):
        L = [f"v_lshlrev_b32 {tmp}, 2, {vH}", f"v_sub_u32 {tmp}, {tmp}, {vC}", f"v_lshlrev_b32 {tmp}, 2, {tmp}"]
        if isinstance(tbl, int): L += [f"v_add_u32 {tmp}, {L_MT + 128 + tbl*256}, {tmp}"]
        else: L += [f"v_add_u32 {tmp}, {L_MT + 128}, {tmp}", f"v_add_u32 {tmp}, {tbl}, {tmp}"]
        for k in range(8):
            b0 = 8 * (k // 2) + 2 * (k % 2)
            L += [f"ds_read2_b32 {R(dst+2*k,2)}, {tmp} offset0:{b0} offset1:{b0+1}"]
        return L

    def flag_set(self, sval):
        a = self.a
        lsk = self.lab("hs")
        a(f"s_cmp_lg_u32 {sW}, 0")
        a(f"s_cbranch_scc1 {lsk}")
        a(f"v_mov_b32 {vT0}, {sval}")
        a(f"v_mov_b32 v20, 0")
        a("s_mov_b64 exec, 1")
        a(f"buffer_atomic_or {vT0}, v20, {srd(SRD_DBG)}, {sU3} offen sc1")
        a("s_mov_b64 exec, -1")
        a.label(lsk)

    def prologue(self):
        a = self.a
        a(f"""
        s_cmp_ge_u32 s2, 256
        s_cbranch_scc1 L_end
        s_load_dwordx16 s[{sPT}:{sPT+15}], s[0:1], 0
        s_load_dwordx2 s[88:89], s[0:1], 64
        s_getpc_b64 s[40:41]
        L_pc:
        v_and_b32 {vLANE}, 63, v0
        v_lshrrev_b32 {vT0}, 6, v0
        v_and_b32 {vC}, 31, v0
        v_readfirstlane_b32 {sW}, {vT0}
        s_and_b32 s41, s41, 0xffff
        s_mov_b32 s42, L_codeend-L_pc
        s_mov_b32 s43, 0x20000
        v_lshlrev_b32 {vT1}, 7, v0
        buffer_load_dword v24, {vT1}, s[40:43], 0 offen
        s_mov_b32 {sT0}, 32768
        buffer_load_dword v25, {vT1}, s[40:43], {sT0} offen
        v_bfe_u32 {vH}, v0, 5, 1
        v_lshlrev_b32 {vL16}, 4, {vLANE}
        s_and_b32 {sT0}, s2, 7
        s_lshr_b32 {sT1}, s2, 3
        s_lshl_b32 {sR}, {sT0}, 1
        s_lshr_b32 {sT2}, {sT1}, 4
        s_add_u32 {sR}, {sR}, {sT2}
        s_and_b32 {sM}, {sT1}, 15
        s_getreg_b32 {sXCC}, hwreg(HW_REG_XCC_ID)
        s_and_b32 {sXCC}, {sXCC}, 15
        s_mov_b32 {sL}, 0
        s_mov_b32 {sFAST}, 0
        s_mov_b32 {sERR}, 0
        s_mov_b64 {sCHK}, 0
        s_mov_b32 s66, -1
        s_mov_b32 s67, 0
        s_lshl_b32 {sT}, {sR}, 2
        s_lshr_b32 {sT0}, {sM}, 2
        s_add_u32 {sRT}, {sT}, {sT0}
        s_add_u32 {sT}, {sT}, {sW}
        s_and_b32 {sCT}, {sM}, 3
        s_lshl_b32 {sCT}, {sCT}, 2
        s_add_u32 {sCT}, {sCT}, {sW}
        v_lshrrev_b32 {vT0}, 2, {vLANE}
        v_mul_u32_u24 {vWD}, 3072, {vT0}
        v_and_b32 {vT0}, 3, {vLANE}
        v_lshl_add_u32 {vWD}, {vT0}, 4, {vWD}
        s_waitcnt lgkmcnt(0)
        """)
        self.stamp(0, False)
        if self.dbg:
            a("s_memtime s[96:97]\ns_waitcnt lgkmcnt(0)\nv_writelane_b32 v0, s96, 60")
        def mk(d, p, size):
            a(f"s_mov_b32 s{d}, s{p}")
            a(f"s_and_b32 s{d+1}, s{p+1}, 0xffff")
            a(f"s_mov_b32 s{d+2}, {size}")
            a(f"s_mov_b32 s{d+3}, 0x20000")
        mk(SRD_WS, 88, WS_SIZE if self.dbg else WS_USED)
        mk(SRD_WN, sPT + 2, 512 * 3072)
        mk(SRD_X, sPT + 0, 2048 * 1024)
        mk(SRD_WQA, sPT + 2, 512 * 3072)
        mk(SRD_WOA, sPT + 4, 512 * 1024)
        mk(SRD_WQB, sPT + 8, 512 * 3072)
        mk(SRD_WOB, sPT + 10, 512 * 1024)
        self.w_dma([1, 2, 0])
        self.stamp(5, False)
        a(f"s_lshl_b32 {sT0}, {sT}, 15")
        a(f"s_lshl_b32 {sT1}, {sM}, 11")
        a(f"s_add_u32 {sOBl}, {sT0}, {sT1}")
        a(f"s_add_u32 {sOBl}, {sOBl}, {OB(0)}")
        a(f"s_lshl_b32 {sT0}, {sT}, 16")
        a(f"s_lshl_b32 {sT1}, {sM}, 12")
        a(f"s_add_u32 {sKVl}, {sT0}, {sT1}")
        a(f"s_add_u32 {sKVl}, {sKVl}, {KV(0)}")
        a(f"""
        v_lshrrev_b32 {vT0}, 3, {vLANE}
        v_lshlrev_b32 v16, 10, {vT0}
        v_and_b32 {vT0}, 7, {vLANE}
        v_lshrrev_b32 {vT1}, 4, {vLANE}
        v_xor_b32 {vT0}, {vT0}, {vT1}
        v_lshl_add_u32 v16, {vT0}, 4, v16
        v_xor_b32 v17, 64, v16
        s_lshl_b32 {sU0}, {sT}, 15
        s_mul_i32 {sU2}, {sW}, 12288
        """)
        for p in range(3): self.x_piece_dma(p)
        self.stamp(4, False)
        a(f"s_mov_b32 s64, {sU0}")
        a(f"s_mov_b32 s65, {sU2}")
        self.producer_loads()
        a(f"s_mov_b32 s100, {sU0}")
        a(f"s_mov_b32 s101, {sU2}")
        a(f"s_mov_b32 {sU0}, s64")
        a(f"s_mov_b32 {sU2}, s65")
        a("v_mov_b32 v20, -1\nv_mov_b32 v21, -1\nv_mov_b32 v22, -1\nv_mov_b32 v23, -1")
        a(f"buffer_store_dwordx4 v[20:23], {vL16}, {srd(SRD_WS)}, {sOBl} offen sc1")
        a(f"buffer_store_dwordx4 v[20:23], {vL16}, {srd(SRD_WS)}, {sOBl} offen offset:1024 sc1")
        for l in (0,):
            a(f"s_add_u32 {sT0}, {sKVl}, {KV(l)-KV(0)}")
            for f in range(4):
                a(f"buffer_store_dwordx4 v[20:23], {vL16}, {srd(SRD_WS)}, {sT0} offen offset:{f*1024} sc1")
        mk(SRD_OUT, sPT + 12, 2048 * 1024)
        mk(SRD_DBG, sPT + 14, 256)
        a(f"s_lshl_b32 {sT0}, {sRT}, 12")
        a(f"s_lshl_b32 {sT1}, {sCT}, 8")
        a(f"s_add_u32 {sSTout}, {sT0}, {sT1}")
        a(f"s_add_u32 {sSTout}, {sSTout}, {ST(1)}")
        a(f"s_lshl_b32 {sT0}, {sT}, 12")
        a(f"s_add_u32 {sSTin}, {sT0}, {ST(0)}")
        a(f"s_lshl_b32 {sT0}, {sT}, 15")
        a(f"s_add_u32 {sXBin}, {sT0}, {(XB(1) - 0x200000) & 0xffffffff}")
        a(f"s_lshl_b32 {sT0}, {sRT}, 15")
        a(f"s_lshl_b32 {sT1}, {sCT}, 11")
        a(f"s_add_u32 {sXBout}, {sT0}, {sT1}")
        a(f"s_add_u32 {sXBout}, {sXBout}, {XB(1)}")
        a(f"s_lshl_b32 {sT1}, {sW}, 13")
        a(f"s_add_u32 {sOIN}, {sT0}, {sT1}")
        a(f"s_add_u32 {sOIN}, {sOIN}, {OB(0)}")
        a(f"s_mov_b32 {sCSF}, {L_CSF}")
        a(f"s_lshl_b32 {sWOB}, {sCT}, 15")
        a(f"s_add_u32 {sWOB}, {sWOB}, {WOF}")
        a(f"s_mul_i32 {sWQN}, {sM}, 98304")
        a(f"s_add_u32 {sWQN}, {sWQN}, {WQF + 16*98304}")
        a(f"s_lshl_b32 {sT0}, {sR}, 4")
        a(f"s_add_u32 {sT0}, {sT0}, {sM}")
        a(f"s_and_b32 {sT1}, {sT0}, 3")
        a(f"s_lshl_b32 {sT1}, {sT1}, 3")
        a(f"s_or_b32 {sT2}, {sXCC}, 0x80")
        a(f"s_lshl_b32 {sU1}, {sT2}, {sT1}")
        a(f"s_lshl_b32 s99, 0x40, {sT1}")
        a(f"s_and_b32 {sU3}, {sT0}, 0xfc")
        a(f"""
        v_bfe_u32 {vT0}, {vC}, 1, 3
        v_xor_b32 {vT0}, {vT0}, {vH}
        v_lshlrev_b32 {vT0}, 4, {vT0}
        v_lshl_add_u32 {vT0}, {vC}, 7, {vT0}
        v_add_u32 v18, {sU2}, {vT0}
        v_xor_b32 v19, 32, v18
        v_xor_b32 v28, 64, v18
        v_xor_b32 v29, 0x60, v18
        """)
        a(f"v_cmp_gt_u32 {sH0}, 16, {vC}")
        a(f"v_cmp_le_u32 {sH1}, 16, {vC}")
        a(f"s_mov_b64 {sL0EX}, 0")
        mk(SRD_WN, 88, WS_SIZE if self.dbg else WS_USED)
        a(f"s_mov_b64 {sWNEX}, 0")
        self.set_tr_addr(False)
        self.stamp(1, False)
        self.mask_tables()
        q = vSTAT
        a("v_mov_b32 v22, 0x3f803f80")
        for i in range(16): a(f"v_mov_b32 v{q+i}, 0")
        ra = ["v18", "v19", "v28", "v29"]
        for p in range(8):
            n = [29, 29, 29, 8, 12, 12, 4, 0][p]
            a(f"s_waitcnt vmcnt({n})")
            for k in range(4):
                a(f"ds_read_b128 {R(vXF + 4*(4*p+k))}, {ra[k]} offset:{(p%3)*4096}")
            a("s_waitcnt lgkmcnt(0)")
            if p == 3: self.producer_stores()
            if p + 3 < 8: self.x_piece_dma(p + 3)
            for j in range(16):
                r = vXF + 16 * p + j
                a(f"v_dot2_f32_bf16 v{q+2*(j%2)}, v{r}, v22, v{q+2*(j%2)}")
                a(f"v_dot2_f32_bf16 v{q+1+2*(j%2)}, v{r}, v{r}, v{q+1+2*(j%2)}")
        self.stamp(6, False)
        a("s_barrier")
        self.stamp(2, False)
        self.flag_set(sU1)
        a(f"s_mov_b32 {sBIG}, 0x5d800000")
        a(f"s_mov_b32 {sTINY}, 0x21800000")
        self.colsum(0, tb=64)
        self.layer_start()
        a("s_barrier")
        self.stamp(3, False)

    def x_piece_dma(self, p):
        a = self.a
        for d in range(4):
            a(f"s_add_u32 m0, {sU2}, {(p%3)*4096 + d*1024}")
            a(f"s_add_u32 {sT2}, {sU0}, {d*8192 + p*128}")
            a(f"buffer_load_dwordx4 v{16 + d%2}, {srd(SRD_X)}, {sT2} offen lds")

    def producer_loads(self):
        a = self.a
        a(f"s_lshl_b32 {sT0}, s2, 2")
        a(f"s_add_u32 {sT0}, {sT0}, {sW}")
        a(f"s_and_b32 {sT1}, {sT0}, 31")
        a(f"s_bfe_u32 {sT2}, {sT0}, 0x40005")
        a(f"s_lshl_b32 {sT3}, {sT1}, 14")
        a(f"s_lshl_b32 {sT4}, {sT2}, 6")
        a(f"s_add_u32 {sT3}, {sT3}, {sT4}")
        a(f"v_lshlrev_b32 {vT1}, 1, {vC}")
        a(f"v_lshl_add_u32 {vT1}, {vH}, 12, {vT1}")
        lB, lD = self.lab("wob"), self.lab("wod")
        a(f"s_add_u32 {sT4}, {sT3}, 8192")
        a(f"s_cmp_ge_u32 {sT0}, 512")
        a(f"s_cbranch_scc1 {lB}")
        for S_, lab in ((SRD_WOA, None), (SRD_WOB, lB)):
            if lab: a.label(lab)
            for j in range(8):
                so = sT3 if j < 4 else sT4
                a(f"buffer_load_ushort v{32+j}, {vT1}, {srd(S_)}, {so} offen offset:{(j%4)*1024}")
            if not lab: a(f"s_branch {lD}")
        a.label(lD)
        a(f"s_lshl_b32 {sU0}, {sT0}, 10")
        a(f"s_add_u32 {sU0}, {sU0}, {WOF}")
        a(f"s_mul_i32 {sT3}, {sT1}, {16*3072}")
        a(f"s_lshl_b32 {sT4}, {sT2}, 6")
        a(f"s_add_u32 {sT3}, {sT3}, {sT4}")
        lB, lD = self.lab("wqb"), self.lab("wqd")
        a(f"s_cmp_ge_u32 {sT0}, 512")
        a(f"s_cbranch_scc1 {lB}")
        for S_, lab in ((SRD_WQA, None), (SRD_WQB, lB)):
            if lab: a.label(lab)
            for ct in range(3):
                a(f"buffer_load_dwordx4 {R(48+4*ct)}, {vWD}, {srd(S_)}, {sT3} offen offset:{ct*1024}")
            if not lab: a(f"s_branch {lD}")
        a.label(lD)
        a(f"s_lshr_b32 {sT3}, {sT0}, 5")
        a(f"s_mul_i32 {sT3}, {sT3}, 98304")
        a(f"s_lshl_b32 {sT4}, {sT1}, 10")
        a(f"s_add_u32 {sU2}, {sT3}, {sT4}")
        a(f"s_add_u32 {sU2}, {sU2}, {WQF}")
        a(f"v_lshlrev_b32 {vT0}, 10, {vC}")
        a(f"v_lshl_add_u32 {vT0}, {vH}, 3, {vT0}")
        a(f"s_lshl_b32 {sT0}, {sRT}, 15")
        a(f"s_lshl_b32 {sT1}, {sCT}, 6")
        a(f"s_add_u32 {sT0}, {sT0}, {sT1}")
        for q in range(4):
            a(f"buffer_load_dwordx2 {R(40+2*q,2)}, {vT0}, {srd(SRD_X)}, {sT0} offen offset:{q*16}")

    def producer_stores(self):
        a = self.a
        for j in range(4):
            a(f"v_lshl_or_b32 v{24+j}, v{32+2*j+1}, 16, v{32+2*j}")
        a(f"buffer_store_dwordx4 v[24:27], {vL16}, {srd(SRD_WS)}, s100 offen sc1")
        for ct in range(3):
            a(f"s_add_u32 {sT0}, s101, {ct*32768}")
            a(f"buffer_store_dwordx4 {R(48+4*ct)}, {vL16}, {srd(SRD_WS)}, {sT0} offen sc1")
        a(f"s_lshl_b32 {sT0}, {sW}, 11")
        a(f"v_add_u32 {vT0}, {sT0}, {vL16}")
        a(f"ds_write_b128 {vT0}, v[40:43] offset:{L_XR}")
        a(f"ds_write_b128 {vT0}, v[44:47] offset:{L_XR+1024}")
        a("s_nop 1")

    def flag_load(self, dst):
        a = self.a
        a(f"v_lshlrev_b32 {vT0}, 2, {vLANE}")
        a(f"buffer_load_dword {dst}, {vT0}, {srd(SRD_DBG)}, 0 offen sc1")

    def flag_check(self, x, y, bit, setfast, layer=0):
        a, t = self.a, self.tail
        skip, slow, loop, back = self.lab("fsk"), self.lab("fsl"), self.lab("flp"), self.lab("fbk")
        m = bit * 0x01010101
        a(f"s_cmp_lg_u32 {sL}, {layer}")
        a(f"s_cbranch_scc1 {skip}")
        a(f"v_and_b32 {y}, {m:#x}, {x}")
        a(f"v_cmp_ne_u32 vcc, {m:#x}, {y}")
        a(f"s_cbranch_vccnz {slow}")
        a.label(back)
        t.label(slow)
        t(f"s_mov_b32 {sTRY}, 0")
        t(f"v_lshlrev_b32 {vT0}, 2, {vLANE}")
        t.label(loop)
        t("s_sleep 8")
        t(f"buffer_load_dword {x}, {vT0}, {srd(SRD_DBG)}, 0 offen sc1")
        t("s_waitcnt vmcnt(0)")
        t(f"v_and_b32 {y}, {m:#x}, {x}")
        t(f"v_cmp_ne_u32 vcc, {m:#x}, {y}")
        t(f"s_cbranch_vccz {back}")
        t(f"s_add_u32 {sTRY}, {sTRY}, 1")
        t(f"s_cmp_lt_u32 {sTRY}, {SPIN_LIMIT}")
        t(f"s_cbranch_scc1 {loop}")
        t(f"s_mov_b32 {sERR}, 100")
        t(f"s_branch {back}")
        if setfast:
            a(f"s_mul_i32 {sT0}, {sXCC}, 0x01010101")
            a(f"v_and_b32 {y}, 0x0f0f0f0f, {x}")
            a(f"v_cmp_eq_u32 vcc, {sT0}, {y}")
            a(f"s_lshl_b32 {sT1}, {sR}, 2")
            a(f"s_lshr_b64 {sMSK}, vcc, {sT1}")
            a(f"s_and_b32 {sT0}, s68, 15")
            a(f"s_cmp_eq_u32 {sT0}, 15")
            a(f"s_cselect_b32 {sFAST}, 1, 0")
            if os.environ.get("NOFAST"): a(f"s_mov_b32 {sFAST}, 0")
            a(f"s_cmp_eq_u32 {sERR}, 0")
            a(f"s_cselect_b64 {sCHK}, -1, 0")
        a.label(skip)

    def flag_wait(self, bit, setfast):
        a = self.a
        loop, done = self.lab("hw"), self.lab("hwd")
        m = bit * 0x01010101
        a(f"s_mov_b32 {sTRY}, 0")
        a(f"v_lshlrev_b32 {vT0}, 2, {vLANE}")
        a.label(loop)
        a(f"buffer_load_dword v20, {vT0}, {srd(SRD_DBG)}, 0 offen sc1")
        a("s_waitcnt vmcnt(0)")
        a(f"v_and_b32 v21, {m:#x}, v20")
        a(f"v_cmp_ne_u32 vcc, {m:#x}, v21")
        a(f"s_cbranch_vccz {done}")
        a("s_sleep 2")
        a(f"s_add_u32 {sTRY}, {sTRY}, 1")
        a(f"s_cmp_lt_u32 {sTRY}, {SPIN_LIMIT}")
        a(f"s_cbranch_scc1 {loop}")
        a(f"s_mov_b32 {sERR}, 100")
        a.label(done)
        if setfast:
            a(f"s_mul_i32 {sT0}, {sXCC}, 0x01010101")
            a(f"v_and_b32 v21, 0x0f0f0f0f, v20")
            a(f"v_cmp_eq_u32 vcc, {sT0}, v21")
            a(f"s_lshl_b32 {sT1}, {sR}, 2")
            a(f"s_lshr_b64 {sMSK}, vcc, {sT1}")
            a(f"s_and_b32 {sT0}, s68, 15")
            a(f"s_cmp_eq_u32 {sT0}, 15")
            a(f"s_cselect_b32 {sFAST}, 1, 0")
            if os.environ.get("NOFAST"): a(f"s_mov_b32 {sFAST}, 0")
            a(f"s_cmp_eq_u32 {sERR}, 0")
            a(f"s_cselect_b64 {sCHK}, -1, 0")

    def x_loads(self, t, g):
        t(f"s_add_u32 {sT0}, {sXBin}, {g*8192}")
        t(f"s_add_u32 {sT1}, {sXBin}, {g*8192+4096}")
        for i in range(8):
            s = 8 * g + i
            t(f"buffer_load_dwordx4 {R(vXF+4*s)}, {vL16}, {srd(SRD_WS)}, {sT0 if i < 4 else sT1} offen offset:{(i%4)*1024} sc1")

    def st_loads(self, t):
        t(f"v_lshlrev_b32 {vT0}, 3, {vC}")
        t(f"v_lshl_add_u32 {vT0}, {vH}, 11, {vT0}")
        for i in range(8):
            t(f"buffer_load_dwordx2 {R(vSTAT+2*i,2)}, {vT0}, {srd(SRD_WS)}, {sSTin} offen offset:{i*256} sc1")

    def layer_start(self):
        a = self.a
        a("v_mov_b32 v20, -1\nv_mov_b32 v21, -1\nv_mov_b32 v22, -1\nv_mov_b32 v23, -1")
        lk = self.lab("clrk")
        a(f"s_bitcmp1_b32 {sL}, 0")
        a(f"s_cbranch_scc1 {lk}")
        a(f"s_cmp_lg_u32 {sW}, 3")
        a(f"s_cbranch_scc1 {lk}")
        a(f"s_add_u32 {sT0}, {sKVl}, 0x400000")
        for f in range(4):
            a(f"buffer_store_dwordx4 v[20:23], {vL16}, {srd(SRD_WS)}, {sT0} offen offset:{f*1024} sc1")
        a.label(lk)

    def group_clears(self):
        a = self.a
        l3 = self.lab("clr3")
        a(f"s_cmp_eq_u32 {sL}, 3")
        a(f"s_cbranch_scc1 {l3}")
        a("v_mov_b32 v20, -1\nv_mov_b32 v21, -1\nv_mov_b32 v22, -1\nv_mov_b32 v23, -1")
        a(f"s_add_u32 {sT0}, {sOBl}, 0x200000")
        self.store_msg([("v[20:23]", sXBout, 0), ("v[20:23]", sXBout, 1024), ("v[20:23]", sT0, 0), ("v[20:23]", sT0, 1024)], vL16)
        a(f"v_lshlrev_b32 {vT0}, 3, {vC}")
        self.store_msg([("v[20:21]", sSTout, 0)], vT0, width="dwordx2")
        a.label(l3)

    def kv2_clear(self, half):
        L = []
        if half == 0: L += ["v_mov_b32 v28, -1", "v_mov_b32 v29, -1", "v_mov_b32 v30, -1", "v_mov_b32 v31, -1", f"s_add_u32 {sT5}, {sKVl}, {KV(2)-KV(0)}"]
        L += [f"s_mov_b64 exec, {sL0EX}"]
        for f in (2 * half, 2 * half + 1):
            L += [f"buffer_store_dwordx4 v[28:31], {vL16}, {srd(SRD_WS)}, {sT5} offen offset:{f*1024} sc1"]
        L += ["s_mov_b64 exec, -1"]
        return L

    def nb_loads(self, t):
        for k, s in enumerate((sNB0, sNB1)):
            for f in range(4):
                t(f"buffer_load_dwordx4 {R(vSTG+16*k+4*f)}, {vL16}, {srd(SRD_WS)}, {s} offen offset:{f*1024} sc1")

    def stats_ops(self):
        q = vSTAT
        L = []
        for i in range(1, 8):
            L.append(f"v_add_f32 v{q}, v{q}, v{q+2*i}")
            L.append(f"v_add_f32 v{q+1}, v{q+1}, v{q+2*i+1}")
        L += [x.strip() for x in f"""
        v_mov_b32 v{q+2}, v{q}
        v_mov_b32 v{q+3}, v{q+1}
        v_mov_b32 v18, 0
        v_mov_b32 v19, 0
        v_permlane32_swap_b32 v{q}, v{q+2}
        v_permlane32_swap_b32 v{q+1}, v{q+3}
        s_lshl_b32 {sT0}, {sW}, 7
        v_lshlrev_b32 {vT0}, 2, {vC}
        v_add_f32 v{q}, v{q}, v{q+2}
        v_add_f32 v{q+1}, v{q+1}, v{q+3}
        v_mul_f32 v{q}, {f32hex(1/512)}, v{q}
        v_mul_f32 v{q+1}, {f32hex(1/512)}, v{q+1}
        v_fma_f32 v{q+1}, -v{q}, v{q}, v{q+1}
        v_max_f32 v{q+1}, 0, v{q+1}
        v_cvt_pk_bf16_f32 v{q+2}, v{q}, v{q+1}
        v_and_b32 v{q+3}, 0xffff0000, v{q+2}
        v_add_f32 v{q+3}, {f32hex(1e-5)}, v{q+3}
        v_cvt_pk_bf16_f32 v{q+3}, v{q+3}, v{q+3}
        v_and_b32 v{q+3}, 0xffff0000, v{q+3}
        v_sqrt_f32 v{q+3}, v{q+3}
        v_and_b32 v{q+2}, 0xffff, v{q+2}
        v_xor_b32 v{q+2}, 0x8000, v{q+2}
        v_cvt_pk_bf16_f32 v{q+3}, v{q+3}, v{q+3}
        v_and_b32 v{q+3}, 0xffff0000, v{q+3}
        v_rcp_f32 {vRSTD}, v{q+3}
        v_cndmask_b32_e64 v17, 0, v{q+2}, {sLO32}
        v_lshl_or_b32 v16, v17, 16, v17
        v_add_u32 {vT0}, {sT0}, {vT0}
        v_mul_f32 {vRSTDC}, {f32hex(QSCALE)}, {vRSTD}
        v_lshlrev_b32 v21, 4, {vH}
        v_add_u32 v21, {sT0}, v21
        """.strip().split("\n")]
        return L

    def x_load1(self, s):
        so = ["s78", "s79", "s80", "s81", "s82", "s83", "s64", "s65"][s // 4]
        return f"buffer_load_dwordx4 {R(vXF+4*s)}, {vL16}, {srd(SRD_WS)}, {so} offen offset:{(s%4)*1024} sc1"

    def pass1(self, first):
        a = self.a
        UP = 10
        def rd1(s):
            b = WF[s % 3]
            if s < 32:
                L = [f"ds_read_b64_tr_b16 {R(b,2)}, v{vTR+2} offset:{s*1024}",
                     f"ds_read_b64_tr_b16 {R(b+2,2)}, v{vTR+3} offset:{s*1024}",
                     f"ds_read_b64_tr_b16 {R(b+4,2)}, v{vTR+4} offset:{s*1024}",
                     f"ds_read_b64_tr_b16 {R(b+6,2)}, v{vTR+5} offset:{s*1024}"]
                if s >= 8:
                    L += [f"ds_read_b64_tr_b16 {R(b+8,2)}, v{vTR} offset:{s*1024}",
                          f"ds_read_b64_tr_b16 {R(b+10,2)}, v{vTR+1} offset:{s*1024}"]
                return L
            if s == 32:
                return [f"ds_read_b64 {R(b,2)}, {vCSA} offset:256", f"ds_read_b64 {R(b+4,2)}, {vCSA} offset:512"]
            return []
        issued = []
        def vm(tag, ins): a(ins); issued.append(tag)
        def wait(tag):
            n = len(issued) - 1 - max(i for i, t in enumerate(issued) if t == tag)
            a(f"s_waitcnt vmcnt({n})")
        if not first:
            for k in range(UP): vm(k, self.x_load1(k))
            a(f"v_lshlrev_b32 v22, 3, {vC}")
            a(f"v_lshl_add_u32 v22, {vH}, 11, v22")
            a("v_mov_b32 v60, 0")
        a(f"v_lshlrev_b32 {vCSA}, 3, {vC}")
        a(f"v_add_u32 {vCSA}, {sCSF}, {vCSA}")
        PF = 2
        for s in range(PF):
            for x in rd1(s): a(x)
        st = self.stats_ops(); si = 0
        tch = self.wn_touch("v23")
        for s in range(32):
            if not first:
                wait(s)
                if s == 26:
                    wait("st")
                    for i in range(0, 8, 2): a(f"v_max3_u32 v60, v60, v{vSTAT+2*i}, v{vSTAT+2*i+2}")
            b = WF[s % 3]
            nxt = rd1(s + PF)
            later = sum(len(rd1(k)) for k in range(s + 1, s + PF))
            a(f"s_waitcnt lgkmcnt({later})")
            c0 = "0" if s == 0 else None
            def fill():
                nonlocal si
                if s >= 26:
                    for x in st[si:si + 3]: a(x)
                    si += 3
            a(f"{MFMA} {R(ACC_K,16)}, {R(b)}, {R(vXF+4*s)}, {c0 or R(ACC_K,16)}")
            for x in nxt[:2]: a(x)
            fill()
            if not first:
                if s + UP < 32: vm(s + UP, self.x_load1(s + UP))
                if s % 2 == 1: a(f"v_max3_u32 v60, v60, v{vXF+4*s}, v{vXF+4*s-4}")
            a(f"{MFMA} {R(ACC_V,16)}, {R(vXF+4*s)}, {R(b+4)}, {c0 or R(ACC_V,16)}")
            for x in nxt[2:4]: a(x)
            fill()
            if not first:
                if 10 <= s < 18:
                    vm("st", f"buffer_load_dwordx2 {R(vSTAT+2*(s-10),2)}, v22, {srd(SRD_WS)}, {sSTin} offen offset:{(s-10)*256} sc1")
            if s == 23:
                self.flag_load("v20"); issued.append("f")
            if s >= 8:
                a(f"{MFMA} {R(ACC_Q,16)}, {R(b+8)}, {R(vXF+4*s)}, {'0' if s == 8 else R(ACC_Q,16)}")
            for x in nxt[4:]: a(x)
            fill()
        assert si >= len(st)

    def gemm(self):
        a, t = self.a, self.tail
        self.stamp(0)
        l0, ljoin, lredo, lrl = self.lab("g_l0"), self.lab("g_join"), self.lab("g_redo"), self.lab("g_rl")
        a(f"s_cmp_eq_u32 {sL}, 0")
        a(f"s_cbranch_scc1 {l0}")
        self.layer_start()
        for k, so in enumerate(["s78", "s79", "s80", "s81", "s82", "s83", "s64", "s65"]):
            a(f"s_add_u32 {so}, {sXBin}, {k*4096}")
        a(f"v_and_b32 {vT0}, 15, {vLANE}")
        a(f"v_lshlrev_b32 {vT0}, 11, {vT0}")
        a(f"v_add_u32 {vT0}, 2032, {vT0}")
        self.probe(vT0, sXBin, "v20", "v21", 1)
        self.stamp(1)
        self.pass1(False)
        a("v_cmp_eq_u32 vcc, -1, v60")
        a(f"s_and_b64 vcc, vcc, {sCHK}")
        a(f"s_cbranch_vccz {ljoin}")
        a(f"s_branch {lredo}")
        t.label(lredo)
        t(f"s_mov_b32 {sTRY}, 0")
        t("s_waitcnt vmcnt(0) lgkmcnt(0)")
        t("s_nop 7\ns_nop 7")
        t.label(lrl)
        if self.dbg: t("s_add_u32 s84, s84, 1")
        for g in range(4): self.x_loads(t, g)
        self.st_loads(t)
        t("s_waitcnt vmcnt(0)")
        self.maxtree(t, [vXF + 4 * k for k in range(32)] + [vSTAT + 2 * i for i in range(8)], vT0)
        t(f"v_cmp_eq_u32 vcc, -1, {vT0}")
        t(f"s_cbranch_vccz {l0}")
        t(f"s_add_u32 {sTRY}, {sTRY}, 1")
        t(f"s_cmp_lt_u32 {sTRY}, {SPIN_LIMIT}")
        t(f"s_cbranch_scc1 {lrl}")
        t(f"s_mov_b64 {sCHK}, 0")
        t(f"s_mov_b32 {sERR}, 2")
        t(f"s_branch {l0}")
        a.label(l0)
        self.stamp(1)
        self.pass1(True)
        a.label(ljoin)
        self.stamp(2)
        a(f"ds_write_b32 {vT0}, {vRSTD} offset:{L_RS}")
        b = WF[32 % 3]
        a("s_waitcnt lgkmcnt(1)")
        a(f"{MFMA} {R(ACC_K,16)}, {R(b)}, v[16:19], {R(ACC_K,16)}")
        a(f"{MFMA} {R(ACC_V,16)}, v[16:19], {R(b+4)}, {R(ACC_V,16)}")
        for qq in range(4):
            a(f"ds_read_b128 {R(vRS+4*qq)}, v21 offset:{L_RS + qq*32}")
        order = list(range(8)) + [32]
        W2 = [24, 28, 32]
        def rd2(i):
            if i >= len(order): return []
            s = order[i]; b = W2[i % 3]
            if s == 32: return [f"ds_read_b64 {R(b,2)}, {vCSA} offset:0"]
            return [f"ds_read_b64_tr_b16 {R(b,2)}, v{vTR} offset:{s*1024}",
                    f"ds_read_b64_tr_b16 {R(b+2,2)}, v{vTR+1} offset:{s*1024}"]
        for i in range(2):
            for x in rd2(i): a(x)
        lfs = self.lab("nofl")
        a("s_waitcnt vmcnt(0)")
        a(f"s_bitcmp1_b32 {sL}, 0")
        a(f"s_cbranch_scc1 {lfs}")
        self.flag_check("v20", "v21", 0x80, True)
        self.flag_check("v20", "v21", 0x20, False, layer=2)
        a.label(lfs)
        self.stamp(3)
        epi = []
        for r in range(16): epi.append(f"v_mul_f32 v{ACC_K+r}, {vRSTD}, v{ACC_K+r}")
        for j in range(8): epi.append(f"v_cvt_pk_bf16_f32 v{vOWNK+j}, v{ACC_K+2*j}, v{ACC_K+2*j+1}")
        for r in range(16): epi.append(f"v_mul_f32 v{ACC_V+r}, v{vRS+r}, v{ACC_V+r}")
        for j in range(8): epi.append(f"v_cvt_pk_bf16_f32 v{vOWNV+j}, v{ACC_V+2*j}, v{ACC_V+2*j+1}")
        for f in (vOWNK, vOWNK + 4, vOWNV, vOWNV + 4): epi.append(f"v_min_u32 v{f}, 0xfffffffe, v{f}")
        ones = [f"v_mov_b32 v{sl+k}, 0x3f803f80" for sl in vSL for k in range(8, 24)]
        ei = 0
        for i, s in enumerate(order):
            b = W2[i % 3]
            later = sum(len(rd2(k)) for k in range(i + 1, i + 2))
            a(f"s_waitcnt lgkmcnt({later})")
            bop = "v[16:19]" if s == 32 else R(vXF + 4 * s)
            a(f"{MFMA} {R(ACC_Q,16)}, {R(b)}, {bop}, {R(ACC_Q,16)}")
            for x in rd2(i + 2): a(x)
            if i == 0:
                for x in ones[:6]: a(x)
            else:
                for x in epi[ei:ei + 7]: a(x)
                ei += 7
        assert ei >= len(epi)
        self.kv_publish()
        self.group_clears()
        self.nb_issue()
        a(f"s_bitcmp1_b32 {sL}, 0")
        a(f"s_cselect_b32 {sT2}, 512, 0")
        a(f"s_cselect_b32 {sT3}, 3, 4")
        a(f"s_cmp_eq_u32 {sT}, 0")
        a(f"s_cselect_b32 {sT3}, 5, {sT3}")
        a(f"s_lshl_b32 {sT3}, {sT3}, 8")
        for x in self.mask_load(vMASK, sT2, vT0): a(x)
        for x in self.mask_load(vCZ, sT3, vT0): a(x)
        for x in ones[6:]: a(x)
        a(f"s_lshl_b32 {sT0}, {sW}, 12")
        a(f"v_add_u32 v24, {sT0}, {vL16}")
        for x in self.rd_tile(0, k=False): a(x)
        for r in range(16): a(f"v_mul_f32 v{ACC_Q+r}, {vRSTDC}, v{ACC_Q+r}")
        for j in range(8): a(f"v_cvt_pk_bf16_f32 v{vQ+j}, v{ACC_Q+2*j}, v{ACC_Q+2*j+1}")
        a("s_waitcnt lgkmcnt(4)")
        self.stamp(4)

    def kv_publish(self):
        a = self.a
        OWN = [vOWNK, vOWNK + 4, vOWNV, vOWNV + 4]
        lsk = self.lab("kvsk")
        ldo = self.lab("kvdo")
        a(f"s_bitcmp0_b32 {sL}, 0")
        a(f"s_cbranch_scc1 {ldo}")
        a(f"s_cmp_lg_u32 {sW}, 3")
        a(f"s_cbranch_scc1 {lsk}")
        a.label(ldo)
        for f in range(4):
            a(f"buffer_store_dwordx4 {R(OWN[f])}, {vL16}, {srd(SRD_WS)}, {sKVl} offen offset:{f*1024} sc1")
        a.label(lsk)
        a(f"s_lshl_b32 {sT0}, {sW}, 12")
        a(f"v_add_u32 {vT0}, {sT0}, {vL16}")
        for f in range(4):
            a(f"ds_write_b128 {vT0}, {R(OWN[f])} offset:{L_KV + 32768 + f*1024}")

    def nb_issue(self):
        a = self.a
        a(f"s_sub_u32 {sT0}, {sW}, 8")
        a(f"s_lshl_b32 {sT1}, {sT0}, 16")
        a(f"s_add_u32 {sNB0}, {sKVl}, {sT1}")
        a(f"s_add_u32 {sNB1}, {sNB0}, 65536")
        a(f"s_add_i32 {sT0}, {sT0}, {sT}")
        a(f"s_cmp_lt_i32 {sT0}, 0")
        a(f"s_cselect_b32 {sNB0}, 0x7f000000, {sNB0}")
        a(f"s_cselect_b32 {sNB1}, 0x7f000000, {sNB1}")
        lA = self.lab("nbA")
        a(f"s_bitcmp0_b32 {sL}, 0")
        a(f"s_cbranch_scc1 {lA}")
        a(f"s_mov_b32 {sNB0}, 0x7f000000")
        a(f"s_cmp_lg_u32 {sW}, 3")
        a(f"s_cselect_b32 {sNB1}, 0x7f000000, {sNB1}")
        self.nb_loads(a)
        a.label(lA)

    def flag_wait_safe(self):
        a = self.a
        loop, done = self.lab("hw"), self.lab("hwd")
        m = 0x80808080
        x, y = f"v{vSTG}", f"v{vSTG+1}"
        a(f"s_mov_b32 {sTRY}, 0")
        a(f"v_lshlrev_b32 {vT0}, 2, {vLANE}")
        a.label(loop)
        a(f"buffer_load_dword {x}, {vT0}, {srd(SRD_DBG)}, 0 offen sc1")
        a("s_waitcnt vmcnt(0)")
        a(f"v_and_b32 {y}, {m:#x}, {x}")
        a(f"v_cmp_ne_u32 vcc, {m:#x}, {y}")
        a(f"s_cbranch_vccz {done}")
        a("s_sleep 2")
        a(f"s_add_u32 {sTRY}, {sTRY}, 1")
        a(f"s_cmp_lt_u32 {sTRY}, {SPIN_LIMIT}")
        a(f"s_cbranch_scc1 {loop}")
        a(f"s_mov_b32 {sERR}, 100")
        a.label(done)
        a(f"s_mul_i32 {sT0}, {sXCC}, 0x01010101")
        a(f"v_and_b32 {y}, 0x0f0f0f0f, {x}")
        a(f"v_cmp_eq_u32 vcc, {sT0}, {y}")
        a(f"s_lshl_b32 {sT1}, {sR}, 2")
        a(f"s_lshr_b64 {sMSK}, vcc, {sT1}")
        a(f"s_and_b32 {sT0}, s68, 15")
        a(f"s_cmp_eq_u32 {sT0}, 15")
        a(f"s_cselect_b32 {sFAST}, 1, 0")
        if os.environ.get("NOFAST"): a(f"s_mov_b32 {sFAST}, 0")
        a(f"s_cmp_eq_u32 {sERR}, 0")
        a(f"s_cselect_b64 {sCHK}, -1, 0")

    def rd_tile(self, i, k=True):
        sl = vSL[i % 3]; o = L_KV + (8 - i) * 4096
        r = []
        if k:
            r += [f"ds_read_b128 {R(sl)}, v24 offset:{o}", f"ds_read_b128 {R(sl+4)}, v24 offset:{o+1024}"]
        r += [f"s_mov_b64 exec, {sH0}",
              f"ds_read_b128 {R(sl+8)}, v24 offset:{o+2048}", f"ds_read_b128 {R(sl+12)}, v24 offset:{o+3072}",
              f"s_mov_b64 exec, {sH1}",
              f"ds_read_b128 {R(sl+16)}, v24 offset:{o+2048}", f"ds_read_b128 {R(sl+20)}, v24 offset:{o+3072}",
              "s_mov_b64 exec, -1"]
        return r
    def Sbuf(self, i, h): return (vSA if i % 2 == 0 else vSB)[h]
    def S_mfma(self, i, h, cm):
        ksrc = vSL[i % 3] + 4 * h
        return f"{MFMA} {R(self.Sbuf(i,h),16)}, {R(ksrc)}, {R(vQ+4*h)}, {R(cm,16)}"
    def PV(self, i, h, f):
        S = self.Sbuf(i, h); sl = vSL[i % 3]
        c = "0" if (i == 0 and f == 0) else R(vO[h], 16)
        return f"{MFMA} {R(vO[h],16)}, {R(sl+8+8*h+4*f)}, {R(S+4*f)}, {c}"
    def expcvt(self, i, h):
        S = self.Sbuf(i, h)
        v = [f"v_exp_f32 v{S+r}, v{S+r}" for r in range(16)]
        v += [f"v_cvt_pk_bf16_f32 v{S+j}, v{S+2*j}, v{S+2*j+1}" for j in range(8)]
        return v

    def attention(self, n, cmask, extra_at=None, bg=None, per=1):
        a = self.a
        a("s_nop 0")
        a(self.S_mfma(0, 0, cmask(0)))
        a(self.S_mfma(0, 1, cmask(0)))
        def take():
            L = []
            for _ in range(per):
                if bg: L += bg.pop(0)
            return L
        for t in range(n + 1):
            ex = []
            if t == 0:
                ex += [(0, ["s_nop 7", "s_nop 3"])]
            if t >= 1:
                ex += [(1, [self.PV(t - 1, 1, 0)]), (7, [self.PV(t - 1, 1, 1)])]
                if t + 1 <= n:
                    pre = self.invalid_fix(t + 1) if self.fix_invalid else []
                    ex += [(14, pre + ["s_waitcnt lgkmcnt(0)", self.S_mfma(t + 1, 0, cmask(t + 1))])]
                ex += [(4, take()), (18, take())]
            for x in interleave(self.expcvt(t, 0), ex): a(x)
            if t == 0:
                if n == 8:
                    a(f"v_and_b32 {vT0}, 1, {vLANE}")
                    a(f"v_lshlrev_b32 {vT0}, 16, {vT0}")
                    a(f"v_add_u32 {vT0}, 4080, {vT0}")
                    self.probe(vT0, sNB0, "v25", "v26", 11)
                    self.nb_loads(a)
                a("s_waitcnt vmcnt(0)")
                self.check_or_poll([vSTG + 4 * f for f in range(8)], lambda t_: self.nb_loads(t_), vT0, 10)
                a(f"s_lshl_b32 {sT0}, {sW}, 13")
                a(f"v_add_u32 {vT0}, {sT0}, {vL16}")
                for f in range(8):
                    a(f"ds_write_b128 {vT0}, {R(vSTG+4*f)} offset:{L_KV + f*1024}")
                a("s_waitcnt lgkmcnt(0)")
                a("s_barrier")
                self.stamp(5)
                for x in self.rd_tile(1): a(x)
            if extra_at and t in extra_at: extra_at[t]()
            ex = []
            if t == 0:
                ex += [(1, [self.PV(0, 0, 0)]), (6, [self.PV(0, 0, 1)])]
                pre = self.invalid_fix(1) if self.fix_invalid else []
                ex += [(11, pre + ["s_waitcnt lgkmcnt(0)", self.S_mfma(1, 0, cmask(1))])]
                if 2 <= n: ex += [(12, self.rd_tile(2))]
                ex += [(17, [self.S_mfma(1, 1, cmask(1))])]
                ex += [(3, take()), (20, take())]
            else:
                if t + 2 <= n: ex += [(0, self.rd_tile(t + 2))]
                ex += [(2, [self.PV(t, 0, 0)]), (8, [self.PV(t, 0, 1)])]
                if t + 1 <= n: ex += [(14, [self.S_mfma(t + 1, 1, cmask(t + 1))])]
                ex += [(5, take()), (18, take())]
            for x in interleave(self.expcvt(t, 1), ex): a(x)
        a("s_nop 1")
        a(self.PV(n, 1, 0)); a(self.PV(n, 1, 1))
        while bg:
            for x in bg.pop(0): a(x)

    def invalid_fix(self, i):
        t = self.tail
        lf, lb = self.lab("fix"), self.lab("fixb")
        t.label(lf)
        t("s_nop 7\ns_nop 7")
        t(f"v_mov_b32 {vT0}, {NEG_INF:#x}")
        for r in range(16): t(f"v_mov_b32 v{vCZ+r}, {vT0}")
        t("s_nop 1")
        t(f"s_branch {lb}")
        return [f"s_cmp_eq_u32 {sT}, {i-1}", f"s_cbranch_scc1 {lf}", f"{lb}:"]

    def softmax_fallback(self, n, tdiag, tlast, lentry, lback):
        t = self.tail
        t.label(lentry)
        if self.dbg: t("s_add_u32 s85, s85, 1")
        S = vSA[0]; K = vSL[1]; V = vSL[0]; M = "v25"; AD = "v26"
        def tile_setup():
            t(f"s_cmp_eq_u32 {sT4}, 0")
            t(f"s_cselect_b32 {sT2}, {tdiag}, 4")
            t(f"s_cmp_eq_u32 {sT4}, {n}")
            t(f"s_cselect_b32 {sT2}, {tlast}, {sT2}")
            t(f"s_cmp_gt_u32 {sT4}, {sT}")
            t(f"s_cselect_b32 {sT2}, 5, {sT2}")
            t(f"s_lshl_b32 {sT2}, {sT2}, 8")
            for x in self.mask_load(vMASK, sT2, vT0): t(x)
            t(f"s_lshl_b32 {sT3}, {sT4}, 12")
            t(f"s_sub_u32 {sT3}, 32768, {sT3}")
            t(f"v_add_u32 {AD}, {sT3}, v24")
        for h in range(2):
            la, lb = self.lab("fbA"), self.lab("fbB")
            t(f"v_mov_b32 {M}, {NEG_INF:#x}")
            t(f"s_mov_b32 {sT4}, 0")
            t.label(la)
            tile_setup()
            t(f"ds_read_b128 {R(K)}, {AD} offset:{L_KV + h*1024}")
            t("s_waitcnt lgkmcnt(0)")
            t(f"{MFMA} {R(S,16)}, {R(K)}, {R(vQ+4*h)}, {R(vMASK,16)}")
            t("s_nop 7\ns_nop 7")
            for r in range(0, 16, 2): t(f"v_max3_f32 {M}, {M}, v{S+r}, v{S+r+1}")
            t(f"s_add_u32 {sT4}, {sT4}, 1")
            t(f"s_cmp_le_u32 {sT4}, {n}")
            t(f"s_cbranch_scc1 {la}")
            t(f"v_mov_b32 v27, {M}")
            t("s_nop 1")
            t(f"v_permlane32_swap_b32 {M}, v27")
            t("s_nop 1")
            t(f"v_max_f32 {M}, {M}, v27")
            for r in range(16): t(f"v_mov_b32 v{vO[h]+r}, 0")
            t(f"s_mov_b32 {sT4}, 0")
            t.label(lb)
            tile_setup()
            t(f"ds_read_b128 {R(K)}, {AD} offset:{L_KV + h*1024}")
            t(f"s_mov_b64 exec, {sH0 if h == 0 else sH1}")
            t(f"ds_read_b128 {R(V+8+8*h)}, {AD} offset:{L_KV + 2048}")
            t(f"ds_read_b128 {R(V+12+8*h)}, {AD} offset:{L_KV + 3072}")
            t("s_mov_b64 exec, -1")
            t("s_waitcnt lgkmcnt(0)")
            t(f"{MFMA} {R(S,16)}, {R(K)}, {R(vQ+4*h)}, {R(vMASK,16)}")
            t("s_nop 7\ns_nop 7")
            for r in range(16): t(f"v_sub_f32 v{S+r}, v{S+r}, {M}")
            for r in range(16): t(f"v_exp_f32 v{S+r}, v{S+r}")
            t("s_nop 0")
            for j in range(8): t(f"v_cvt_pk_bf16_f32 v{S+j}, v{S+2*j}, v{S+2*j+1}")
            t("s_nop 1")
            t(f"{MFMA} {R(vO[h],16)}, {R(V+8+8*h)}, {R(S)}, {R(vO[h],16)}")
            t(f"{MFMA} {R(vO[h],16)}, {R(V+12+8*h)}, {R(S+4)}, {R(vO[h],16)}")
            t("s_nop 7\ns_nop 7")
            t(f"s_add_u32 {sT4}, {sT4}, 1")
            t(f"s_cmp_le_u32 {sT4}, {n}")
            t(f"s_cbranch_scc1 {lb}")
        t(f"s_branch {lback}")

    def attn_finish(self, n, tdiag, tlast):
        a = self.a
        self.stamp(6)
        lfb, lbk = self.lab("fb"), self.lab("fbk")
        a("s_nop 7\ns_nop 3")
        a(f"v_max_f32 v25, v{vO[0]+8}, v{vO[1]}")
        a(f"v_min_f32 v26, v{vO[0]+8}, v{vO[1]}")
        a(f"v_add_f32 v27, v{vO[0]+8}, v{vO[1]}")
        a(f"v_cmp_nle_f32 vcc, v25, {sBIG}")
        a(f"v_cmp_nge_f32 {sMSK}, v26, {sTINY}")
        a(f"s_or_b64 vcc, vcc, {sMSK}")
        a(f"v_cmp_u_f32 {sMSK}, v27, v27")
        a(f"s_or_b64 vcc, vcc, {sMSK}")
        a(f"s_cbranch_vccnz {lfb}")
        a.label(lbk)
        self.softmax_fallback(n, tdiag, tlast, lfb, lbk)
        a(f"v_rcp_f32 v20, v{vO[0]+8}")
        a(f"v_rcp_f32 v21, v{vO[1]}")
        a("s_nop 0")
        for r in range(8): a(f"v_mul_f32 v{vO[0]+r}, v20, v{vO[0]+r}")
        for r in range(8): a(f"v_mul_f32 v{vO[1]+8+r}, v21, v{vO[1]+8+r}")
        d = vSA[0]
        for j in range(4): a(f"v_cvt_pk_bf16_f32 v{d+j}, v{vO[0]+2*j}, v{vO[0]+2*j+1}")
        for j in range(4): a(f"v_cvt_pk_bf16_f32 v{d+4+j}, v{vO[1]+8+2*j}, v{vO[1]+8+2*j+1}")
        a(f"v_min_u32 v{d}, 0xfffffffe, v{d}")
        a(f"v_min_u32 v{d+4}, 0xfffffffe, v{d+4}")
        self.store_msg([(R(d), sOBl, 0), (R(d + 4), sOBl, 1024)], vL16)
        self.stamp(7)

    def attn_A(self):
        a = self.a
        self.fix_invalid = True
        def first_mask():
            a(f"s_cmp_ge_u32 {sT}, 8")
            a(f"s_cselect_b32 {sT2}, 1, 5")
            a(f"s_lshl_b32 {sT2}, {sT2}, 8")
            for x in self.mask_load(vMASK, sT2, vT0): a(x)
        bg = self.wn_groups() + self.l0_groups()
        self.attention(8, lambda i: vMASK if i in (0, 8) else vCZ, {3: first_mask}, bg)
        self.attn_finish(8, 0, 1)

    def attn_B(self):
        self.fix_invalid = False
        self.attention(1, lambda i: vMASK if i == 0 else vCZ, None, self.wn_groups(), 1)
        self.attn_finish(1, 2, 3)

    def l0_groups(self):
        gs = []
        for mat in range(2):
            for g in range(4):
                for hf in range(2):
                    l = self.lab("l0g")
                    L = [f"s_cbranch_scc1 {l}"]
                    L = [f"s_cmp_lg_u32 {sL}, 0"] + L
                    L += [f"s_add_u32 {sT3}, {sW}, {g}", f"s_and_b32 {sT3}, {sT3}, 3", f"s_lshl_b32 {sT3}, {sT3}, 13",
                          f"s_add_u32 {sT3}, {sT3}, {sWOB}", f"s_add_u32 {sT3}, {sT3}, {mat*0x80000 + hf*4096}"]
                    for k in range(4):
                        L += [f"buffer_load_dwordx4 {AR(mat*128 + (g*8+hf*4+k)*4)}, {vL16}, {srd(SRD_WS)}, {sT3} offen offset:{k*1024}"]
                    L += [f"{l}:"]
                    gs.append(L)
        l = self.lab("l0g")
        L = [f"s_cmp_lg_u32 {sL}, 0", f"s_cbranch_scc1 {l}", "v_mov_b32 v28, -1", "v_mov_b32 v29, -1", "v_mov_b32 v30, -1", "v_mov_b32 v31, -1", f"s_add_u32 {sT3}, {sKVl}, {KV(2)-KV(0)}"]
        for f in range(4):
            L += [f"buffer_store_dwordx4 v[28:31], {vL16}, {srd(SRD_WS)}, {sT3} offen offset:{f*1024} sc1"]
        L += [f"{l}:"]
        gs.append(L)
        return gs

    def wn_groups(self):
        gs = []
        for n in range(6):
            L = []
            if n == 0: L += [f"s_mul_i32 {sT4}, {sW}, 24576", f"s_add_u32 {sT5}, {sT4}, {sWQN}"]
            L += [f"s_add_u32 m0, {sT4}, {L_W + n*4096}", f"s_add_u32 {sT3}, {sT5}, {n*4096}"]
            for k in range(4):
                L += [f"buffer_load_dwordx4 {vL16}, {srd(SRD_WN)}, {sT3} offen offset:{k*1024} lds"]
            gs.append(L)
        return gs

    def wn_touch(self, dst):
        return [f"s_and_b32 {sT0}, {sR}, 1", f"s_lshl_b32 {sT0}, {sT0}, 2", f"s_add_u32 {sT0}, {sT0}, {sW}",
                f"s_mul_i32 {sT0}, {sT0}, 12288", f"s_add_u32 {sT0}, {sT0}, {sWQN}", f"s_add_u32 {sT1}, {sT0}, 8192",
                f"v_lshlrev_b32 {vT0}, 7, {vLANE}",
                f"buffer_load_dword {dst}, {vT0}, {srd(SRD_WN)}, {sT0} offen",
                f"buffer_load_dword {dst}, {vT0}, {srd(SRD_WN)}, {sT1} offen"]

    def o_loads(self, t):
        t(f"s_add_u32 {sT1}, {sOIN}, 4096")
        for i in range(8):
            t(f"buffer_load_dwordx4 {R(vXF+4*i)}, {vL16}, {srd(SRD_WS)}, {sOIN if i < 4 else sT1} offen offset:{(i%4)*1024} sc1")

    def outproj(self):
        a = self.a
        ACC = 64
        self.stamp(8)
        a(f"s_lshl_b32 {sT0}, {sW}, 11")
        a(f"v_add_u32 {vT0}, {sT0}, {vL16}")
        a(f"ds_read_b128 v[96:99], {vT0} offset:{L_XR}")
        a(f"ds_read_b128 v[100:103], {vT0} offset:{L_XR+1024}")
        a(f"s_lshl_b32 {sT0}, {sW}, 13")
        a(f"v_add_u32 v104, {sT0}, {vL16}")
        for g in (1, 2, 3):
            a(f"s_add_u32 {sT0}, {sW}, {g}")
            a(f"s_and_b32 {sT0}, {sT0}, 3")
            a(f"s_lshl_b32 {sT0}, {sT0}, 13")
            a(f"v_add_u32 v{104+g}, {sT0}, {vL16}")
        a("s_waitcnt lgkmcnt(0)")
        for i in range(8):
            a(f"v_lshlrev_b32 v{ACC+2*i}, 16, v{96+i}")
            a(f"v_and_b32 v{ACC+2*i+1}, 0xffff0000, v{96+i}")
        a("s_waitcnt vmcnt(2)")
        a("s_barrier")
        l0 = self.lab("trp")
        a(f"s_cmp_lg_u32 {sL}, 0")
        a(f"s_cbranch_scc1 {l0}")
        a(f"s_lshr_b32 s99, s99, 1")
        self.flag_set("s99")
        self.set_tr_addr(True)
        self.colsum(1, tb=160)
        a.label(l0)
        a(f"v_and_b32 {vT0}, 3, {vLANE}")
        a(f"v_lshlrev_b32 {vT0}, 11, {vT0}")
        a(f"v_add_u32 {vT0}, 2032, {vT0}")
        self.probe(vT0, sOIN, "v20", "v21", 31)
        self.o_loads(a)
        a("s_waitcnt vmcnt(0)")
        self.check_or_poll([vXF + 4 * i for i in range(8)], lambda t: self.o_loads(t), vT0, 30)
        self.stamp(9)
        for i in range(8):
            a(f"ds_write_b128 v104, {R(vXF+4*i)} offset:{L_OT + i*1024}")
        lB, lD = self.lab("opB"), self.lab("opD")
        a(f"s_bitcmp1_b32 {sL}, 0")
        a(f"s_cbranch_scc1 {lB}")
        for mat in range(2):
            if mat: a.label(lB)
            for i in range(8):
                a(f"{MFMA} {R(ACC,16)}, {AR(mat*128+4*i)}, {R(vXF+4*i)}, {R(ACC,16)}")
            a("s_waitcnt lgkmcnt(0)")
            a("s_barrier")
            for i in range(8, 32):
                a(f"ds_read_b128 {R(vXF+4*i)}, v{104 + i//8} offset:{L_OT + (i%8)*1024}")
            for i in range(8, 32):
                a(f"s_waitcnt lgkmcnt({min(15, 31 - i)})")
                a(f"{MFMA} {R(ACC,16)}, {AR(mat*128+4*i)}, {R(vXF+4*i)}, {R(ACC,16)}")
            if not mat: a(f"s_branch {lD}")
        a.label(lD)
        self.stamp(10)
        a("s_nop 7\ns_nop 3")
        for j in range(8): a(f"v_cvt_pk_bf16_f32 v{96+j}, v{ACC+2*j}, v{ACC+2*j+1}")
        llast = self.lab("last")
        a(f"s_cmp_eq_u32 {sL}, 3")
        a(f"s_cbranch_scc1 {llast}")
        a(f"v_min_u32 v96, 0xfffffffe, v96")
        a(f"v_min_u32 v100, 0xfffffffe, v100")
        self.store_msg([("v[96:99]", sXBout, 0), ("v[100:103]", sXBout, 1024)], vL16)
        for i in range(8):
            a(f"v_lshlrev_b32 v{ACC+2*i}, 16, v{96+i}")
            a(f"v_and_b32 v{ACC+2*i+1}, 0xffff0000, v{96+i}")
        self.xstats_store(ACC, sSTout)
        a(f"s_add_u32 {sXBin}, {sXBin}, 0x200000")
        a(f"s_lshl_b32 {sT0}, {sW}, 11")
        a(f"v_add_u32 {vT0}, {sT0}, {vL16}")
        a(f"ds_write_b128 {vT0}, v[96:99] offset:{L_XR}")
        a(f"ds_write_b128 {vT0}, v[100:103] offset:{L_XR+1024}")
        return llast

    def build(self):
        a = self.a
        self.prologue()
        a.label("L_layer")
        self.gemm()
        lb, ld = self.lab("aB"), self.lab("aD")
        a(f"s_bitcmp1_b32 {sL}, 0")
        a(f"s_cbranch_scc1 {lb}")
        self.attn_A()
        a(f"s_branch {ld}")
        a.label(lb)
        self.attn_B()
        a.label(ld)
        llast = self.outproj()
        a(f"s_add_u32 {sL}, {sL}, 1")
        a(f"s_add_u32 {sXBout}, {sXBout}, 0x200000")
        a(f"s_add_u32 {sOBl}, {sOBl}, 0x200000")
        a(f"s_add_u32 {sOIN}, {sOIN}, 0x200000")
        a(f"s_add_u32 {sKVl}, {sKVl}, 0x400000")
        a(f"s_add_u32 {sSTin}, {sSTin}, 0x40000")
        a(f"s_add_u32 {sSTout}, {sSTout}, 0x40000")
        a(f"s_xor_b32 {sCSF}, {sCSF}, {L_CSF ^ (L_CSF + 768)}")
        a(f"s_bitcmp1_b32 {sL}, 0")
        a(f"s_mov_b32 {sT1}, {16*98304}")
        a(f"s_cselect_b32 {sT0}, {(-16*98304) & 0xffffffff}, {sT1}")
        a(f"s_add_u32 {sWQN}, {sWQN}, {sT0}")
        a(f"s_cmp_eq_u32 {sL}, 3")
        a(f"s_cselect_b32 s{SRD_WN+2}, 0, s{SRD_WN+2}")
        a("s_branch L_layer")
        a.label(llast)
        a(f"v_lshlrev_b32 {vT0}, 10, {vC}")
        a(f"v_lshl_add_u32 {vT0}, {vH}, 3, {vT0}")
        a(f"s_lshl_b32 {sT0}, {sRT}, 15")
        a(f"s_lshl_b32 {sT1}, {sCT}, 6")
        a(f"s_add_u32 {sT0}, {sT0}, {sT1}")
        for q in range(4):
            a(f"buffer_store_dwordx2 {R(96+2*q,2)}, {vT0}, {srd(SRD_OUT)}, {sT0} offen offset:{q*16}")
        if self.dbg:
            self.stamp(11)
            a("s_memtime s[96:97]\ns_waitcnt lgkmcnt(0)\nv_writelane_b32 v0, s96, 61")
            a("v_writelane_b32 v0, s84, 56\nv_writelane_b32 v0, s85, 57\nv_writelane_b32 v0, s86, 58\nv_writelane_b32 v0, s87, 59")
            a(f"s_lshl_b32 {sT0}, s2, 10")
            a(f"s_lshl_b32 {sT1}, {sW}, 8")
            a(f"s_add_u32 {sT0}, {sT0}, {sT1}")
            a(f"s_add_u32 {sT0}, {sT0}, {WS_DBG + 0x10000}")
            a(f"v_lshlrev_b32 v22, 2, {vLANE}")
            a(f"buffer_store_dword v0, v22, {srd(SRD_WS)}, {sT0} offen")
            a(f"v_mov_b32 v20, {sERR}")
            a(f"v_mov_b32 v21, {sFAST}")
            a(f"s_lshl_b32 {sT0}, s2, 5")
            a(f"s_lshl_b32 {sT1}, {sW}, 3")
            a(f"s_add_u32 {sT0}, {sT0}, {sT1}")
            a(f"s_add_u32 {sT0}, {sT0}, {WS_DBG}")
            a("v_mov_b32 v22, 0")
            a("s_mov_b64 exec, 1")
            a(f"buffer_store_dwordx2 v[20:21], v22, {srd(SRD_WS)}, {sT0} offen")
        a.label("L_end")
        a("s_endpgm")
        return a.text() + self.tail.text() + "L_codeend:\n"

HEADER = open("interleave_layers__sliding_block__sliding_local_dilated__prompt.s.ref").read().split("; Override launch")[0]

def full(dbg=False):
    g = Gen(dbg)
    body = g.build()
    return (HEADER + f"; @launch grid=(256,1,1) block=(256,1,1) lds={LDS_BYTES}\n" +
            '.amdgcn_target "amdgcn-amd-amdhsa--gfx950"\n' + f""".text
.globl {NAME}
.p2align 8
.type {NAME},@function
{NAME}:
{body}
.section .rodata,"a"
.p2align 6
.amdhsa_kernel {NAME}
  .amdhsa_next_free_vgpr 512
  .amdhsa_next_free_sgpr 102
  .amdhsa_accum_offset 256
  .amdhsa_group_segment_fixed_size 0
  .amdhsa_kernarg_size 72
  .amdhsa_user_sgpr_count 2
  .amdhsa_user_sgpr_kernarg_segment_ptr 1
  .amdhsa_system_sgpr_workgroup_id_x 1
.end_amdhsa_kernel
""")

if __name__ == "__main__":
    dbg = "--dbg" in sys.argv
    out = [x for x in sys.argv[1:] if not x.startswith("--")]
    txt = full(dbg)
    open(out[0], "w").write(txt)
    from asmlib import build
    build(txt, out[0].replace(".s", ".co"), NAME)
    print("ok", len(txt.splitlines()), "lines")
```

```python
import sys, os
sys.path.insert(0, "work")
from asmlib import Asm

NAME = "interleave_layers__sliding_block__sliding_local_dilated__prompt_kernel"

XB = lambda l: (l - 1) * 0x200000
OB = lambda l: 0x600000 + l * 0x200000
KV = lambda l: 0xE00000 + l * 0x400000
ST = lambda l: 0x1E00000 + l * 0x40000
WOF = 0x1F00000
WQF = 0x2000000
WS_USED = 0x2300000
WS_DBG = 0x2400000
WS_SIZE = 0x2800000
TP = 4128
PO = [0, 1024, 2048, 3088]
L_KV = 0
L_OT = 0
L_FW = 49536
L_XR = 49664
L_CSF = 57856
L_RS = 59392
L_MT = 59904
L_SCR = 61440
def CH(i): return (i // 4) * TP + PO[i % 4]
L_W = 65536
LDS_BYTES = 160 * 1024
sW, sR, sM, sL, sFAST = "s3", "s4", "s5", "s6", "s7"
SRD_X, SRD_WQA, SRD_WQB, SRD_WOA, SRD_WOB, SRD_OUT, SRD_DBG, SRD_WS, SRD_WN = 8, 12, 16, 20, 24, 28, 32, 36, 40
def srd(i): return f"s[{i}:{i+3}]"
sCHK = "s[44:45]"
sT0, sT1, sT2, sT3, sT4, sT5 = "s46", "s47", "s48", "s49", "s50", "s51"
sTRY = "s52"
sXCC = "s53"
sT = "s54"
sRT = "s55"
sCT = "s56"
sXBin, sOBl, sKVl, sSTin, sXBout, sSTout = "s57", "s58", "s59", "s60", "s61", "s62"
sOIN = "s63"
sLO32 = "s[66:67]"
sMSK = "s[68:69]"
sCSF = "s70"
sERR = "s71"
sPT = 72
sH0 = "s[72:73]"
sH1 = "s[74:75]"
sNB0, sNB1 = "s76", "s77"
sL0EX = "s[84:85]"
sWNEX = "s[86:87]"
sWQN = "s90"
sWOB = "s91"
sBIG, sTINY = "s100", "s101"
sU0, sU1, sU2, sU3 = "s92", "s93", "s94", "s95"
vTID, vLANE, vC, vH, vL16 = "v0", "v1", "v2", "v3", "v4"
vTR = 5
vWD = "v11"
vRSTD, vRSTDC = "v12", "v13"
vT0, vT1 = "v14", "v15"
vCSA = "v15"
vQ = 16
vMASK = 232
vCZ = 48
vSA = (64, 80)
vO = (96, 112)
vSB = (128, 144)
vSL = (160, 184, 208)
vXF = 128
vSTG = 64
vKA = "v248"
vVA = ("v249", "v250")
ACC_K, ACC_V, ACC_Q = 64, 80, 96
WF = [24, 32, 40, 48]
W2 = [32, 36, 40, 44, 24, 28]
vRS = 112
vSTAT = 112
vOWNK = 64
vOWNV = 80
SPIN_LIMIT = 40000
NEG_INF = 0xFF800000
QSCALE = 0.25 * 1.4426950408889634
CODE_KB = 40
DIRECTNB = int(os.environ.get('DIRECTNB', '1'))

def R(b, n=4): return f"v[{b}:{b+n-1}]"
def AR(b, n=4): return f"a[{b}:{b+n-1}]"
def f32hex(x):
    import struct
    return "0x%08x" % struct.unpack("<I", struct.pack("<f", x))[0]
MFMA = "v_mfma_f32_32x32x16_bf16"

def interleave(valu, extras):
    out = []
    ex = sorted(extras, key=lambda e: e[0])
    k = 0
    for i, v in enumerate(valu + [None]):
        while k < len(ex) and ex[k][0] <= i:
            out += ex[k][1]; k += 1
        if v is not None: out.append(v)
    while k < len(ex):
        out += ex[k][1]; k += 1
    return out

class Gen:
    def __init__(self, dbg=False):
        self.a = Asm()
        self.tail = Asm()
        self.dbg = dbg
        self.nl = 0
    def lab(self, p):
        self.nl += 1
        return f"L_{p}_{self.nl}"

    def stamp(self, p, inloop=True, alt=False):
        if not self.dbg: return
        if inloop and p in (7, 8) and bool(os.environ.get("P1ST")) != alt: return
        if not inloop and p > 0 and bool(os.environ.get("PST")) != alt: return
        a = self.a
        a("s_memtime s[96:97]" if os.environ.get("CYC") else "s_memrealtime s[96:97]")
        if inloop:
            a(f"s_mul_i32 s98, {sL}, 12")
            a(f"s_add_u32 m0, s98, {p + 8}")
        else:
            a(f"s_mov_b32 m0, {p}")
        a("s_waitcnt lgkmcnt(0)")
        a("v_writelane_b32 v0, s96, m0")

    def maxtree(self, a, regs, dst):
        regs = list(regs)
        a(f"v_max3_u32 {dst}, v{regs[0]}, v{regs[1]}, v{regs[2]}")
        i = 3
        while i < len(regs):
            if i + 1 < len(regs):
                a(f"v_max3_u32 {dst}, {dst}, v{regs[i]}, v{regs[i+1]}"); i += 2
            else:
                a(f"v_max_u32 {dst}, {dst}, v{regs[i]}"); i += 1
    def check_or_poll(self, chk_regs, reload_fn, tmp, errcode):
        a, t = self.a, self.tail
        slow, back, loop = self.lab("slow"), self.lab("back"), self.lab("sloop")
        self.maxtree(a, chk_regs, tmp)
        a(f"v_cmp_eq_u32 vcc, -1, {tmp}")
        a(f"s_and_b64 vcc, vcc, {sCHK}")
        a(f"s_cbranch_vccnz {slow}")
        a.label(back)
        t.label(slow)
        t(f"s_mov_b32 {sTRY}, 0")
        t.label(loop)
        if self.dbg:
            c = "s84" if errcode <= 4 else "s85" if errcode == 5 else "s86" if errcode == 10 else "s87"
            t(f"s_add_u32 {c}, {c}, 1")
        reload_fn(t)
        t("s_waitcnt vmcnt(0)")
        self.maxtree(t, chk_regs, tmp)
        t(f"v_cmp_eq_u32 vcc, -1, {tmp}")
        t(f"s_cbranch_vccz {back}")
        t(f"s_add_u32 {sTRY}, {sTRY}, 1")
        t(f"s_cmp_lt_u32 {sTRY}, {SPIN_LIMIT}")
        t(f"s_cbranch_scc1 {loop}")
        t(f"s_mov_b64 {sCHK}, 0")
        t(f"s_mov_b32 {sERR}, {errcode}")
        t(f"s_branch {back}")

    def probe(self, voff, sbase, va, vb, errcode):
        a = self.a
        loop, done, tmo = self.lab("pl"), self.lab("pd"), self.lab("pt")
        ld = lambda v: a(f"buffer_load_dword {v}, {voff}, {srd(SRD_WS)}, {sbase} offen sc1")
        a(f"s_mov_b32 {sTRY}, 0")
        ld(va);
        a("s_sleep 1")
        ld(vb)
        a.label(loop)
        for v in (va, vb):
            a("s_waitcnt vmcnt(1)")
            a(f"v_cmp_eq_u32 vcc, -1, {v}")
            a(f"s_and_b64 vcc, vcc, {sCHK}")
            a(f"s_cbranch_vccz {done}")
            ld(v)
        a(f"s_add_u32 {sTRY}, {sTRY}, 1")
        a(f"s_cmp_lt_u32 {sTRY}, {SPIN_LIMIT}")
        a(f"s_cbranch_scc1 {loop}")
        a(f"s_mov_b64 {sCHK}, 0")
        a(f"s_mov_b32 {sERR}, {errcode}")
        a.label(done)

    def store_msg(self, data, voff, width="dwordx4"):
        a, t = self.a, self.tail
        l1, l2 = self.lab("stsl"), self.lab("stdn")
        a(f"s_cmp_eq_u32 {sFAST}, 0")
        a(f"s_cbranch_scc1 {l1}")
        for d, s, im in data:
            o = f" offset:{im}" if im else ""
            a(f"buffer_store_{width} {d}, {voff}, {srd(SRD_WS)}, {s} offen{o}")
        a.label(l2)
        t.label(l1)
        for d, s, im in data:
            o = f" offset:{im}" if im else ""
            t(f"buffer_store_{width} {d}, {voff}, {srd(SRD_WS)}, {s} offen{o} sc1")
        t(f"s_branch {l2}")

    def w_dma(self, cts):
        a = self.a
        a(f"s_mul_i32 {sT0}, {sW}, {16*3072}")
        a(f"s_lshl_b32 {sT1}, {sM}, 6")
        a(f"s_add_u32 {sT0}, {sT0}, {sT1}")
        a(f"s_lshl_b32 {sT1}, {sW}, 10")
        for i in range(8):
            for ct in cts:
                a(f"s_add_u32 m0, {sT1}, {L_W + ct*32768 + i*4096}")
                a(f"s_add_u32 {sT2}, {sT0}, {i*64*3072 + ct*1024}")
                a(f"buffer_load_dwordx4 {vWD}, {srd(SRD_WN)}, {sT2} offen lds")

    def colsum(self, mat, tb=64, skipq=False):
        a = self.a
        a(f"s_lshl_b32 {sT0}, {sW}, 13")
        a(f"v_mov_b32 v20, 0x3f803f80")
        jobs = [(ct, hf) for ct in range(3) for hf in range(2)]
        def rd(n):
            ct, hf = jobs[n]; b = tb + 16 * (n % 2)
            a(f"v_add_u32 {vT0}, {sT0}, v{vTR+2*ct}")
            a(f"v_add_u32 {vT1}, {sT0}, v{vTR+2*ct+1}")
            for s in range(4):
                a(f"ds_read_b64_tr_b16 {R(b+4*s,2)}, {vT0} offset:{(hf*4+s)*1024}")
                a(f"ds_read_b64_tr_b16 {R(b+4*s+2,2)}, {vT1} offset:{(hf*4+s)*1024}")
        for ct in range(3): a(f"v_mov_b32 v{21+ct}, 0")
        rd(0)
        for n in range(6):
            if n + 1 < 6: rd(n + 1)
            a(f"s_waitcnt lgkmcnt({8 if n + 1 < 6 else 0})")
            ct = jobs[n][0]; b = tb + 16 * (n % 2)
            for j in range(16):
                a(f"v_dot2_f32_bf16 v{21+ct}, v{b+j}, v20, v{21+ct}")
        a(f"v_lshlrev_b32 {vT0}, 2, {vLANE}")
        a(f"s_lshl_b32 {sT0}, {sW}, 8")
        a(f"v_add_u32 {vT0}, {sT0}, {vT0}")
        a("s_nop 2")
        for ct in range(3):
            a(f"ds_write_b32 {vT0}, v{21+ct} offset:{L_SCR + ct*1024}")
        a("s_waitcnt lgkmcnt(0)")
        a("s_barrier")
        lskip = self.lab("cssk")
        a(f"s_cmp_ge_u32 {sW}, 3")
        a(f"s_cbranch_scc1 {lskip}")
        a(f"s_lshl_b32 {sT0}, {sW}, 10")
        a(f"v_lshlrev_b32 {vT0}, 2, {vC}")
        a(f"v_add_u32 {vT0}, {sT0}, {vT0}")
        t = tb
        for p in range(8):
            a(f"ds_read_b32 v{t+p}, {vT0} offset:{L_SCR + p*128}")
        a("s_waitcnt lgkmcnt(0)")
        for p in range(1, 8):
            a(f"v_add_f32 v{t}, v{t}, v{t+p}")
        a(f"""
        v_cvt_pk_bf16_f32 v{t+1}, v{t}, v{t}
        v_and_b32 v{t+2}, 0xffff0000, v{t+1}
        v_sub_f32 v{t+3}, v{t}, v{t+2}
        v_cvt_pk_bf16_f32 v{t+4}, v{t+3}, v{t+3}
        v_and_b32 v{t+5}, 0xffff0000, v{t+4}
        v_sub_f32 v{t+6}, v{t+3}, v{t+5}
        v_cvt_pk_bf16_f32 v{t+7}, v{t+6}, v{t+6}
        v_lshrrev_b32 v{t+8}, 16, v{t+2}
        v_or_b32 v{t+8}, v{t+8}, v{t+5}
        v_and_b32 v{t+9}, 0xffff, v{t+7}
        s_lshl_b32 {sT0}, {sW}, 8
        v_lshlrev_b32 {vT0}, 3, {vC}
        v_add_u32 {vT0}, {sT0}, {vT0}
        ds_write_b64 {vT0}, v[{t+8}:{t+9}] offset:{L_CSF + mat*768}
        s_waitcnt lgkmcnt(0)
        """)
        a.label(lskip)

    def set_tr_addr(self, permuted):
        a = self.a
        a(f"v_bfe_u32 {vT0}, {vLANE}, 2, 2")
        a(f"v_lshlrev_b32 {vT0}, 6, {vT0}")
        a(f"v_bfe_u32 {vT1}, {vLANE}, 4, 1")
        a(f"v_lshl_add_u32 {vT0}, {vT1}, 5, {vT0}")
        a(f"v_and_b32 {vT1}, 3, {vLANE}")
        a(f"v_lshl_add_u32 {vT0}, {vT1}, 3, {vT0}")
        a(f"v_lshl_add_u32 {vT0}, {vH}, {8 if permuted else 9}, {vT0}")
        for ct in range(3):
            a(f"v_add_u32 v{vTR+2*ct}, {L_W + ct*32768}, {vT0}")
            a(f"v_add_u32 v{vTR+2*ct+1}, {L_W + ct*32768 + (512 if permuted else 256)}, {vT0}")

    def xstats_store(self, src16, soff_s):
        a = self.a
        a(f"v_add_f32 v20, v{src16}, v{src16+1}")
        a(f"v_mul_f32 v21, v{src16}, v{src16}")
        a(f"v_fmac_f32 v21, v{src16+1}, v{src16+1}")
        for i in range(2, 16):
            a(f"v_add_f32 v20, v20, v{src16+i}")
            a(f"v_fmac_f32 v21, v{src16+i}, v{src16+i}")
        a(f"v_lshlrev_b32 {vT0}, 3, {vLANE}")
        a(f"s_lshl_b32 {sT0}, {sW}, 9")
        a(f"v_add_u32 {vT1}, {sT0}, {vT0}")
        a(f"ds_write_b64 {vT1}, v[20:21] offset:{L_SCR}")
        a("s_waitcnt lgkmcnt(0)")
        a("s_barrier")
        lsk = self.lab("xs")
        a(f"s_cmp_lg_u32 {sW}, 1")
        a(f"s_cbranch_scc1 {lsk}")
        for k, w in enumerate((0, 2, 3)):
            a(f"ds_read_b64 v[{22+2*k}:{23+2*k}], {vT0} offset:{L_SCR + w*512}")
        a(f"v_lshlrev_b32 {vT0}, 4, {vC}")
        for k in range(3):
            a(f"s_waitcnt lgkmcnt({2-k})")
            a(f"v_add_f32 v20, v20, v{22+2*k}")
            a(f"v_add_f32 v21, v21, v{23+2*k}")
        a("v_mov_b32 v22, v20")
        a("v_mov_b32 v23, v21")
        a("s_nop 1")
        a("v_permlane32_swap_b32 v20, v22")
        a("v_permlane32_swap_b32 v21, v23")
        a("s_nop 1")
        a("v_add_f32 v20, v20, v22")
        a("v_add_f32 v21, v21, v23")
        a("v_min_u32 v20, 0xfffffffe, v20")
        a(f"s_mov_b64 exec, {sLO32}")
        self.store_msg([("v[20:21]", soff_s, 0)], vT0, width="dwordx2")
        a("s_mov_b64 exec, -1")
        a.label(lsk)

    def mask_tables(self, a):
        a(f"v_mov_b32 v117, {NEG_INF:#x}")
        a(f"v_lshlrev_b32 {vT0}, 2, {vLANE}")
        a(f"v_cmp_ge_u32 vcc, 32, {vLANE}")
        a(f"v_sub_u32 {vT1}, 32, {vLANE}")
        a(f"v_cndmask_b32_e64 v112, v117, 0, vcc")
        a(f"v_cndmask_b32_e64 v113, 0, v117, vcc")
        a(f"v_and_b32 v114, 0xfffffff1, {vT1}")
        a(f"v_cmp_eq_u32 vcc, 0, v114")
        a(f"v_add_u32 {vT1}, 32, {vT1}")
        a(f"v_and_b32 v115, 0xfffffff1, {vT1}")
        a(f"v_cndmask_b32_e64 v114, v117, 0, vcc")
        a(f"v_cmp_eq_u32 vcc, 0, v115")
        a(f"v_mov_b32 v116, 0")
        a("s_nop 0")
        a(f"v_cndmask_b32_e64 v115, v117, 0, vcc")
        for k in range(6):
            a(f"ds_write_b32 {vT0}, v{112+k} offset:{L_MT + k*256}")

    def mask_load(self, dst, tbl, tmp):
        L = [f"v_lshlrev_b32 {tmp}, 2, {vH}", f"v_sub_u32 {tmp}, {tmp}, {vC}", f"v_lshlrev_b32 {tmp}, 2, {tmp}"]
        if isinstance(tbl, int): L += [f"v_add_u32 {tmp}, {L_MT + 128 + tbl*256}, {tmp}"]
        else: L += [f"v_add_u32 {tmp}, {L_MT + 128}, {tmp}", f"v_add_u32 {tmp}, {tbl}, {tmp}"]
        for k in range(8):
            b0 = 8 * (k // 2) + 2 * (k % 2)
            L += [f"ds_read2_b32 {R(dst+2*k,2)}, {tmp} offset0:{b0} offset1:{b0+1}"]
        return L

    def flag_set(self, sval, a=None, va=vT0, vb="v20"):
        a = a or self.a
        lsk = self.lab("hs")
        a(f"s_cmp_lg_u32 {sW}, 0")
        a(f"s_cbranch_scc1 {lsk}")
        a(f"v_mov_b32 {va}, {sval}")
        a(f"v_mov_b32 {vb}, 0")
        a("s_mov_b64 exec, 1")
        a(f"buffer_atomic_or {va}, {vb}, {srd(SRD_DBG)}, {sU3} offen sc1")
        a("s_mov_b64 exec, -1")
        a.label(lsk)

    def prologue(self):
        a = self.a
        a(f"""
        s_cmp_ge_u32 s2, 256
        s_cbranch_scc1 L_end
        s_load_dwordx16 s[{sPT}:{sPT+15}], s[0:1], 0
        s_load_dwordx2 s[88:89], s[0:1], 64
        s_getpc_b64 s[40:41]
        L_pc:
        v_and_b32 {vLANE}, 63, v0
        v_lshrrev_b32 {vT0}, 6, v0
        v_and_b32 {vC}, 31, v0
        v_readfirstlane_b32 {sW}, {vT0}
        s_and_b32 s41, s41, 0xffff
        s_mov_b32 s42, L_codeend-L_pc
        s_mov_b32 s43, 0x20000
        v_lshlrev_b32 {vT1}, 7, {vLANE}
        s_lshr_b32 {sT1}, s2, 3
        s_lshl_b32 {sT0}, {sT1}, 2
        s_add_u32 {sT0}, {sT0}, {sW}
        s_lshl_b32 {sT0}, {sT0}, 9
        s_mov_b64 exec, 15
        buffer_load_dword v24, {vT1}, s[40:43], {sT0} offen
        s_mov_b64 exec, -1
        v_bfe_u32 {vH}, v0, 5, 1
        v_lshlrev_b32 {vL16}, 4, {vLANE}
        s_and_b32 {sT0}, s2, 7
        s_lshl_b32 {sR}, {sT0}, 1
        s_lshr_b32 {sT2}, {sT1}, 4
        s_add_u32 {sR}, {sR}, {sT2}
        s_and_b32 {sM}, {sT1}, 15
        s_getreg_b32 {sXCC}, hwreg(HW_REG_XCC_ID)
        s_and_b32 {sXCC}, {sXCC}, 15
        s_mov_b32 {sL}, 0
        s_mov_b32 {sFAST}, 0
        s_mov_b32 {sERR}, 0
        s_mov_b64 {sCHK}, 0
        s_mov_b32 s66, -1
        s_mov_b32 s67, 0
        s_lshl_b32 {sT}, {sR}, 2
        s_lshr_b32 {sT0}, {sM}, 2
        s_add_u32 {sRT}, {sT}, {sT0}
        s_add_u32 {sT}, {sT}, {sW}
        s_and_b32 {sCT}, {sM}, 3
        s_lshl_b32 {sCT}, {sCT}, 2
        s_add_u32 {sCT}, {sCT}, {sW}
        v_lshrrev_b32 {vT0}, 2, {vLANE}
        v_mul_u32_u24 {vWD}, 3072, {vT0}
        v_and_b32 {vT0}, 3, {vLANE}
        v_lshl_add_u32 {vWD}, {vT0}, 4, {vWD}
        s_and_b32 {sT0}, {sM}, 1
        s_lshl_b32 {sT0}, {sT0}, 2
        s_and_b32 {sT1}, {sR}, 1
        s_lshl_b32 {sT1}, {sT1}, 1
        s_add_u32 {sT0}, {sT0}, {sT1}
        s_lshr_b32 {sT1}, {sM}, 1
        s_add_u32 s64, {sT0}, {sT1}
        s_mul_i32 s65, {sW}, {16*3072}
        s_lshl_b32 {sT1}, {sM}, 6
        s_add_u32 s65, s65, {sT1}
        s_lshl_b32 s98, {sW}, 10
        v_lshrrev_b32 {vT0}, 3, {vLANE}
        v_lshlrev_b32 v16, 10, {vT0}
        v_and_b32 {vT0}, 7, {vLANE}
        v_lshrrev_b32 {vT1}, 4, {vLANE}
        v_xor_b32 {vT0}, {vT0}, {vT1}
        v_lshl_add_u32 v16, {vT0}, 4, v16
        v_xor_b32 v17, 64, v16
        s_lshl_b32 {sU0}, {sT}, 15
        s_lshl_b32 {sU2}, {sW}, 14
        s_waitcnt lgkmcnt(0)
        """)
        self.stamp(0, False)
        if self.dbg:
            a("s_memtime s[96:97]\ns_waitcnt lgkmcnt(0)\nv_writelane_b32 v0, s96, 60")
        def mk(d, p, size):
            a(f"s_mov_b32 s{d}, s{p}")
            a(f"s_and_b32 s{d+1}, s{p+1}, 0xffff")
            a(f"s_mov_b32 s{d+2}, {size}")
            a(f"s_mov_b32 s{d+3}, 0x20000")
        vq = ["code"]
        def wait(tag):
            n = len(vq) - 1 - max(i for i, t in enumerate(vq) if t == tag)
            a(f"s_waitcnt vmcnt({n})")
        def wd_items(p):
            its = []
            for n, ct in enumerate((1, 2, 0)):
                def f(n=n, ct=ct):
                    if n == 0:
                        a(f"s_add_u32 {sT4}, s64, {p}")
                        a(f"s_and_b32 {sT4}, {sT4}, 7")
                        a(f"s_mul_i32 {sT4}, {sT4}, {64*3072}")
                        a(f"s_add_u32 {sT4}, {sT4}, s65")
                    a(f"s_add_u32 m0, s98, {L_W + ct*32768 + p*4096}")
                    a(f"s_add_u32 {sT2}, {sT4}, {ct*1024}")
                    a(f"buffer_load_dwordx4 {vWD}, {srd(SRD_WQA)}, {sT2} offen lds")
                    vq.append(f"w{p}")
                its.append(f)
            return its
        def xd_items(p):
            its = []
            for d in range(4):
                def f(d=d):
                    if d == 0:
                        a(f"s_add_u32 {sT4}, s64, {p}")
                        a(f"s_and_b32 {sT4}, {sT4}, 7")
                        a(f"s_lshl_b32 {sT4}, {sT4}, 7")
                        a(f"s_add_u32 {sT4}, {sT4}, {sU0}")
                    a(f"s_add_u32 m0, {sU2}, {(p%4)*4096 + d*1024}")
                    a(f"s_add_u32 {sT2}, {sT4}, {d*8192}")
                    a(f"buffer_load_dwordx4 v{16 + d%2}, {srd(SRD_X)}, {sT2} offen lds")
                    vq.append(f"x{p}")
                its.append(f)
            return its
        def wd(p):
            for f in wd_items(p): f()
        def xd(p):
            for f in xd_items(p): f()
        LA = int(os.environ.get("LA", "2"))
        mk(SRD_WQA, sPT + 2, 512 * 3072)
        mk(SRD_X, sPT + 0, 2048 * 1024)
        if int(os.environ.get("TCH", "1")):
            a(f"s_lshr_b32 {sT0}, s2, 3")
            a(f"s_lshl_b32 {sT0}, {sT0}, 2")
            a(f"s_add_u32 {sT0}, {sT0}, {sW}")
            a(f"s_mul_i32 {sT0}, {sT0}, {12*1024}")
            a(f"v_lshlrev_b32 {vT0}, 10, {vLANE}")
            a("s_mov_b64 exec, 0xfff")
            a(f"buffer_load_dword v25, {vT0}, {srd(SRD_WQA)}, {sT0} offen offset:384")
            a("s_mov_b64 exec, -1")
            vq.append("tch")
        wd(0); xd(0)
        mk(SRD_WOA, sPT + 4, 512 * 1024)
        mk(SRD_WOB, sPT + 10, 512 * 1024)
        mk(SRD_WQB, sPT + 8, 512 * 3072)
        self.wqf_loads(); vq.extend(["wqf"] * 3)
        self.wof_loads2(); vq += ["wof"] * 8
        self.stamp(5, False)
        mk(SRD_WS, 88, WS_SIZE if self.dbg else WS_USED)
        a(f"s_lshl_b32 {sT0}, {sT}, 15")
        a(f"s_lshl_b32 {sT1}, {sM}, 11")
        a(f"s_add_u32 {sOBl}, {sT0}, {sT1}")
        a(f"s_add_u32 {sOBl}, {sOBl}, {OB(0)}")
        a(f"s_lshl_b32 {sT0}, {sT}, 16")
        a(f"s_lshl_b32 {sT1}, {sM}, 12")
        a(f"s_add_u32 {sKVl}, {sT0}, {sT1}")
        a(f"s_add_u32 {sKVl}, {sKVl}, {KV(0)}")
        a(f"v_mov_b32 {vT0}, {sOBl}")
        a(f"s_add_u32 {sT0}, {sKVl}, 0x400000")
        a(f"v_writelane_b32 {vT0}, {sKVl}, 1")
        a(f"v_writelane_b32 {vT0}, {sT0}, 2")
        a(f"v_writelane_b32 {vT0}, s100, 3")
        a(f"v_writelane_b32 {vT0}, s101, 4")
        a("s_mov_b64 exec, 31")
        a(f"buffer_load_dword v107, {vT0}, {srd(SRD_WS)}, 0 offen sc1")
        a("s_mov_b64 exec, -1")
        vq.append("pt")
        def clr_items():
            its = [self.layer_start]
            for so, off in [(sOBl, 0), (sOBl, 1024)] + [(sKVl, f * 1024) for f in range(4)]:
                def f(so=so, off=off):
                    a(f"buffer_store_dwordx4 v[20:23], {vL16}, {srd(SRD_WS)}, {so} offen offset:{off} sc1"); vq.append("clr")
                its.append(f)
            return its
        mk(SRD_OUT, sPT + 12, 2048 * 1024)
        mk(SRD_DBG, sPT + 14, 256)
        mk(SRD_WN, 88, WS_SIZE if self.dbg else WS_USED)
        a(f"s_lshl_b32 {sT0}, {sRT}, 10")
        a(f"s_and_b32 {sT1}, {sM}, 2")
        a(f"s_lshl_b32 {sT1}, {sT1}, 8")
        a(f"s_add_u32 {sSTout}, {sT0}, {sT1}")
        a(f"s_and_b32 {sT1}, {sM}, 1")
        a(f"s_lshl_b32 {sT1}, {sT1}, 3")
        a(f"s_add_u32 {sSTout}, {sSTout}, {sT1}")
        a(f"s_add_u32 {sSTout}, {sSTout}, {ST(1)}")
        a(f"s_lshl_b32 {sT0}, {sT}, 10")
        a(f"s_add_u32 {sSTin}, {sT0}, {ST(0)}")
        a(f"s_lshl_b32 {sT0}, {sT}, 15")
        a(f"s_add_u32 {sXBin}, {sT0}, {(XB(1) - 0x200000) & 0xffffffff}")
        a(f"s_lshl_b32 {sT0}, {sRT}, 15")
        a(f"s_lshl_b32 {sT1}, {sCT}, 11")
        a(f"s_add_u32 {sXBout}, {sT0}, {sT1}")
        a(f"s_add_u32 {sXBout}, {sXBout}, {XB(1)}")
        a(f"s_lshl_b32 {sT1}, {sW}, 13")
        a(f"s_add_u32 {sOIN}, {sT0}, {sT1}")
        a(f"s_add_u32 {sOIN}, {sOIN}, {OB(0)}")
        a(f"s_mov_b32 {sCSF}, {L_CSF}")
        a(f"s_lshl_b32 {sWOB}, {sCT}, 15")
        a(f"s_add_u32 {sWOB}, {sWOB}, {WOF}")
        a(f"s_mul_i32 {sWQN}, {sM}, 98304")
        a(f"s_add_u32 {sWQN}, {sWQN}, {WQF + 16*98304}")
        a(f"s_lshl_b32 {sT0}, {sR}, 4")
        a(f"s_add_u32 {sT0}, {sT0}, {sM}")
        a(f"s_and_b32 {sT1}, {sT0}, 3")
        a(f"s_lshl_b32 {sT1}, {sT1}, 3")
        a(f"s_or_b32 {sT2}, {sXCC}, 0x80")
        a(f"s_lshl_b32 {sU1}, {sT2}, {sT1}")
        a(f"s_lshl_b32 s99, 0x40, {sT1}")
        a(f"s_and_b32 {sU3}, {sT0}, 0xfc")
        a(f"""
        v_bfe_u32 {vT0}, {vC}, 1, 3
        v_xor_b32 {vT0}, {vT0}, {vH}
        v_lshlrev_b32 {vT0}, 4, {vT0}
        v_lshl_add_u32 {vT0}, {vC}, 7, {vT0}
        v_add_u32 v56, {sU2}, {vT0}
        v_xor_b32 v57, 32, v56
        v_xor_b32 v58, 64, v56
        v_xor_b32 v59, 0x60, v56
        """)
        a(f"v_cmp_gt_u32 {sH0}, 16, {vC}")
        a(f"v_cmp_le_u32 {sH1}, 16, {vC}")
        a(f"s_mov_b64 {sL0EX}, 0")
        a(f"s_mov_b64 {sWNEX}, 0")
        self.set_tr_addr(False)
        for j in range(6): a(f"v_add_u32 v{96+j}, s98, v{vTR+j}")
        q = vSTAT
        a("v_mov_b32 v60, 0x3f803f80")
        for i in range(4): a(f"v_mov_b32 v{q+i}, 0")
        for i in range(3): a(f"v_mov_b32 v{61+i}, 0")
        a(f"v_lshlrev_b32 {vCSA}, 3, {vC}")
        a(f"v_add_u32 {vCSA}, {sCSF}, {vCSA}")
        self.stamp(4, False)
        for p in range(1, LA): wd(p); xd(p)
        wd(LA)
        self.stamp(1, False)
        lq = []
        def ld(tag, ins): a(ins); lq.append(tag)
        def lwait(tag):
            n = len(lq) - 1 - max(i for i, t in enumerate(lq) if t == tag)
            a(f"s_waitcnt lgkmcnt({min(n,15)})")
        def wrd(s_):
            b = WF[s_ % 4]
            for j in range(4): ld(f"k{s_}", f"ds_read_b64_tr_b16 {R(b+2*j,2)}, v{vTR+2+j} offset:{s_*1024}")
        CT_ = 116
        def csrd(p):
            for j in range(6): ld(f"c{p}", f"ds_read_b64_tr_b16 {R(CT_+2*j,2)}, v{96+j} offset:{p*4096}")
        def csdot(p):
            lwait(f"c{p}")
            for j in range(4):
                for ct in range(3): a(f"v_dot2_f32_bf16 v{61+ct}, v{CT_+4*ct+j}, v60, v{61+ct}")
        def mf(s_, fill=None):
            b = WF[s_ % 4]; c0 = "0" if s_ == 0 else None
            lwait(f"k{s_}")
            a(f"{MFMA} {R(ACC_K,16)}, {R(b)}, {R(vXF+4*s_)}, {c0 or R(ACC_K,16)}")
            if fill: fill()
            a(f"{MFMA} {R(ACC_V,16)}, {R(vXF+4*s_)}, {R(b+4)}, {c0 or R(ACC_V,16)}")
            if fill: fill()
        SC0 = 0
        for p in range(8):
            if p == 7:
                for s_ in range(28, 32): wrd(s_)
            wait(f"x{p}")
            a("s_barrier")
            if p == 7: self.stamp(6, False)
            if p < 7: self.stamp(p + 1, False, alt=True)
            for k in range(4):
                ld(f"x{p}", f"ds_read_b128 {R(vXF + 4*(4*p+k))}, v{56+k} offset:{(p%4)*4096}")
            if p < 7:
                csrd(p)
                for s_ in range(4 * p, 4 * p + 2): wrd(s_)
            else:
                a(f"v_lshlrev_b32 v102, 2, {vC}")
                a(f"v_add_u32 v102, s98, v102")
                for k in range(8): ld("sc", f"ds_read_b32 v{CT_+k}, v102 offset:{SC0 + k*128}")
            its = []
            if p == 1:
                def f(): wait("wof"); self.wof_store(); vq.append("wofs")
                its.append(f)
            if p == 1:
                for ct in range(3):
                    def f(ct=ct):
                        a(f"s_add_u32 {sT0}, s101, {ct*32768}")
                        a(f"buffer_store_dwordx4 {AR(244+4*ct)}, v104, {srd(SRD_WS)}, {sT0} offen sc1"); vq.append("wqs")
                    its.append(f)
            if p + LA + 1 < 8: its += wd_items(p + LA + 1)
            if p + LA < 8: its += xd_items(p + LA)
            if p == 0: its += clr_items()
            if p == 1 + LA: its = [lambda: self.flag_set(sU1)] + its
            nit = len(its); cnt = [0]
            def tick(w=1.0, total=11.0):
                cnt[0] += w
                while its and (nit - len(its)) < cnt[0] * nit / total: its.pop(0)()
            tick()
            lwait(f"x{p}")
            def sdot():
                for j in range(16):
                    r = vXF + 16 * p + j
                    a(f"v_dot2_f32_bf16 v{q+2*(j%2)}, v{r}, v60, v{q+2*(j%2)}")
                    a(f"v_dot2_f32_bf16 v{q+1+2*(j%2)}, v{r}, v{r}, v{q+1+2*(j%2)}")
                    if j % 8 == 7: tick()
            if p < 7:
                for s_ in range(4 * p + 2, 4 * p + 4): wrd(s_)
                for s_ in range(4 * p, 4 * p + 4): mf(s_, tick)
                csdot(p)
                if p == 6: csrd(7)
                sdot()
                assert not its
                if p == 6:
                    csdot(7)
                    a(f"v_lshlrev_b32 {vT0}, 2, {vLANE}")
                    a(f"s_lshl_b32 {sT0}, {sW}, 8")
                    a(f"v_add_u32 {vT0}, {sT0}, {vT0}")
                    a("s_nop 2")
                    for ct in range(3): ld("cw", f"ds_write_b32 {vT0}, v{61+ct} offset:{SC0 + ct*1024}")
                    a(f"v_mov_b32 {vT0}, 0")
                    ld("cw", f"ds_write_b32 {vT0}, {vT0} offset:{L_FW}")
                    a("s_waitcnt lgkmcnt(0)")
            else:
                sdot()
                t = CT_
                F = [f"v_add_f32 v{t}, v{t}, v{t+k}" for k in range(1, 8)]
                F += [x.strip() for x in f"""
                v_cvt_pk_bf16_f32 v{t+1}, v{t}, v{t}
                v_and_b32 v{t+2}, 0xffff0000, v{t+1}
                v_sub_f32 v{t+3}, v{t}, v{t+2}
                v_cvt_pk_bf16_f32 v{t+4}, v{t+3}, v{t+3}
                v_and_b32 v{t+5}, 0xffff0000, v{t+4}
                v_sub_f32 v{t+6}, v{t+3}, v{t+5}
                v_cvt_pk_bf16_f32 v{t+7}, v{t+6}, v{t+6}
                v_lshrrev_b32 v{t+8}, 16, v{t+2}
                v_or_b32 v{t+8}, v{t+8}, v{t+5}
                v_and_b32 v{t+9}, 0xffff, v{t+7}
                s_lshl_b32 {sT1}, {sW}, 8
                v_add_u32 v102, {sT1}, {vCSA}
                ds_write_b64 v102, v[{t+8}:{t+9}]
                """.strip().split("\n")]
                F += self.stats_ops()
                F += [f"ds_write_b32 {vT0}, {vRSTD} offset:{L_RS}"]
                F += [f"ds_read_b128 {R(vRS+4*qq)}, v21 offset:{L_RS + qq*32}" for qq in range(4)]
                lwait("sc")
                fi = [0]
                def fill():
                    for x in F[fi[0]:fi[0] + 8]:
                        if x.startswith("ds_"): ld("f", x)
                        else: a(x)
                    fi[0] += 8
                for s_ in range(28, 32): mf(s_, fill)
                assert fi[0] >= len(F)
                for i in (1, 2, 3):
                    for x in self.rd2(i): a(x)
                a("s_waitcnt lgkmcnt(0)")
                a("s_barrier")
                a(f"ds_read_b64 {R(WF[0],2)}, {vCSA} offset:256")
                a(f"ds_read_b64 {R(WF[0]+4,2)}, {vCSA} offset:512")
                for x in self.rd2(0): a(x)
                a("s_waitcnt lgkmcnt(0)")
        self.stamp(2, False); self.stamp(3, False); self.stamp(0); self.stamp(1)
        a("s_branch L_join")

    def l0_block(self, t):
        t(f"v_lshlrev_b32 {vT0}, 2, {vLANE}")
        t(f"buffer_load_dword v20, {vT0}, {srd(SRD_DBG)}, 0 offen sc1")
        self.resid_loads(t)
        self.mask_tables(t)
        self.pads_init(t)
        t(f"s_mov_b32 {sBIG}, 0x5d800000")
        t(f"s_mov_b32 {sTINY}, 0x21800000")
        t("s_waitcnt vmcnt(4) lgkmcnt(0)")

    def pads_init(self, a):
        a(f"""
        v_lshrrev_b32 {vT0}, 1, {vLANE}
        v_mul_u32_u24 {vT0}, {TP}, {vT0}
        v_and_b32 {vT1}, 1, {vLANE}
        v_mul_u32_u24 {vT1}, 1040, {vT1}
        v_add_u32 {vT0}, {vT0}, {vT1}
        v_mov_b32 v120, 0x3f803f80
        v_mov_b32 v121, 0x3f803f80
        v_mov_b32 v122, 0x3f803f80
        v_mov_b32 v123, 0x3f803f80
        s_mov_b64 exec, 0xffffff
        ds_write_b128 {vT0}, v[120:123] offset:{L_KV + 3072}
        s_mov_b64 exec, -1
        """)

    def wof_loads2(self):
        a = self.a
        a(f"s_lshl_b32 {sT0}, s2, 2")
        a(f"s_add_u32 {sT0}, {sT0}, {sW}")
        a(f"s_bfe_u32 {sT1}, {sT0}, 0x50004")
        a(f"s_and_b32 {sT2}, {sT0}, 15")
        a(f"s_lshl_b32 {sT3}, {sT1}, 14")
        a(f"s_lshl_b32 {sT4}, {sT2}, 6")
        a(f"s_add_u32 {sT3}, {sT3}, {sT4}")
        a(f"v_lshlrev_b32 v103, 1, {vC}")
        a(f"v_lshl_add_u32 v103, {vH}, 12, v103")
        lB, lD = self.lab("wob"), self.lab("wod")
        a(f"s_add_u32 {sT4}, {sT3}, 8192")
        a(f"s_cmp_ge_u32 {sT0}, 512")
        a(f"s_cbranch_scc1 {lB}")
        for S_, lab in ((SRD_WOA, None), (SRD_WOB, lB)):
            if lab: a.label(lab)
            for j in range(8):
                so = sT3 if j < 4 else sT4
                a(f"buffer_load_ushort v{240+j}, v103, {srd(S_)}, {so} offen offset:{(j%4)*1024}")
            if not lab: a(f"s_branch {lD}")
        a.label(lD)
        a(f"s_and_b32 s100, {sT0}, 512")
        a(f"s_lshl_b32 {sT2}, {sT2}, 5")
        a(f"s_add_u32 s100, s100, {sT2}")
        a(f"s_add_u32 s100, s100, {sT1}")
        a(f"s_lshl_b32 s100, s100, 10")
        a(f"s_add_u32 s100, s100, {WOF}")

    def wof_store(self):
        a = self.a
        for j in range(4):
            a(f"v_lshl_or_b32 v{248+j}, v{240+2*j+1}, 16, v{240+2*j}")
        a(f"buffer_store_dwordx4 v[248:251], {vL16}, {srd(SRD_WS)}, s100 offen sc1")

    def wqf_loads(self):
        a = self.a
        a(f"s_lshl_b32 {sT0}, s2, 2")
        a(f"s_add_u32 {sT0}, {sT0}, {sW}")
        a(f"s_bfe_u32 {sT1}, {sT0}, 0x60003")
        a(f"s_and_b32 {sT5}, {sT0}, 7")
        a(f"s_mul_i32 {sT3}, {sT1}, {8*3072}")
        a(f"s_lshl_b32 {sT5}, {sT5}, 7")
        a(f"s_add_u32 {sT3}, {sT3}, {sT5}")
        a(f"v_lshrrev_b32 {vT0}, 3, {vLANE}")
        a(f"v_mul_u32_u24 v105, 3072, {vT0}")
        a(f"v_and_b32 v106, 7, {vLANE}")
        a(f"v_lshl_add_u32 v105, v106, 4, v105")
        lB, lD = self.lab("wqb"), self.lab("wqd")
        a(f"s_cmp_ge_u32 {sT0}, 512")
        a(f"s_cbranch_scc1 {lB}")
        for S_, lab in ((SRD_WQA, None), (SRD_WQB, lB)):
            if lab: a.label(lab)
            for ct in range(3):
                a(f"buffer_load_dwordx4 {AR(244+4*ct)}, v105, {srd(S_)}, {sT3} offen offset:{ct*1024}")
            if not lab: a(f"s_branch {lD}")
        a.label(lD)
        a(f"s_lshr_b32 {sT3}, {sT0}, 9")
        a(f"s_lshl_b32 {sT3}, {sT3}, 3")
        a(f"s_and_b32 {sT5}, {sT0}, 7")
        a(f"s_add_u32 {sT3}, {sT3}, {sT5}")
        a(f"s_mul_i32 {sT3}, {sT3}, {2*98304}")
        a(f"s_lshl_b32 {sT5}, {sT1}, 9")
        a(f"s_add_u32 s101, {sT3}, {sT5}")
        a(f"s_add_u32 s101, s101, {WQF}")
        a(f"v_lshlrev_b32 v104, 6, {vT0}")
        a(f"v_and_b32 v106, 3, {vLANE}")
        a(f"v_lshl_add_u32 v104, v106, 4, v104")
        a(f"v_bfe_u32 v106, {vLANE}, 2, 1")
        a(f"v_mul_u32_u24 v106, 98304, v106")
        a(f"v_add_u32 v104, v104, v106")

    def resid_loads(self, t):
        t(f"v_lshlrev_b32 {vT0}, 10, {vC}")
        t(f"v_lshl_add_u32 {vT0}, {vH}, 3, {vT0}")
        t(f"s_lshl_b32 {sT0}, {sRT}, 15")
        t(f"s_lshl_b32 {sT1}, {sCT}, 6")
        t(f"s_add_u32 {sT0}, {sT0}, {sT1}")
        for q in range(4):
            t(f"buffer_load_dwordx2 {AR(236+2*q,2)}, {vT0}, {srd(SRD_X)}, {sT0} offen offset:{q*16}")

    def flag_load(self, dst):
        a = self.a
        a(f"v_lshlrev_b32 {vT0}, 2, {vLANE}")
        a(f"buffer_load_dword {dst}, {vT0}, {srd(SRD_DBG)}, 0 offen sc1")

    def flag_check(self, x, y, bit, setfast, layer=0):
        a, t = self.a, self.tail
        skip, slow, loop, back = self.lab("fsk"), self.lab("fsl"), self.lab("flp"), self.lab("fbk")
        l2, nw = self.lab("fl2"), self.lab("fnw")
        m = bit * 0x01010101
        a(f"s_cmp_lg_u32 {sL}, {layer}")
        a(f"s_cbranch_scc1 {skip}")
        a(f"v_and_b32 {y}, {m:#x}, {x}")
        a(f"v_cmp_ne_u32 vcc, {m:#x}, {y}")
        a(f"s_cbranch_vccnz {slow}")
        a.label(back)
        a(f"s_cmp_lg_u32 {sW}, 0")
        a(f"s_cbranch_scc1 {nw}")
        a(f"v_mov_b32 {y}, {layer+1}")
        a(f"v_mov_b32 {vT0}, 0")
        a(f"ds_write_b32 {vT0}, {y} offset:{L_FW}")
        a("s_waitcnt lgkmcnt(0)")
        a.label(nw)
        t.label(slow)
        t(f"s_mov_b32 {sTRY}, 0")
        t(f"s_cmp_eq_u32 {sW}, 0")
        t(f"s_cbranch_scc1 {loop}")
        t(f"v_mov_b32 {vT0}, 0")
        t.label(l2)
        t("s_sleep 2")
        t(f"ds_read_b32 {y}, {vT0} offset:{L_FW}")
        t("s_waitcnt lgkmcnt(0)")
        t(f"v_cmp_eq_u32 vcc, {layer+1}, {y}")
        t(f"s_cbranch_vccnz {loop}x")
        t(f"s_add_u32 {sTRY}, {sTRY}, 1")
        t(f"s_cmp_lt_u32 {sTRY}, {SPIN_LIMIT*8}")
        t(f"s_cbranch_scc1 {l2}")
        t.label(loop)
        t("s_sleep 12")
        t.label(loop + "x")
        t(f"v_lshlrev_b32 {vT0}, 2, {vLANE}")
        t(f"buffer_load_dword {x}, {vT0}, {srd(SRD_DBG)}, 0 offen sc1")
        t("s_waitcnt vmcnt(0)")
        t(f"v_and_b32 {y}, {m:#x}, {x}")
        t(f"v_cmp_ne_u32 vcc, {m:#x}, {y}")
        t(f"s_cbranch_vccz {back}")
        t(f"s_add_u32 {sTRY}, {sTRY}, 1")
        t(f"s_cmp_lt_u32 {sTRY}, {SPIN_LIMIT}")
        t(f"s_cbranch_scc1 {loop}")
        t(f"s_mov_b32 {sERR}, 100")
        t(f"s_branch {back}")
        if setfast:
            a(f"s_mul_i32 {sT0}, {sXCC}, 0x01010101")
            a(f"v_and_b32 {y}, 0x0f0f0f0f, {x}")
            a(f"v_cmp_eq_u32 vcc, {sT0}, {y}")
            a(f"s_lshl_b32 {sT1}, {sR}, 2")
            a(f"s_lshr_b64 {sMSK}, vcc, {sT1}")
            a(f"s_and_b32 {sT0}, s68, 15")
            a(f"s_cmp_eq_u32 {sT0}, 15")
            a(f"s_cselect_b32 {sFAST}, 1, 0")
            if os.environ.get("NOFAST"): a(f"s_mov_b32 {sFAST}, 0")
            a(f"s_cmp_eq_u32 {sERR}, 0")
            a(f"s_cselect_b64 {sCHK}, -1, 0")
        a.label(skip)

    def flag_wait(self, bit, setfast):
        a = self.a
        loop, done = self.lab("hw"), self.lab("hwd")
        m = bit * 0x01010101
        a(f"s_mov_b32 {sTRY}, 0")
        a(f"v_lshlrev_b32 {vT0}, 2, {vLANE}")
        a.label(loop)
        a(f"buffer_load_dword v20, {vT0}, {srd(SRD_DBG)}, 0 offen sc1")
        a("s_waitcnt vmcnt(0)")
        a(f"v_and_b32 v21, {m:#x}, v20")
        a(f"v_cmp_ne_u32 vcc, {m:#x}, v21")
        a(f"s_cbranch_vccz {done}")
        a("s_sleep 2")
        a(f"s_add_u32 {sTRY}, {sTRY}, 1")
        a(f"s_cmp_lt_u32 {sTRY}, {SPIN_LIMIT}")
        a(f"s_cbranch_scc1 {loop}")
        a(f"s_mov_b32 {sERR}, 100")
        a.label(done)
        if setfast:
            a(f"s_mul_i32 {sT0}, {sXCC}, 0x01010101")
            a(f"v_and_b32 v21, 0x0f0f0f0f, v20")
            a(f"v_cmp_eq_u32 vcc, {sT0}, v21")
            a(f"s_lshl_b32 {sT1}, {sR}, 2")
            a(f"s_lshr_b64 {sMSK}, vcc, {sT1}")
            a(f"s_and_b32 {sT0}, s68, 15")
            a(f"s_cmp_eq_u32 {sT0}, 15")
            a(f"s_cselect_b32 {sFAST}, 1, 0")
            if os.environ.get("NOFAST"): a(f"s_mov_b32 {sFAST}, 0")
            a(f"s_cmp_eq_u32 {sERR}, 0")
            a(f"s_cselect_b64 {sCHK}, -1, 0")

    def x_loads(self, t, g):
        t(f"s_add_u32 {sT0}, {sXBin}, {g*8192}")
        t(f"s_add_u32 {sT1}, {sXBin}, {g*8192+4096}")
        for i in range(8):
            s = 8 * g + i
            t(f"buffer_load_dwordx4 {R(vXF+4*s)}, {vL16}, {srd(SRD_WS)}, {sT0 if i < 4 else sT1} offen offset:{(i%4)*1024} sc1")

    def st_load(self):
        return f"buffer_load_dwordx4 {R(vSTAT)}, {vL16}, {srd(SRD_WS)}, {sSTin} offen sc1"
    def st_loads(self, t):
        t(self.st_load())

    def layer_start(self):
        a = self.a
        a("v_mov_b32 v20, -1\nv_mov_b32 v21, -1\nv_mov_b32 v22, -1\nv_mov_b32 v23, -1")
        lk = self.lab("clrk")
        a(f"s_bitcmp1_b32 {sL}, 0")
        a(f"s_cbranch_scc1 {lk}")
        a(f"s_cmp_lg_u32 {sW}, 3")
        a(f"s_cbranch_scc1 {lk}")
        a(f"s_add_u32 {sT0}, {sKVl}, 0x400000")
        for f in range(4):
            a(f"buffer_store_dwordx4 v[20:23], {vL16}, {srd(SRD_WS)}, {sT0} offen offset:{f*1024} sc1")
        a.label(lk)

    def group_clears(self):
        a = self.a
        l3 = self.lab("clr3")
        a(f"s_cmp_eq_u32 {sL}, 3")
        a(f"s_cbranch_scc1 {l3}")
        a("v_mov_b32 v20, -1\nv_mov_b32 v21, -1\nv_mov_b32 v22, -1\nv_mov_b32 v23, -1")
        a(f"s_add_u32 {sT0}, {sOBl}, 0x200000")
        self.store_msg([("v[20:23]", sXBout, 0), ("v[20:23]", sXBout, 1024), ("v[20:23]", sT0, 0), ("v[20:23]", sT0, 1024)], vL16)
        a(f"v_lshlrev_b32 {vT0}, 4, {vC}")
        self.store_msg([("v[20:21]", sSTout, 0)], vT0, width="dwordx2")
        a.label(l3)

    def kv2_clear(self, half):
        L = []
        if half == 0: L += ["v_mov_b32 v28, -1", "v_mov_b32 v29, -1", "v_mov_b32 v30, -1", "v_mov_b32 v31, -1", f"s_add_u32 {sT5}, {sKVl}, {KV(2)-KV(0)}"]
        L += [f"s_mov_b64 exec, {sL0EX}"]
        for f in (2 * half, 2 * half + 1):
            L += [f"buffer_store_dwordx4 v[28:31], {vL16}, {srd(SRD_WS)}, {sT5} offen offset:{f*1024} sc1"]
        L += ["s_mov_b64 exec, -1"]
        return L

    def nb_loads(self, t):
        for k, s in enumerate((sNB0, sNB1)):
            for f in range(4):
                t(f"buffer_load_dwordx4 {R(vSTG+16*k+4*f)}, {vL16}, {srd(SRD_WS)}, {s} offen offset:{f*1024} sc1")

    def stats_ops(self):
        q = vSTAT
        L = []
        for i in range(1, 2):
            L.append(f"v_add_f32 v{q}, v{q}, v{q+2*i}")
            L.append(f"v_add_f32 v{q+1}, v{q+1}, v{q+2*i+1}")
        L += [x.strip() for x in f"""
        v_mov_b32 v{q+2}, v{q}
        v_mov_b32 v{q+3}, v{q+1}
        v_mov_b32 v18, 0
        v_mov_b32 v19, 0
        v_permlane32_swap_b32 v{q}, v{q+2}
        v_permlane32_swap_b32 v{q+1}, v{q+3}
        s_lshl_b32 {sT0}, {sW}, 7
        v_lshlrev_b32 {vT0}, 2, {vC}
        v_add_f32 v{q}, v{q}, v{q+2}
        v_add_f32 v{q+1}, v{q+1}, v{q+3}
        v_mul_f32 v{q}, {f32hex(1/512)}, v{q}
        v_mul_f32 v{q+1}, {f32hex(1/512)}, v{q+1}
        v_fma_f32 v{q+1}, -v{q}, v{q}, v{q+1}
        v_max_f32 v{q+1}, 0, v{q+1}
        v_cvt_pk_bf16_f32 v{q+2}, v{q}, v{q+1}
        v_and_b32 v{q+3}, 0xffff0000, v{q+2}
        v_add_f32 v{q+3}, {f32hex(1e-5)}, v{q+3}
        v_cvt_pk_bf16_f32 v{q+3}, v{q+3}, v{q+3}
        v_and_b32 v{q+3}, 0xffff0000, v{q+3}
        v_sqrt_f32 v{q+3}, v{q+3}
        v_and_b32 v{q+2}, 0xffff, v{q+2}
        v_xor_b32 v{q+2}, 0x8000, v{q+2}
        v_cvt_pk_bf16_f32 v{q+3}, v{q+3}, v{q+3}
        v_and_b32 v{q+3}, 0xffff0000, v{q+3}
        v_rcp_f32 {vRSTD}, v{q+3}
        v_cndmask_b32_e64 v17, 0, v{q+2}, {sLO32}
        v_lshl_or_b32 v16, v17, 16, v17
        v_add_u32 {vT0}, {sT0}, {vT0}
        v_mul_f32 {vRSTDC}, {f32hex(QSCALE)}, {vRSTD}
        v_lshlrev_b32 v21, 4, {vH}
        v_add_u32 v21, {sT0}, v21
        """.strip().split("\n")]
        return L

    def x_load1(self, s):
        so = ["s78", "s79", "s80", "s81", "s82", "s83", "s64", "s65"][s // 4]
        return f"buffer_load_dwordx4 {R(vXF+4*s)}, {vL16}, {srd(SRD_WS)}, {so} offen offset:{(s%4)*1024} sc1"

    def q_order(self):
        return [32] + list(range(31, -1, -1))
    def rd2(self, i):
        order = self.q_order()
        if i >= len(order): return []
        s = order[i]; b = W2[i % len(W2)]
        if s == 32: return [f"ds_read_b64 {R(b,2)}, {vCSA} offset:0"]
        return [f"ds_read_b64_tr_b16 {R(b,2)}, v{vTR} offset:{s*1024}",
                f"ds_read_b64_tr_b16 {R(b+2,2)}, v{vTR+1} offset:{s*1024}"]

    def pass1(self, first):
        a = self.a
        UP = int(os.environ.get("UP", "8"))
        PF = 3
        lq = []
        def ld(tag, ins): a(ins); lq.append(tag)
        def lwait(tag):
            n = len(lq) - 1 - max(i for i, t in enumerate(lq) if t == tag)
            a(f"s_waitcnt lgkmcnt({min(n,15)})")
        def rd1(s):
            b = WF[s % 4]
            if s < 32:
                return [(s, f"ds_read_b64_tr_b16 {R(b+2*j,2)}, v{vTR+2+j} offset:{s*1024}") for j in range(4)]
            if s == 32:
                return [(s, f"ds_read_b64 {R(b,2)}, {vCSA} offset:256"), (s, f"ds_read_b64 {R(b+4,2)}, {vCSA} offset:512")]
            i = 2 * (s - 33)
            return [(f"q{i}", x) for x in self.rd2(i)] + [(f"q{i+1}", x) for x in self.rd2(i + 1)]
        issued = []
        def vm(tag, ins): a(ins); issued.append(tag)
        def wait(tag):
            n = len(issued) - 1 - max(i for i, t in enumerate(issued) if t == tag)
            a(f"s_waitcnt vmcnt({n})")
        if not first:
            for k in range(UP): vm(k, self.x_load1(k))
            a("v_mov_b32 v60, 0")
        a(f"v_lshlrev_b32 {vCSA}, 3, {vC}")
        a(f"v_add_u32 {vCSA}, {sCSF}, {vCSA}")
        for s in range(PF):
            for t_, x in rd1(s): ld(t_, x)
        st = self.stats_ops(); si = 0
        SS = 25
        for s in range(32):
            if not first:
                wait(s)
                if s == SS:
                    wait("st")
                    a(f"v_max3_u32 v60, v60, v{vSTAT}, v{vSTAT+2}")
            if os.environ.get("P1ST"):
                p1, p2 = map(int, os.environ["P1ST"].split(","))
                if s == p1: self.stamp(7, alt=True)
                if s == p2: self.stamp(8, alt=True)
            b = WF[s % 4]
            nxt = rd1(s + PF)
            lwait(s)
            c0 = "0" if s == 0 else None
            def fill():
                nonlocal si
                if s >= SS:
                    for x in st[si:si + 3]: a(x)
                    si += 3
                    if si >= len(st) and si - 3 < len(st):
                        ld("rsw", f"ds_write_b32 {vT0}, {vRSTD} offset:{L_RS}")
                        for qq in range(4):
                            ld("rs", f"ds_read_b128 {R(vRS+4*qq)}, v21 offset:{L_RS + qq*32}")
            a(f"{MFMA} {R(ACC_K,16)}, {R(b)}, {R(vXF+4*s)}, {c0 or R(ACC_K,16)}")
            for t_, x in nxt[:2]: ld(t_, x)
            fill()
            if not first:
                if s + UP < 32: vm(s + UP, self.x_load1(s + UP))
                if s % 2 == 1: a(f"v_max3_u32 v60, v60, v{vXF+4*s}, v{vXF+4*s-4}")
            a(f"{MFMA} {R(ACC_V,16)}, {R(vXF+4*s)}, {R(b+4)}, {c0 or R(ACC_V,16)}")
            for t_, x in nxt[2:]: ld(t_, x)
            fill()
            if not first:
                if s == 17: vm("st", self.st_load())
            if s == 21:
                self.flag_load("v20"); issued.append("f")
        assert si >= len(st)
        self.lq_end = lq

    def gemm(self):
        a, t = self.a, self.tail
        self.stamp(0)
        l0, ljoin, lredo, lrl = self.lab("g_l0"), self.lab("g_join"), self.lab("g_redo"), self.lab("g_rl")
        self.layer_start()
        for k, so in enumerate(["s78", "s79", "s80", "s81", "s82", "s83", "s64", "s65"]):
            a(f"s_add_u32 {so}, {sXBin}, {k*4096}")
        a(f"v_and_b32 {vT0}, 15, {vLANE}")
        a(f"v_lshlrev_b32 {vT0}, 11, {vT0}")
        a(f"v_add_u32 {vT0}, 2032, {vT0}")
        self.probe(vT0, sXBin, "v20", "v21", 1)
        self.stamp(1)
        self.pass1(False)
        a("v_cmp_eq_u32 vcc, -1, v60")
        a(f"s_and_b64 vcc, vcc, {sCHK}")
        a(f"s_cbranch_vccnz {lredo}")
        t.label(lredo)
        t(f"s_mov_b32 {sTRY}, 0")
        t("s_waitcnt vmcnt(0) lgkmcnt(0)")
        t("s_nop 7\ns_nop 7")
        t.label(lrl)
        if self.dbg: t("s_add_u32 s84, s84, 1")
        for g in range(4): self.x_loads(t, g)
        self.st_loads(t)
        t("s_waitcnt vmcnt(0)")
        self.maxtree(t, [vXF + 4 * k for k in range(32)] + [vSTAT + 2 * i for i in range(2)], vT0)
        t(f"v_cmp_eq_u32 vcc, -1, {vT0}")
        t(f"s_cbranch_vccz {l0}")
        t(f"s_add_u32 {sTRY}, {sTRY}, 1")
        t(f"s_cmp_lt_u32 {sTRY}, {SPIN_LIMIT}")
        t(f"s_cbranch_scc1 {lrl}")
        t(f"s_mov_b64 {sCHK}, 0")
        t(f"s_mov_b32 {sERR}, 2")
        t(f"s_branch {l0}")
        t.label(l0)
        self.a = t
        self.pass1(True)
        self.a = a
        t("s_branch L_join")
        a.label("L_join")
        self.stamp(2)
        lq = list(self.lq_end)
        if self.dbg: lq = [t_ for t_ in lq]
        def ld(tag, ins): a(ins); lq.append(tag)
        def lwait(tag):
            n = len(lq) - 1 - max(i for i, t_ in enumerate(lq) if t_ == tag)
            a(f"s_waitcnt lgkmcnt({min(n,15)})")
        b = WF[32 % 4]
        PF2 = 5
        lwait(32)
        a(f"{MFMA} {R(ACC_K,16)}, {R(b)}, v[16:19], {R(ACC_K,16)}")
        a(f"{MFMA} {R(ACC_V,16)}, v[16:19], {R(b+4)}, {R(ACC_V,16)}")
        for x in self.rd2(4): ld("q4", x)
        F = []
        def I(x): F.append((1, lambda x=x: a(x)))
        def L(tag, x): F.append((1, lambda tag=tag, x=x: ld(tag, x)))
        def G(n, fn): F.append((n, fn))
        for r in range(16): I(f"v_mul_f32 v{ACC_K+r}, {vRSTD}, v{ACC_K+r}")
        for j in range(8): I(f"v_cvt_pk_bf16_f32 v{vOWNK+j}, v{ACC_K+2*j}, v{ACC_K+2*j+1}")
        for f in (vOWNK, vOWNK + 4): I(f"v_min_u32 v{f}, 0xfffffffe, v{f}")
        G(1, lambda: lwait("rs"))
        for r in range(16): I(f"v_mul_f32 v{ACC_V+r}, v{vRS+r}, v{ACC_V+r}")
        for j in range(8): I(f"v_cvt_pk_bf16_f32 v{vOWNV+j}, v{ACC_V+2*j}, v{ACC_V+2*j+1}")
        for f in (vOWNV, vOWNV + 4): I(f"v_min_u32 v{f}, 0xfffffffe, v{f}")
        G(6, self.kv_publish)
        NF = len(F)
        G(0, lambda: self.stamp(3))
        I(f"s_mul_i32 {sT0}, {sW}, {TP}")
        I(f"v_add_u32 {vKA}, {sT0}, {vL16}")
        OWN = [vOWNK, vOWNK + 4, vOWNV, vOWNV + 4]
        for f in range(4): L("own", f"ds_write_b128 {vKA}, {R(OWN[f])} offset:{L_KV + 8*TP + PO[f]}")
        I(f"s_add_u32 {sT0}, {sT0}, 1024")
        I(f"v_mov_b32 {vT0}, {sT0}")
        I(f"v_cndmask_b32_e64 {vVA[0]}, {vT0}, {vKA}, {sH0}")
        I(f"v_cndmask_b32_e64 {vVA[1]}, {vT0}, {vKA}, {sH1}")
        def flags():
            lfs = self.lab("nofl")
            a(f"s_bitcmp1_b32 {sL}, 0")
            a(f"s_cbranch_scc1 {lfs}")
            a("s_waitcnt vmcnt(4)")
            lb, lr = self.lab("l0b"), self.lab("l0r")
            a(f"s_cmp_eq_u32 {sL}, 0")
            a(f"s_cbranch_scc1 {lb}")
            a.label(lr)
            t.label(lb)
            self.l0_block(t)
            t(f"s_branch {lr}")
            self.flag_check("v20", "v21", 0x80, True)
            self.flag_check("v20", "v21", 0x20, False, layer=2)
            a.label(lfs)
        G(6, flags)
        G(14, self.group_clears)
        def msel():
            a(f"s_bitcmp1_b32 {sL}, 0")
            a(f"s_cselect_b32 {sT2}, 512, 0")
            a(f"s_cselect_b32 {sT3}, 3, 4")
            a(f"s_cmp_eq_u32 {sT}, 0")
            a(f"s_cselect_b32 {sT3}, 5, {sT3}")
            a(f"s_lshl_b32 {sT3}, {sT3}, 8")
        G(6, msel)
        for x in self.mask_load(vMASK, sT2, vT0) + self.mask_load(vCZ, sT3, vT0):
            if x.startswith("ds_"): L("m", x)
            else: I(x)
        NB = len(F)
        G(12, self.nb_issue)
        order = self.q_order()
        fi = 0
        for i, s_ in enumerate(order):
            b = W2[i % len(W2)]
            lwait(f"q{i}")
            bop = "v[16:19]" if s_ == 32 else R(vXF + 4 * s_)
            a(f"{MFMA} {R(ACC_Q,16)}, {R(b)}, {bop}, {'0' if i == 0 else R(ACC_Q,16)}")
            for x in self.rd2(i + PF2): ld(f"q{i+PF2}", x)
            budget = 8 if fi < NF else 3
            while fi < len(F) and budget > 0:
                if fi == NB and i < int(os.environ.get("NBAT", "24")): break
                budget -= F[fi][0]; F[fi][1](); fi += 1
            if s_ == 6:
                assert fi > NF + 10
                for x in self.rd_tile(0): ld("t0", x)
        assert fi == len(F), (fi, len(F))
        a("s_nop 7\ns_nop 3")
        for r in range(16): a(f"v_mul_f32 v{ACC_Q+r}, {vRSTDC}, v{ACC_Q+r}")
        for j in range(8): a(f"v_cvt_pk_bf16_f32 v{vQ+j}, v{ACC_Q+2*j}, v{ACC_Q+2*j+1}")
        a("s_waitcnt lgkmcnt(0)")
        self.stamp(4)

    def kv_publish(self):
        a = self.a
        OWN = [vOWNK, vOWNK + 4, vOWNV, vOWNV + 4]
        lsk = self.lab("kvsk")
        ldo = self.lab("kvdo")
        a(f"s_bitcmp0_b32 {sL}, 0")
        a(f"s_cbranch_scc1 {ldo}")
        a(f"s_cmp_lg_u32 {sW}, 3")
        a(f"s_cbranch_scc1 {lsk}")
        a.label(ldo)
        for f in range(4):
            a(f"buffer_store_dwordx4 {R(OWN[f])}, {vL16}, {srd(SRD_WS)}, {sKVl} offen offset:{f*1024} sc1")
        a.label(lsk)

    def nb_issue(self):
        a = self.a
        a(f"s_sub_u32 {sT0}, {sW}, 8")
        a(f"s_lshl_b32 {sT1}, {sT0}, 16")
        a(f"s_add_u32 {sNB0}, {sKVl}, {sT1}")
        a(f"s_add_u32 {sNB1}, {sNB0}, 65536")
        a(f"s_add_i32 {sT0}, {sT0}, {sT}")
        a(f"s_cmp_lt_i32 {sT0}, 0")
        a(f"s_cselect_b32 {sNB0}, 0x7f000000, {sNB0}")
        a(f"s_cselect_b32 {sNB1}, 0x7f000000, {sNB1}")
        lA = self.lab("nbA")
        a(f"s_bitcmp0_b32 {sL}, 0")
        a(f"s_cbranch_scc1 {lA}")
        a(f"s_mov_b32 {sNB0}, 0x7f000000")
        a(f"s_cmp_lg_u32 {sW}, 3")
        a(f"s_cselect_b32 {sNB1}, 0x7f000000, {sNB1}")
        if not DIRECTNB: self.nb_loads(a)
        a.label(lA)
        if DIRECTNB: self.nb_loads(a)

    def flag_wait_safe(self):
        a = self.a
        loop, done = self.lab("hw"), self.lab("hwd")
        m = 0x80808080
        x, y = f"v{vSTG}", f"v{vSTG+1}"
        a(f"s_mov_b32 {sTRY}, 0")
        a(f"v_lshlrev_b32 {vT0}, 2, {vLANE}")
        a.label(loop)
        a(f"buffer_load_dword {x}, {vT0}, {srd(SRD_DBG)}, 0 offen sc1")
        a("s_waitcnt vmcnt(0)")
        a(f"v_and_b32 {y}, {m:#x}, {x}")
        a(f"v_cmp_ne_u32 vcc, {m:#x}, {y}")
        a(f"s_cbranch_vccz {done}")
        a("s_sleep 2")
        a(f"s_add_u32 {sTRY}, {sTRY}, 1")
        a(f"s_cmp_lt_u32 {sTRY}, {SPIN_LIMIT}")
        a(f"s_cbranch_scc1 {loop}")
        a(f"s_mov_b32 {sERR}, 100")
        a.label(done)
        a(f"s_mul_i32 {sT0}, {sXCC}, 0x01010101")
        a(f"v_and_b32 {y}, 0x0f0f0f0f, {x}")
        a(f"v_cmp_eq_u32 vcc, {sT0}, {y}")
        a(f"s_lshl_b32 {sT1}, {sR}, 2")
        a(f"s_lshr_b64 {sMSK}, vcc, {sT1}")
        a(f"s_and_b32 {sT0}, s68, 15")
        a(f"s_cmp_eq_u32 {sT0}, 15")
        a(f"s_cselect_b32 {sFAST}, 1, 0")
        if os.environ.get("NOFAST"): a(f"s_mov_b32 {sFAST}, 0")
        a(f"s_cmp_eq_u32 {sERR}, 0")
        a(f"s_cselect_b64 {sCHK}, -1, 0")

    def rd_tile(self, i, k=True):
        sl = vSL[i % 3]; o = L_KV + (8 - i) * TP
        r = [f"ds_read_b128 {R(sl)}, {vKA} offset:{o}", f"ds_read_b128 {R(sl+4)}, {vKA} offset:{o+1024}"]
        for h in range(2):
            r += [f"ds_read_b128 {R(sl+8+8*h)}, {vVA[h]} offset:{o+PO[2]}", f"ds_read_b128 {R(sl+12+8*h)}, {vVA[h]} offset:{o+PO[3]}"]
        return r
    def Sbuf(self, i, h): return (vSB if i % 2 == 0 else vSA)[h]
    def S_mfma(self, i, h, cm):
        ksrc = vSL[i % 3] + 4 * h
        return f"{MFMA} {R(self.Sbuf(i,h),16)}, {R(ksrc)}, {R(vQ+4*h)}, {R(cm,16)}"
    def PV(self, i, h, f):
        S = self.Sbuf(i, h); sl = vSL[i % 3]
        c = "0" if (i == 0 and f == 0) else R(vO[h], 16)
        return f"{MFMA} {R(vO[h],16)}, {R(sl+8+8*h+4*f)}, {R(S+4*f)}, {c}"
    def expcvt(self, i, h):
        S = self.Sbuf(i, h)
        v = [f"v_exp_f32 v{S+r}, v{S+r}" for r in range(16)]
        v += [f"v_cvt_pk_bf16_f32 v{S+j}, v{S+2*j}, v{S+2*j+1}" for j in range(8)]
        return v

    def attention(self, n, cmask, extra_at=None, bg=None, post_g5=None):
        a = self.a
        a("s_nop 0")
        a(self.S_mfma(0, 0, cmask(0)))
        a(self.S_mfma(0, 1, cmask(0)))
        def take(): return bg.pop(0) if bg else []
        def slots(ps): return [(p, take()) for p in ps]
        for t in range(n + 1):
            ex = []
            if t == 0:
                ex += [(0, ["s_nop 7", "s_nop 3"])]
            if t >= 1:
                ex += [(1, [self.PV(t - 1, 1, 0)]), (7, [self.PV(t - 1, 1, 1)])]
                if t + 1 <= n:
                    pre = self.invalid_fix(t + 1) if self.fix_invalid else []
                    ex += [(14, pre + ["s_waitcnt lgkmcnt(0)", self.S_mfma(t + 1, 0, cmask(t + 1))])]
                ex += slots((3, 9, 16, 21))
            for x in interleave(self.expcvt(t, 0), ex): a(x)
            if t == 0:
                a("s_waitcnt vmcnt(0)")
                lsk = self.lab("nbw")
                if n == 1:
                    a(f"s_cmp_lg_u32 {sW}, 3")
                    a(f"s_cbranch_scc1 {lsk}")
                fs = range(8) if n == 8 else range(4, 8)
                self.check_or_poll([vSTG + 4 * f for f in fs], lambda t_: self.nb_loads(t_), vT0, 10)
                a(f"s_mul_i32 {sT0}, {sW}, {2*TP}")
                a(f"v_add_u32 {vT0}, {sT0}, {vL16}")
                for f in fs:
                    a(f"ds_write_b128 {vT0}, {R(vSTG+4*f)} offset:{L_KV + CH(f)}")
                a("s_waitcnt lgkmcnt(0)")
                a.label(lsk)
                a("s_barrier")
                self.stamp(5)
                for x in self.rd_tile(1): a(x)
                if post_g5: post_g5()
            if extra_at and t in extra_at: extra_at[t]()
            ex = []
            if t == 0:
                ex += [(1, [self.PV(0, 0, 0)]), (6, [self.PV(0, 0, 1)])]
                pre = self.invalid_fix(1) if self.fix_invalid else []
                ex += [(11, pre + ["s_waitcnt lgkmcnt(0)", self.S_mfma(1, 0, cmask(1))])]
                if 2 <= n: ex += [(12, self.rd_tile(2))]
                ex += [(17, [self.S_mfma(1, 1, cmask(1))])]
                ex += slots((3, 8, 14, 21))
            else:
                if t + 2 <= n: ex += [(0, self.rd_tile(t + 2))]
                ex += [(2, [self.PV(t, 0, 0)]), (8, [self.PV(t, 0, 1)])]
                if t + 1 <= n: ex += [(14, [self.S_mfma(t + 1, 1, cmask(t + 1))])]
                ex += slots((4, 10, 16, 21))
            for x in interleave(self.expcvt(t, 1), ex): a(x)
        a("s_nop 1")
        a(self.PV(n, 1, 0)); a(self.PV(n, 1, 1))
        while bg:
            for x in bg.pop(0): a(x)

    def invalid_fix(self, i):
        t = self.tail
        lf, lb = self.lab("fix"), self.lab("fixb")
        t.label(lf)
        t("s_nop 7\ns_nop 7")
        t(f"v_mov_b32 {vT0}, {NEG_INF:#x}")
        for r in range(16): t(f"v_mov_b32 v{vCZ+r}, {vT0}")
        t("s_nop 1")
        t(f"s_branch {lb}")
        return [f"s_cmp_eq_u32 {sT}, {i-1}", f"s_cbranch_scc1 {lf}", f"{lb}:"]

    def softmax_fallback(self, n, tdiag, tlast, lentry, lback):
        t = self.tail
        t.label(lentry)
        if self.dbg: t("s_add_u32 s85, s85, 1")
        S = vSA[0]; K = vSL[1]; V = vSL[0]; M = "v25"; AD = "v26"
        def tile_setup(h):
            t(f"s_cmp_eq_u32 {sT4}, 0")
            t(f"s_cselect_b32 {sT2}, {tdiag}, 4")
            t(f"s_cmp_eq_u32 {sT4}, {n}")
            t(f"s_cselect_b32 {sT2}, {tlast}, {sT2}")
            t(f"s_cmp_gt_u32 {sT4}, {sT}")
            t(f"s_cselect_b32 {sT2}, 5, {sT2}")
            t(f"s_lshl_b32 {sT2}, {sT2}, 8")
            for x in self.mask_load(vMASK, sT2, vT0): t(x)
            t(f"s_mul_i32 {sT3}, {sT4}, {TP}")
            t(f"s_sub_u32 {sT3}, {8*TP}, {sT3}")
            t(f"v_add_u32 {AD}, {sT3}, {vKA}")
            t(f"v_add_u32 v28, {sT3}, {vVA[h]}")
        for h in range(2):
            la, lb = self.lab("fbA"), self.lab("fbB")
            t(f"v_mov_b32 {M}, {NEG_INF:#x}")
            t(f"s_mov_b32 {sT4}, 0")
            t.label(la)
            tile_setup(h)
            t(f"ds_read_b128 {R(K)}, {AD} offset:{L_KV + h*1024}")
            t("s_waitcnt lgkmcnt(0)")
            t(f"{MFMA} {R(S,16)}, {R(K)}, {R(vQ+4*h)}, {R(vMASK,16)}")
            t("s_nop 7\ns_nop 7")
            for r in range(0, 16, 2): t(f"v_max3_f32 {M}, {M}, v{S+r}, v{S+r+1}")
            t(f"s_add_u32 {sT4}, {sT4}, 1")
            t(f"s_cmp_le_u32 {sT4}, {n}")
            t(f"s_cbranch_scc1 {la}")
            t(f"v_mov_b32 v27, {M}")
            t("s_nop 1")
            t(f"v_permlane32_swap_b32 {M}, v27")
            t("s_nop 1")
            t(f"v_max_f32 {M}, {M}, v27")
            for r in range(16): t(f"v_mov_b32 v{vO[h]+r}, 0")
            t(f"s_mov_b32 {sT4}, 0")
            t.label(lb)
            tile_setup(h)
            t(f"ds_read_b128 {R(K)}, {AD} offset:{L_KV + h*1024}")
            t(f"ds_read_b128 {R(V+8+8*h)}, v28 offset:{L_KV + PO[2]}")
            t(f"ds_read_b128 {R(V+12+8*h)}, v28 offset:{L_KV + PO[3]}")
            t("s_waitcnt lgkmcnt(0)")
            t(f"{MFMA} {R(S,16)}, {R(K)}, {R(vQ+4*h)}, {R(vMASK,16)}")
            t("s_nop 7\ns_nop 7")
            for r in range(16): t(f"v_sub_f32 v{S+r}, v{S+r}, {M}")
            for r in range(16): t(f"v_exp_f32 v{S+r}, v{S+r}")
            t("s_nop 0")
            for j in range(8): t(f"v_cvt_pk_bf16_f32 v{S+j}, v{S+2*j}, v{S+2*j+1}")
            t("s_nop 1")
            t(f"{MFMA} {R(vO[h],16)}, {R(V+8+8*h)}, {R(S)}, {R(vO[h],16)}")
            t(f"{MFMA} {R(vO[h],16)}, {R(V+12+8*h)}, {R(S+4)}, {R(vO[h],16)}")
            t("s_nop 7\ns_nop 7")
            t(f"s_add_u32 {sT4}, {sT4}, 1")
            t(f"s_cmp_le_u32 {sT4}, {n}")
            t(f"s_cbranch_scc1 {lb}")
        t(f"s_branch {lback}")

    def attn_finish(self, n, tdiag, tlast):
        a = self.a
        self.stamp(6)
        lfb, lbk = self.lab("fb"), self.lab("fbk")
        a("s_nop 7\ns_nop 3")
        a(f"v_max_f32 v25, v{vO[0]+8}, v{vO[1]}")
        a(f"v_min_f32 v26, v{vO[0]+8}, v{vO[1]}")
        a(f"v_add_f32 v27, v{vO[0]+8}, v{vO[1]}")
        a(f"v_cmp_nle_f32 vcc, v25, {sBIG}")
        a(f"v_cmp_nge_f32 {sMSK}, v26, {sTINY}")
        a(f"s_or_b64 vcc, vcc, {sMSK}")
        a(f"v_cmp_u_f32 {sMSK}, v27, v27")
        a(f"s_or_b64 vcc, vcc, {sMSK}")
        a(f"s_cbranch_vccnz {lfb}")
        a.label(lbk)
        self.softmax_fallback(n, tdiag, tlast, lfb, lbk)
        a(f"v_rcp_f32 v20, v{vO[0]+8}")
        a(f"v_rcp_f32 v21, v{vO[1]}")
        a("s_nop 0")
        for r in range(8): a(f"v_mul_f32 v{vO[0]+r}, v20, v{vO[0]+r}")
        for r in range(8): a(f"v_mul_f32 v{vO[1]+8+r}, v21, v{vO[1]+8+r}")
        d = vSA[0]
        for j in range(4): a(f"v_cvt_pk_bf16_f32 v{d+j}, v{vO[0]+2*j}, v{vO[0]+2*j+1}")
        for j in range(4): a(f"v_cvt_pk_bf16_f32 v{d+4+j}, v{vO[1]+8+2*j}, v{vO[1]+8+2*j+1}")
        a(f"v_min_u32 v{d}, 0xfffffffe, v{d}")
        a(f"v_min_u32 v{d+4}, 0xfffffffe, v{d+4}")
        self.store_msg([(R(d), sOBl, 0), (R(d + 4), sOBl, 1024)], vL16)
        self.stamp(7)

    def attn_A(self):
        a = self.a
        self.fix_invalid = True
        def first_mask():
            a(f"s_cmp_ge_u32 {sT}, 8")
            a(f"s_cselect_b32 {sT2}, 1, 5")
            a(f"s_lshl_b32 {sT2}, {sT2}, 8")
            for x in self.mask_load(vMASK, sT2, vT0): a(x)
        NS = 66
        t = self.tail
        bg = [[] for _ in range(NS)]
        wn = self.wn_items(); l0 = self.l0_groups()
        WSP = float(os.environ.get("WSP", "2.5")); LSP = float(os.environ.get("LSP", "1.9"))
        W0 = int(os.environ.get("W0", "0")); FL = W0 - 6
        if os.environ.get("NOBG"): wn = []
        for k, it in enumerate(wn): bg[min(NS - 1, W0 + int(k * WSP))] += it
        for k, it in enumerate(l0): bg[min(NS - 1, 1 + int(k * LSP))] += it
        def post():
            lp, lpb = self.lab("pg5"), self.lab("pg5b")
            a(f"s_cmp_eq_u32 {sL}, 0")
            a("s_cselect_b64 vcc, -1, 0")
            a(f"s_cbranch_scc1 {lp}")
            a.label(lpb)
            t.label(lp)
            t(f"s_lshl_b32 {sT0}, {sW}, 11")
            t(f"v_add_u32 {vT0}, {sT0}, {vL16}")
            t(f"ds_write_b128 {vT0}, a[236:239] offset:{L_XR}")
            t(f"ds_write_b128 {vT0}, a[240:243] offset:{L_XR+1024}")
            for g in range(4):
                t(f"s_add_u32 {sT3}, {sW}, {g}")
                t(f"s_and_b32 {sT3}, {sT3}, 3")
                t(f"s_lshl_b32 {sT3}, {sT3}, 13")
                t(f"s_add_u32 s{78+g}, {sT3}, {sWOB}")
            t(f"s_branch {lpb}")
        self.attention(8, lambda i: vMASK if i in (0, 8) else vCZ, {3: first_mask}, bg, post)
        self.attn_finish(8, 0, 1)

    def attn_B(self):
        self.fix_invalid = False
        wn = self.wn_items()
        self.attention(1, lambda i: vMASK if i == 0 else vCZ, None, [wn[2*k] + wn[2*k+1] for k in range(12)])
        self.attn_finish(1, 2, 3)

    def l0_groups(self):
        gs = []
        for mat in range(2):
            for g in range(4):
                for q in range(4):
                    l = self.lab("l0g")
                    L = [f"s_cbranch_vccz {l}"]
                    L += [f"s_add_u32 {sT3}, s{78+g}, {mat*0x80000 + q*2048}"]
                    for k in range(2):
                        L += [f"buffer_load_dwordx4 {AR(mat*128 + (g*8+q*2+k)*4)}, {vL16}, {srd(SRD_WS)}, {sT3} offen offset:{k*1024}"]
                    L += [f"{l}:"]
                    gs.append(L)
        for hf in range(2):
            l = self.lab("l0g")
            L = [f"s_cbranch_vccz {l}", f"s_add_u32 {sT3}, {sKVl}, {KV(2)-KV(0)}"]
            if hf == 0: L += ["v_mov_b32 v28, -1", "v_mov_b32 v29, -1", "v_mov_b32 v30, -1", "v_mov_b32 v31, -1"]
            for f in (2 * hf, 2 * hf + 1):
                L += [f"buffer_store_dwordx4 v[28:31], {vL16}, {srd(SRD_WS)}, {sT3} offen offset:{f*1024} sc1"]
            L += [f"{l}:"]
            gs.append(L)
        return gs

    def wn_items(self):
        its = []
        for n in range(6):
            for k in range(4):
                L = []
                if n == 0 and k == 0: L += [f"s_mul_i32 s64, {sW}, 24576", f"s_add_u32 s65, s64, {sWQN}"]
                if k == 0: L += [f"s_add_u32 m0, s64, {L_W + n*4096}", f"s_add_u32 s82, s65, {n*4096}"]
                L += [f"buffer_load_dwordx4 {vL16}, {srd(SRD_WN)}, s82 offen offset:{k*1024} lds"]
                its.append(L)
        return its

    def wn_touch(self, dst):
        return [f"s_and_b32 {sT0}, {sR}, 1", f"s_lshl_b32 {sT0}, {sT0}, 2", f"s_add_u32 {sT0}, {sT0}, {sW}",
                f"s_mul_i32 {sT0}, {sT0}, 12288", f"s_add_u32 {sT0}, {sT0}, {sWQN}", f"s_add_u32 {sT1}, {sT0}, 8192",
                f"v_lshlrev_b32 {vT0}, 7, {vLANE}",
                f"buffer_load_dword {dst}, {vT0}, {srd(SRD_WN)}, {sT0} offen",
                f"buffer_load_dword {dst}, {vT0}, {srd(SRD_WN)}, {sT1} offen"]

    def o_loads(self, t):
        t(f"s_add_u32 {sT1}, {sOIN}, 4096")
        for i in range(8):
            t(f"buffer_load_dwordx4 {R(vXF+4*i)}, {vL16}, {srd(SRD_WS)}, {sOIN if i < 4 else sT1} offen offset:{(i%4)*1024} sc1")

    def outproj(self):
        a = self.a
        ACC = 64
        self.stamp(8)
        a(f"s_lshl_b32 {sT0}, {sW}, 11")
        a(f"v_add_u32 {vT0}, {sT0}, {vL16}")
        a(f"ds_read_b128 v[96:99], {vT0} offset:{L_XR}")
        a(f"ds_read_b128 v[100:103], {vT0} offset:{L_XR+1024}")
        a(f"s_mul_i32 {sT0}, {sW}, {2*TP}")
        a(f"v_add_u32 v104, {sT0}, {vL16}")
        for g in (1, 2, 3):
            a(f"s_add_u32 {sT0}, {sW}, {g}")
            a(f"s_and_b32 {sT0}, {sT0}, 3")
            a(f"s_mul_i32 {sT0}, {sT0}, {2*TP}")
            a(f"v_add_u32 v{104+g}, {sT0}, {vL16}")
        a("s_waitcnt lgkmcnt(0)")
        for i in range(8):
            a(f"v_lshlrev_b32 v{ACC+2*i}, 16, v{96+i}")
            a(f"v_and_b32 v{ACC+2*i+1}, 0xffff0000, v{96+i}")
        a("s_waitcnt vmcnt(2)")
        a("s_barrier")
        l0 = self.lab("trp")
        a(f"s_cmp_lg_u32 {sL}, 0")
        a(f"s_cbranch_scc1 {l0}")
        a(f"s_lshr_b32 s99, s99, 1")
        self.flag_set("s99")
        self.set_tr_addr(True)
        self.colsum(1, tb=160)
        a.label(l0)
        a(f"v_and_b32 {vT0}, 3, {vLANE}")
        a(f"v_lshlrev_b32 {vT0}, 11, {vT0}")
        a(f"v_add_u32 {vT0}, 2032, {vT0}")
        self.probe(vT0, sOIN, "v20", "v21", 31)
        self.o_loads(a)
        a("s_waitcnt vmcnt(0)")
        self.check_or_poll([vXF + 4 * i for i in range(8)], lambda t: self.o_loads(t), vT0, 30)
        self.stamp(9)
        for i in range(8):
            a(f"ds_write_b128 v104, {R(vXF+4*i)} offset:{L_OT + CH(i)}")
        lB, lD = self.lab("opB"), self.lab("opD")
        a(f"s_bitcmp1_b32 {sL}, 0")
        a(f"s_cbranch_scc1 {lB}")
        for mat in range(2):
            if mat: a.label(lB)
            for i in range(8):
                a(f"{MFMA} {R(ACC,16)}, {AR(mat*128+4*i)}, {R(vXF+4*i)}, {R(ACC,16)}")
            a("s_waitcnt lgkmcnt(0)")
            a("s_barrier")
            for i in range(8, 32):
                a(f"ds_read_b128 {R(vXF+4*i)}, v{104 + i//8} offset:{L_OT + CH(i%8)}")
            for i in range(8, 32):
                a(f"s_waitcnt lgkmcnt({min(15, 31 - i)})")
                a(f"{MFMA} {R(ACC,16)}, {AR(mat*128+4*i)}, {R(vXF+4*i)}, {R(ACC,16)}")
            if not mat: a(f"s_branch {lD}")
        a.label(lD)
        self.stamp(10)
        a("s_nop 7\ns_nop 3")
        for j in range(8): a(f"v_cvt_pk_bf16_f32 v{96+j}, v{ACC+2*j}, v{ACC+2*j+1}")
        llast = self.lab("last")
        a(f"s_cmp_eq_u32 {sL}, 3")
        a(f"s_cbranch_scc1 {llast}")
        a(f"v_min_u32 v96, 0xfffffffe, v96")
        a(f"v_min_u32 v100, 0xfffffffe, v100")
        self.store_msg([("v[96:99]", sXBout, 0), ("v[100:103]", sXBout, 1024)], vL16)
        for i in range(8):
            a(f"v_lshlrev_b32 v{ACC+2*i}, 16, v{96+i}")
            a(f"v_and_b32 v{ACC+2*i+1}, 0xffff0000, v{96+i}")
        self.xstats_store(ACC, sSTout)
        a(f"s_add_u32 {sXBin}, {sXBin}, 0x200000")
        a(f"s_lshl_b32 {sT0}, {sW}, 11")
        a(f"v_add_u32 {vT0}, {sT0}, {vL16}")
        a(f"ds_write_b128 {vT0}, v[96:99] offset:{L_XR}")
        a(f"ds_write_b128 {vT0}, v[100:103] offset:{L_XR+1024}")
        return llast

    def build(self):
        a = self.a
        self.prologue()
        a.label("L_layer")
        self.gemm()
        lb, ld = self.lab("aB"), self.lab("aD")
        a(f"s_bitcmp1_b32 {sL}, 0")
        a(f"s_cbranch_scc1 {lb}")
        self.attn_A()
        a(f"s_branch {ld}")
        a.label(lb)
        self.attn_B()
        a.label(ld)
        llast = self.outproj()
        a(f"s_add_u32 {sL}, {sL}, 1")
        a(f"s_add_u32 {sXBout}, {sXBout}, 0x200000")
        a(f"s_add_u32 {sOBl}, {sOBl}, 0x200000")
        a(f"s_add_u32 {sOIN}, {sOIN}, 0x200000")
        a(f"s_add_u32 {sKVl}, {sKVl}, 0x400000")
        a(f"s_add_u32 {sSTin}, {sSTin}, 0x40000")
        a(f"s_add_u32 {sSTout}, {sSTout}, 0x40000")
        a(f"s_xor_b32 {sCSF}, {sCSF}, {L_CSF ^ (L_CSF + 768)}")
        a(f"s_bitcmp1_b32 {sL}, 0")
        a(f"s_mov_b32 {sT1}, {16*98304}")
        a(f"s_cselect_b32 {sT0}, {(-16*98304) & 0xffffffff}, {sT1}")
        a(f"s_add_u32 {sWQN}, {sWQN}, {sT0}")
        a(f"s_cmp_eq_u32 {sL}, 3")
        a(f"s_cselect_b32 s{SRD_WN+2}, 0, s{SRD_WN+2}")
        a("s_branch L_layer")
        a.label(llast)
        a(f"v_lshlrev_b32 {vT0}, 10, {vC}")
        a(f"v_lshl_add_u32 {vT0}, {vH}, 3, {vT0}")
        a(f"s_lshl_b32 {sT0}, {sRT}, 15")
        a(f"s_lshl_b32 {sT1}, {sCT}, 6")
        a(f"s_add_u32 {sT0}, {sT0}, {sT1}")
        for q in range(4):
            a(f"buffer_store_dwordx2 {R(96+2*q,2)}, {vT0}, {srd(SRD_OUT)}, {sT0} offen offset:{q*16}")
        if self.dbg:
            self.stamp(11)
            a("s_memtime s[96:97]\ns_waitcnt lgkmcnt(0)\nv_writelane_b32 v0, s96, 61")
            a("v_writelane_b32 v0, s84, 56\nv_writelane_b32 v0, s85, 57\nv_writelane_b32 v0, s86, 58\nv_writelane_b32 v0, s87, 59")
            a(f"s_lshl_b32 {sT0}, s2, 10")
            a(f"s_lshl_b32 {sT1}, {sW}, 8")
            a(f"s_add_u32 {sT0}, {sT0}, {sT1}")
            a(f"s_add_u32 {sT0}, {sT0}, {WS_DBG + 0x10000}")
            a(f"v_lshlrev_b32 v22, 2, {vLANE}")
            a(f"buffer_store_dword v0, v22, {srd(SRD_WS)}, {sT0} offen")
            a(f"v_mov_b32 v20, {sERR}")
            a(f"v_mov_b32 v21, {sFAST}")
            a(f"s_lshl_b32 {sT0}, s2, 5")
            a(f"s_lshl_b32 {sT1}, {sW}, 3")
            a(f"s_add_u32 {sT0}, {sT0}, {sT1}")
            a(f"s_add_u32 {sT0}, {sT0}, {WS_DBG}")
            a("v_mov_b32 v22, 0")
            a("s_mov_b64 exec, 1")
            a(f"buffer_store_dwordx2 v[20:21], v22, {srd(SRD_WS)}, {sT0} offen")
        a.label("L_end")
        a("s_endpgm")
        return a.text() + self.tail.text() + "L_codeend:\n"


def full(dbg=False):
    HEADER = open("interleave_layers__sliding_block__sliding_local_dilated__prompt.s.ref").read().split("; Override launch")[0]
    g = Gen(dbg)
    body = g.build()
    return (HEADER + f"; @launch grid=(256,1,1) block=(256,1,1) lds={LDS_BYTES}\n" +
            '.amdgcn_target "amdgcn-amd-amdhsa--gfx950"\n' + f""".text
.globl {NAME}
.p2align 8
.type {NAME},@function
{NAME}:
{body}
.section .rodata,"a"
.p2align 6
.amdhsa_kernel {NAME}
  .amdhsa_next_free_vgpr 512
  .amdhsa_next_free_sgpr 102
  .amdhsa_accum_offset 256
  .amdhsa_group_segment_fixed_size 0
  .amdhsa_kernarg_size 72
  .amdhsa_user_sgpr_count 2
  .amdhsa_user_sgpr_kernarg_segment_ptr 1
  .amdhsa_system_sgpr_workgroup_id_x 1
.end_amdhsa_kernel
""")

if __name__ == "__main__":
    dbg = "--dbg" in sys.argv
    out = [x for x in sys.argv[1:] if not x.startswith("--")]
    txt = full(dbg)
    open(out[0], "w").write(txt)
    from asmlib import build
    build(txt, out[0].replace(".s", ".co"), NAME)
    print("ok", len(txt.splitlines()), "lines")
```

```python
import sys, os
sys.path.insert(0, "work")
from asmlib import Asm

NAME = "interleave_layers__sliding_block__sliding_local_dilated__prompt_kernel"

XB = lambda l: (l - 1) * 0x200000
OB = lambda l: 0x600000 + l * 0x200000
KV = lambda l: 0xE00000 + l * 0x400000
ST = lambda l: 0x1E00000 + l * 0x40000
WOF = 0x1F00000
WQF = 0x2000000
WS_USED = 0x2300000
WS_DBG = 0x2400000
WS_SIZE = 0x2800000
TP = 4128
PO = [0, 1024, 2048, 3088]
L_KV = 0
L_OT = 0
L_FW = 49536
L_XR = 49664
L_CSF = 57856
L_RS = 59392
L_MT = 59904
L_SCR = 61440
def CH(i): return (i // 4) * TP + PO[i % 4]
L_W = 65536
LDS_BYTES = 160 * 1024
sW, sR, sM, sL, sFAST = "s3", "s4", "s5", "s6", "s7"
SRD_X, SRD_WQA, SRD_WQB, SRD_WOA, SRD_WOB, SRD_OUT, SRD_DBG, SRD_WS, SRD_WN = 8, 12, 16, 20, 24, 28, 32, 36, 40
def srd(i): return f"s[{i}:{i+3}]"
sCHK = "s[44:45]"
sT0, sT1, sT2, sT3, sT4, sT5 = "s46", "s47", "s48", "s49", "s50", "s51"
sTRY = "s52"
sXCC = "s53"
sT = "s54"
sRT = "s55"
sCT = "s56"
sXBin, sOBl, sKVl, sSTin, sXBout, sSTout = "s57", "s58", "s59", "s60", "s61", "s62"
sOIN = "s63"
sLO32 = "s[66:67]"
sMSK = "s[68:69]"
sCSF = "s70"
sERR = "s71"
sPT = 72
sH0 = "s[72:73]"
sH1 = "s[74:75]"
sNB0, sNB1 = "s76", "s77"
sL0EX = "s[84:85]"
sWNEX = "s[86:87]"
sWQN = "s90"
sWOB = "s91"
sBIG, sTINY = "s100", "s101"
sU0, sU1, sU2, sU3 = "s92", "s93", "s94", "s95"
vTID, vLANE, vC, vH, vL16 = "v0", "v1", "v2", "v3", "v4"
vTR = 5
vWD = "v11"
vRSTD, vRSTDC = "v12", "v13"
vT0, vT1 = "v14", "v15"
vCSA = "v15"
vQ = 16
vMASK = 232
vCZ = 48
vSA = (64, 80)
vO = (96, 112)
vSB = (128, 144)
vSL = (160, 184, 208)
vXF = 128
vSTG = 64
vKA = "v248"
vVA = ("v249", "v250")
ACC_K, ACC_V, ACC_Q = 64, 80, 96
WF = [24, 32, 40, 48]
W2 = [32, 36, 40, 44, 24, 28]
vRS = 112
vSTAT = 112
vOWNK = 64
vOWNV = 80
SPIN_LIMIT = 40000
NEG_INF = 0xFF800000
QSCALE = 0.25 * 1.4426950408889634
CODE_KB = 40
sRHO = 's88'
OSL = int(os.environ.get('OSL', '0'))
TO = (1, 2, 0)
UP = int(os.environ.get('UP', '8'))
NA0 = int(os.environ.get('NA0', '8'))
WB = [int(x) for x in os.environ.get('WB', '24,24').split(',')]
NWB = int(os.environ.get('NWB', '8'))
NOB = int(os.environ.get('NOB', '16'))
DIRECTNB = int(os.environ.get('DIRECTNB', '1'))

def R(b, n=4): return f"v[{b}:{b+n-1}]"
def AR(b, n=4): return f"a[{b}:{b+n-1}]"
def f32hex(x):
    import struct
    return "0x%08x" % struct.unpack("<I", struct.pack("<f", x))[0]
MFMA = "v_mfma_f32_32x32x16_bf16"

def interleave(valu, extras):
    out = []
    ex = sorted(extras, key=lambda e: e[0])
    k = 0
    for i, v in enumerate(valu + [None]):
        while k < len(ex) and ex[k][0] <= i:
            out += ex[k][1]; k += 1
        if v is not None: out.append(v)
    while k < len(ex):
        out += ex[k][1]; k += 1
    return out

class Gen:
    def __init__(self, dbg=False):
        self.a = Asm()
        self.tail = Asm()
        self.dbg = dbg
        self.nl = 0
    def lab(self, p):
        self.nl += 1
        return f"L_{p}_{self.nl}"

    def stamp(self, p, inloop=True, alt=False):
        if not self.dbg: return
        if inloop and p in (7, 8) and bool(os.environ.get("P1ST")) != alt: return
        if not inloop and p > 0 and bool(os.environ.get("PST")) != alt: return
        a = self.a
        a("s_memtime s[96:97]" if os.environ.get("CYC") else "s_memrealtime s[96:97]")
        if inloop:
            a(f"s_mul_i32 s98, {sL}, 12")
            a(f"s_add_u32 m0, s98, {p + 8}")
        else:
            a(f"s_mov_b32 m0, {p}")
        a("s_waitcnt lgkmcnt(0)")
        a("v_writelane_b32 v0, s96, m0")

    def maxtree(self, a, regs, dst):
        regs = list(regs)
        a(f"v_max3_u32 {dst}, v{regs[0]}, v{regs[1]}, v{regs[2]}")
        i = 3
        while i < len(regs):
            if i + 1 < len(regs):
                a(f"v_max3_u32 {dst}, {dst}, v{regs[i]}, v{regs[i+1]}"); i += 2
            else:
                a(f"v_max_u32 {dst}, {dst}, v{regs[i]}"); i += 1
    def check_or_poll(self, chk_regs, reload_fn, tmp, errcode):
        a, t = self.a, self.tail
        slow, back, loop = self.lab("slow"), self.lab("back"), self.lab("sloop")
        self.maxtree(a, chk_regs, tmp)
        a(f"v_cmp_eq_u32 vcc, -1, {tmp}")
        a(f"s_and_b64 vcc, vcc, {sCHK}")
        a(f"s_cbranch_vccnz {slow}")
        a.label(back)
        t.label(slow)
        t(f"s_mov_b32 {sTRY}, 0")
        t.label(loop)
        if self.dbg:
            c = "s84" if errcode <= 4 else "s85" if errcode == 5 else "s86" if errcode == 10 else "s87"
            t(f"s_add_u32 {c}, {c}, 1")
        reload_fn(t)
        t("s_waitcnt vmcnt(0)")
        self.maxtree(t, chk_regs, tmp)
        t(f"v_cmp_eq_u32 vcc, -1, {tmp}")
        t(f"s_cbranch_vccz {back}")
        t(f"s_add_u32 {sTRY}, {sTRY}, 1")
        t(f"s_cmp_lt_u32 {sTRY}, {SPIN_LIMIT}")
        t(f"s_cbranch_scc1 {loop}")
        t(f"s_mov_b64 {sCHK}, 0")
        t(f"s_mov_b32 {sERR}, {errcode}")
        t(f"s_branch {back}")

    def probe(self, voff, sbase, va, vb, errcode):
        a = self.a
        loop, done, tmo = self.lab("pl"), self.lab("pd"), self.lab("pt")
        ld = lambda v: a(f"buffer_load_dword {v}, {voff}, {srd(SRD_WS)}, {sbase} offen sc1")
        a(f"s_mov_b32 {sTRY}, 0")
        ld(va);
        a("s_sleep 1")
        ld(vb)
        a.label(loop)
        for v in (va, vb):
            a("s_waitcnt vmcnt(1)")
            a(f"v_cmp_eq_u32 vcc, -1, {v}")
            a(f"s_and_b64 vcc, vcc, {sCHK}")
            a(f"s_cbranch_vccz {done}")
            ld(v)
        a(f"s_add_u32 {sTRY}, {sTRY}, 1")
        a(f"s_cmp_lt_u32 {sTRY}, {SPIN_LIMIT}")
        a(f"s_cbranch_scc1 {loop}")
        a(f"s_mov_b64 {sCHK}, 0")
        a(f"s_mov_b32 {sERR}, {errcode}")
        a.label(done)

    def store_msg(self, data, voff, width="dwordx4"):
        a, t = self.a, self.tail
        l1, l2 = self.lab("stsl"), self.lab("stdn")
        a(f"s_cmp_eq_u32 {sFAST}, 0")
        a(f"s_cbranch_scc1 {l1}")
        for d, s, im in data:
            o = f" offset:{im}" if im else ""
            a(f"buffer_store_{width} {d}, {voff}, {srd(SRD_WS)}, {s} offen{o}")
        a.label(l2)
        t.label(l1)
        for d, s, im in data:
            o = f" offset:{im}" if im else ""
            t(f"buffer_store_{width} {d}, {voff}, {srd(SRD_WS)}, {s} offen{o} sc1")
        t(f"s_branch {l2}")

    def w_dma(self, cts):
        a = self.a
        a(f"s_mul_i32 {sT0}, {sW}, {16*3072}")
        a(f"s_lshl_b32 {sT1}, {sM}, 6")
        a(f"s_add_u32 {sT0}, {sT0}, {sT1}")
        a(f"s_lshl_b32 {sT1}, {sW}, 10")
        for i in range(8):
            for ct in cts:
                a(f"s_add_u32 m0, {sT1}, {L_W + ct*32768 + i*4096}")
                a(f"s_add_u32 {sT2}, {sT0}, {i*64*3072 + ct*1024}")
                a(f"buffer_load_dwordx4 {vWD}, {srd(SRD_WN)}, {sT2} offen lds")

    def colsum1(self, tb, hook_at, hook):
        a = self.a
        a(f"s_lshl_b32 {sT2}, {sW}, 13")
        a(f"v_mov_b32 v20, 0x3f803f80")
        jobs = [(ct, hf) for ct in range(3) for hf in range(2)]
        def rd(n):
            ct, hf = jobs[n]; b = tb + 16 * (n % 2)
            a(f"v_add_u32 {vT0}, {sT2}, v{vTR+2*ct}")
            a(f"v_add_u32 {vT1}, {sT2}, v{vTR+2*ct+1}")
            for s in range(4):
                a(f"ds_read_b64_tr_b16 {R(b+4*s,2)}, {vT0} offset:{(hf*4+s)*1024}")
                a(f"ds_read_b64_tr_b16 {R(b+4*s+2,2)}, {vT1} offset:{(hf*4+s)*1024}")
        for ct in range(3): a(f"v_mov_b32 v{21+ct}, 0")
        rd(0)
        for n in range(6):
            if n + 1 < 6: rd(n + 1)
            if n == hook_at: hook()
            a(f"s_waitcnt lgkmcnt({8 if n + 1 < 6 else 0})")
            ct = jobs[n][0]; b = tb + 16 * (n % 2)
            for j in range(16):
                a(f"v_dot2_f32_bf16 v{21+ct}, v{b+j}, v20, v{21+ct}")
        a(f"v_lshlrev_b32 {vT0}, 2, {vLANE}")
        a(f"s_lshl_b32 {sT0}, {sW}, 8")
        a(f"v_add_u32 {vT0}, {sT0}, {vT0}")
        a("s_nop 2")
        for ct in range(3):
            a(f"ds_write_b32 {vT0}, v{21+ct} offset:{L_SCR + ct*1024}")
        a("s_waitcnt lgkmcnt(0)")

    def colsum2(self, mat, t):
        ad = f"v{t+10}"
        rd = [f"s_min_u32 {sT0}, {sW}, 2", f"s_lshl_b32 {sT1}, {sT0}, 10", f"v_lshlrev_b32 {ad}, 2, {vC}", f"v_add_u32 {ad}, {sT1}, {ad}"]
        rd += [f"ds_read_b32 v{t+p}, {ad} offset:{L_SCR + p*128}" for p in range(8)]
        F = [f"v_add_f32 v{t}, v{t}, v{t+k}" for k in range(1, 8)]
        F += [x.strip() for x in f"""
        v_cvt_pk_bf16_f32 v{t+1}, v{t}, v{t}
        v_and_b32 v{t+2}, 0xffff0000, v{t+1}
        v_sub_f32 v{t+3}, v{t}, v{t+2}
        v_cvt_pk_bf16_f32 v{t+4}, v{t+3}, v{t+3}
        v_and_b32 v{t+5}, 0xffff0000, v{t+4}
        v_sub_f32 v{t+6}, v{t+3}, v{t+5}
        v_cvt_pk_bf16_f32 v{t+7}, v{t+6}, v{t+6}
        v_lshrrev_b32 v{t+8}, 16, v{t+2}
        v_or_b32 v{t+8}, v{t+8}, v{t+5}
        v_and_b32 v{t+9}, 0xffff, v{t+7}
        s_lshl_b32 {sT0}, {sT0}, 8
        v_lshlrev_b32 {ad}, 3, {vC}
        v_add_u32 {ad}, {sT0}, {ad}
        """.strip().split("\n")]
        W = f"ds_write_b64 {ad}, v[{t+8}:{t+9}] offset:{L_CSF + mat*768}"
        return rd, F, W

    def set_tr_addr(self, permuted):
        a = self.a
        a(f"v_bfe_u32 {vT0}, {vLANE}, 2, 2")
        a(f"v_lshlrev_b32 {vT0}, 6, {vT0}")
        a(f"v_bfe_u32 {vT1}, {vLANE}, 4, 1")
        a(f"v_lshl_add_u32 {vT0}, {vT1}, 5, {vT0}")
        a(f"v_and_b32 {vT1}, 3, {vLANE}")
        a(f"v_lshl_add_u32 {vT0}, {vT1}, 3, {vT0}")
        a(f"v_lshl_add_u32 {vT0}, {vH}, {8 if permuted else 9}, {vT0}")
        for ct in range(3):
            a(f"v_add_u32 v{vTR+2*ct}, {L_W + ct*32768}, {vT0}")
            a(f"v_add_u32 v{vTR+2*ct+1}, {L_W + ct*32768 + (512 if permuted else 256)}, {vT0}")

    def xstats_store(self, src16, soff_s, hook):
        a = self.a
        a(f"v_add_f32 v20, v{src16}, v{src16+1}")
        a(f"v_mul_f32 v21, v{src16}, v{src16}")
        a(f"v_fmac_f32 v21, v{src16+1}, v{src16+1}")
        for i in range(2, 16):
            a(f"v_add_f32 v20, v20, v{src16+i}")
            a(f"v_fmac_f32 v21, v{src16+i}, v{src16+i}")
        a(f"v_lshlrev_b32 {vT0}, 3, {vLANE}")
        a(f"s_lshl_b32 {sT0}, {sW}, 9")
        a(f"v_add_u32 {vT1}, {sT0}, {vT0}")
        a(f"ds_write_b64 {vT1}, v[20:21] offset:{L_SCR}")
        a("s_waitcnt lgkmcnt(0)")
        a("s_barrier")
        hook()
        lsk = self.lab("xs")
        a(f"s_cmp_lg_u32 {sW}, 1")
        a(f"s_cbranch_scc1 {lsk}")
        for k, w in enumerate((0, 2, 3)):
            a(f"ds_read_b64 v[{22+2*k}:{23+2*k}], {vT0} offset:{L_SCR + w*512}")
        a(f"v_lshlrev_b32 {vT0}, 4, {vC}")
        for k in range(3):
            a(f"s_waitcnt lgkmcnt({2-k})")
            a(f"v_add_f32 v20, v20, v{22+2*k}")
            a(f"v_add_f32 v21, v21, v{23+2*k}")
        a("v_mov_b32 v22, v20")
        a("v_mov_b32 v23, v21")
        a("s_nop 1")
        a("v_permlane32_swap_b32 v20, v22")
        a("v_permlane32_swap_b32 v21, v23")
        a("s_nop 1")
        a("v_add_f32 v20, v20, v22")
        a("v_add_f32 v21, v21, v23")
        a("v_min_u32 v20, 0xfffffffe, v20")
        a(f"s_mov_b64 exec, {sLO32}")
        self.store_msg([("v[20:21]", soff_s, 0)], vT0, width="dwordx2")
        a("s_mov_b64 exec, -1")
        a.label(lsk)

    def mask_tables(self, a):
        a(f"v_mov_b32 v117, {NEG_INF:#x}")
        a(f"v_lshlrev_b32 {vT0}, 2, {vLANE}")
        a(f"v_cmp_ge_u32 vcc, 32, {vLANE}")
        a(f"v_sub_u32 {vT1}, 32, {vLANE}")
        a(f"v_cndmask_b32_e64 v112, v117, 0, vcc")
        a(f"v_cndmask_b32_e64 v113, 0, v117, vcc")
        a(f"v_and_b32 v114, 0xfffffff1, {vT1}")
        a(f"v_cmp_eq_u32 vcc, 0, v114")
        a(f"v_add_u32 {vT1}, 32, {vT1}")
        a(f"v_and_b32 v115, 0xfffffff1, {vT1}")
        a(f"v_cndmask_b32_e64 v114, v117, 0, vcc")
        a(f"v_cmp_eq_u32 vcc, 0, v115")
        a(f"v_mov_b32 v116, 0")
        a("s_nop 0")
        a(f"v_cndmask_b32_e64 v115, v117, 0, vcc")
        for k in range(6):
            a(f"ds_write_b32 {vT0}, v{112+k} offset:{L_MT + k*256}")

    def mask_load(self, dst, tbl, tmp):
        L = [f"v_lshlrev_b32 {tmp}, 2, {vH}", f"v_sub_u32 {tmp}, {tmp}, {vC}", f"v_lshlrev_b32 {tmp}, 2, {tmp}"]
        if isinstance(tbl, int): L += [f"v_add_u32 {tmp}, {L_MT + 128 + tbl*256}, {tmp}"]
        else: L += [f"v_add_u32 {tmp}, {L_MT + 128}, {tmp}", f"v_add_u32 {tmp}, {tbl}, {tmp}"]
        for k in range(8):
            b0 = 8 * (k // 2) + 2 * (k % 2)
            L += [f"ds_read2_b32 {R(dst+2*k,2)}, {tmp} offset0:{b0} offset1:{b0+1}"]
        return L

    def flag_set(self, sval, a=None, va=vT0, vb="v20"):
        a = a or self.a
        lsk = self.lab("hs")
        a(f"s_cmp_lg_u32 {sW}, 0")
        a(f"s_cbranch_scc1 {lsk}")
        a(f"v_mov_b32 {va}, {sval}")
        a(f"v_mov_b32 {vb}, 0")
        a("s_mov_b64 exec, 1")
        a(f"buffer_atomic_or {va}, {vb}, {srd(SRD_DBG)}, {sU3} offen sc1")
        a("s_mov_b64 exec, -1")
        a.label(lsk)

    def prologue(self):
        a = self.a
        a(f"""
        s_cmp_ge_u32 s2, 256
        s_cbranch_scc1 L_end
        s_load_dwordx16 s[{sPT}:{sPT+15}], s[0:1], 0
        s_load_dwordx2 s[88:89], s[0:1], 64
        s_getpc_b64 s[40:41]
        L_pc:
        v_and_b32 {vLANE}, 63, v0
        v_lshrrev_b32 {vT0}, 6, v0
        v_and_b32 {vC}, 31, v0
        v_readfirstlane_b32 {sW}, {vT0}
        s_and_b32 s41, s41, 0xffff
        s_mov_b32 s42, L_codeend-L_pc
        s_mov_b32 s43, 0x20000
        v_lshlrev_b32 {vT1}, 7, {vLANE}
        s_lshr_b32 {sT1}, s2, 3
        s_lshl_b32 {sT0}, {sT1}, 2
        s_add_u32 {sT0}, {sT0}, {sW}
        s_lshl_b32 {sT0}, {sT0}, 9
        s_mov_b64 exec, 15
        buffer_load_dword v24, {vT1}, s[40:43], {sT0} offen
        s_mov_b64 exec, -1
        v_bfe_u32 {vH}, v0, 5, 1
        v_lshlrev_b32 {vL16}, 4, {vLANE}
        s_and_b32 {sT0}, s2, 7
        s_lshl_b32 {sR}, {sT0}, 1
        s_lshr_b32 {sT2}, {sT1}, 4
        s_add_u32 {sR}, {sR}, {sT2}
        s_and_b32 {sM}, {sT1}, 15
        s_getreg_b32 {sXCC}, hwreg(HW_REG_XCC_ID)
        s_and_b32 {sXCC}, {sXCC}, 15
        s_mov_b32 {sL}, 0
        s_mov_b32 {sFAST}, 0
        s_mov_b32 {sERR}, 0
        s_mov_b64 {sCHK}, 0
        s_mov_b32 s66, -1
        s_mov_b32 s67, 0
        s_lshl_b32 {sT}, {sR}, 2
        s_lshr_b32 {sT0}, {sM}, 2
        s_add_u32 {sRT}, {sT}, {sT0}
        s_add_u32 {sT}, {sT}, {sW}
        s_and_b32 {sCT}, {sM}, 3
        s_lshl_b32 {sCT}, {sCT}, 2
        s_add_u32 {sCT}, {sCT}, {sW}
        v_lshrrev_b32 {vT0}, 2, {vLANE}
        v_mul_u32_u24 {vWD}, 3072, {vT0}
        v_and_b32 {vT0}, 3, {vLANE}
        v_lshl_add_u32 {vWD}, {vT0}, 4, {vWD}
        s_and_b32 {sT0}, {sM}, 1
        s_lshl_b32 {sT0}, {sT0}, 2
        s_and_b32 {sT1}, {sR}, 1
        s_lshl_b32 {sT1}, {sT1}, 1
        s_add_u32 {sT0}, {sT0}, {sT1}
        s_lshr_b32 {sT1}, {sM}, 1
        s_add_u32 s64, {sT0}, {sT1}
        s_mul_i32 s65, {sW}, {16*3072}
        s_lshl_b32 {sT1}, {sM}, 6
        s_add_u32 s65, s65, {sT1}
        s_lshl_b32 s98, {sW}, 10
        v_lshrrev_b32 {vT0}, 3, {vLANE}
        v_lshlrev_b32 v16, 10, {vT0}
        v_and_b32 {vT0}, 7, {vLANE}
        v_lshrrev_b32 {vT1}, 4, {vLANE}
        v_xor_b32 {vT0}, {vT0}, {vT1}
        v_lshl_add_u32 v16, {vT0}, 4, v16
        v_xor_b32 v17, 64, v16
        s_lshl_b32 {sU0}, {sT}, 15
        s_lshl_b32 {sU2}, {sW}, 14
        s_waitcnt lgkmcnt(0)
        """)
        self.stamp(0, False)
        if self.dbg:
            a("s_memtime s[96:97]\ns_waitcnt lgkmcnt(0)\nv_writelane_b32 v0, s96, 60")
        def mk(d, p, size):
            a(f"s_mov_b32 s{d}, s{p}")
            a(f"s_and_b32 s{d+1}, s{p+1}, 0xffff")
            a(f"s_mov_b32 s{d+2}, {size}")
            a(f"s_mov_b32 s{d+3}, 0x20000")
        vq = ["code"]
        def wait(tag):
            n = len(vq) - 1 - max(i for i, t in enumerate(vq) if t == tag)
            a(f"s_waitcnt vmcnt({n})")
        def wd_items(p, cts=(1, 2), tag="w"):
            its = []
            for n, ct in enumerate(cts):
                def f(n=n, ct=ct):
                    if n == 0:
                        a(f"s_add_u32 {sT4}, s64, {p}")
                        a(f"s_and_b32 {sT4}, {sT4}, 7")
                        a(f"s_mul_i32 {sT4}, {sT4}, {64*3072}")
                        a(f"s_add_u32 {sT4}, {sT4}, s65")
                    a(f"s_add_u32 m0, s98, {L_W + ct*32768 + p*4096}")
                    a(f"s_add_u32 {sT2}, {sT4}, {ct*1024}")
                    a(f"buffer_load_dwordx4 {vWD}, {srd(SRD_WQA)}, {sT2} offen lds")
                    vq.append(f"{tag}{p}")
                its.append(f)
            return its
        def xd_items(p):
            its = []
            for d in range(4):
                def f(d=d):
                    if d == 0:
                        a(f"s_add_u32 {sT4}, s64, {p}")
                        a(f"s_and_b32 {sT4}, {sT4}, 7")
                        a(f"s_lshl_b32 {sT4}, {sT4}, 7")
                        a(f"s_add_u32 {sT4}, {sT4}, {sU0}")
                    a(f"s_add_u32 m0, {sU2}, {(p%4)*4096 + d*1024}")
                    a(f"s_add_u32 {sT2}, {sT4}, {d*8192}")
                    a(f"buffer_load_dwordx4 v{16 + d%2}, {srd(SRD_X)}, {sT2} offen lds")
                    vq.append(f"x{p}")
                its.append(f)
            return its
        def wd(p):
            for f in wd_items(p): f()
        def xd(p):
            for f in xd_items(p): f()
        LA = int(os.environ.get("LA", "2"))
        mk(SRD_WQA, sPT + 2, 512 * 3072)
        mk(SRD_X, sPT + 0, 2048 * 1024)
        def tch():
            a(f"s_lshr_b32 {sT0}, s2, 3")
            a(f"s_lshl_b32 {sT0}, {sT0}, 2")
            a(f"s_add_u32 {sT0}, {sT0}, {sW}")
            a(f"s_mul_i32 {sT0}, {sT0}, {12*1024}")
            a(f"v_lshlrev_b32 {vT0}, 10, {vLANE}")
            a("s_mov_b64 exec, 0xfff")
            a(f"buffer_load_dword v107, {vT0}, {srd(SRD_WQA)}, {sT0} offen offset:384")
            a("s_mov_b64 exec, -1")
            vq.append("tch")
        def prod():
            self.wqf_loads(); vq.extend(["wqf"] * 2)
            self.wof_loads2(); vq.append("wof")
            a(f"v_mov_b32 {vT0}, {sOBl}")
            a(f"s_add_u32 {sT0}, {sKVl}, 0x400000")
            a(f"v_writelane_b32 {vT0}, {sKVl}, 1")
            a(f"v_writelane_b32 {vT0}, {sT0}, 2")
            a(f"v_writelane_b32 {vT0}, s100, 3")
            a(f"v_writelane_b32 {vT0}, s101, 4")
            a("s_mov_b64 exec, 31")
            a(f"buffer_load_dword v107, {vT0}, {srd(SRD_WS)}, 0 offen sc1")
            a("s_mov_b64 exec, -1")
            vq.append("pt")
        lq = []
        def ld(tag, ins): a(ins); lq.append(tag)
        def lwait(tag):
            n = len(lq) - 1 - max(i for i, t in enumerate(lq) if t == tag)
            a(f"s_waitcnt lgkmcnt({min(n,15)})")
        def st_items():
            def f0():
                wait("wof")
                a(f"buffer_store_dwordx4 {AR(244)}, v104, {srd(SRD_WS)}, s101 offen sc1"); vq.append("wqs")
                ld("wof", f"ds_read_b64_tr_b16 v[108:109], v103")
                ld("wof", f"ds_read_b64_tr_b16 v[110:111], v103 offset:512")
            def f1():
                a(f"s_add_u32 {sT0}, s101, 65536")
                a(f"s_mov_b64 exec, {sLO32}")
                a(f"buffer_store_dwordx4 {AR(248)}, v104, {srd(SRD_WS)}, {sT0} offen sc1"); vq.append("wqs")
                a("s_mov_b64 exec, -1")
            def f2():
                lwait("wof")
                a(f"buffer_store_dwordx4 v[108:111], {vL16}, {srd(SRD_WS)}, s100 offen sc1"); vq.append("wofs")
            return [f0, f1, f2]
        def items(sch):
            its = []
            for k in range(0, len(sch), 2):
                c, n = sch[k], int(sch[k + 1])
                if c == "w": its += wd_items(n)
                if c == "q": its += wd_items(n, (0,), "q")
                if c == "x": its += xd_items(n)
                if c == "t": its.append(tch)
                if c == "P": its.append(prod)
                if c == "s": its += st_items()
                if c == "c": its += (clr_items()[:4] if n == 0 else clr_items()[4:])
            return its
        SCH = os.environ.get("SCH", "t0w0x0|,P0w1x1,w2x2w3c0,s0c1x3w4,x4w5x5,w6w7x6,x7q0q1q2q3,q4q5q6q7").split(",")
        A0, A1 = SCH[0].split("|")
        for f in items(A0): f()
        mk(SRD_WOA, sPT + 4, 512 * 1024)
        mk(SRD_WOB, sPT + 10, 512 * 1024)
        mk(SRD_WQB, sPT + 8, 512 * 3072)
        self.stamp(5, False)
        mk(SRD_WS, 88, WS_SIZE if self.dbg else WS_USED)
        a(f"s_lshl_b32 {sT0}, {sT}, 15")
        a(f"s_lshl_b32 {sT1}, {sM}, 11")
        a(f"s_add_u32 {sOBl}, {sT0}, {sT1}")
        a(f"s_add_u32 {sOBl}, {sOBl}, {OB(0)}")
        a(f"s_lshl_b32 {sT0}, {sT}, 16")
        a(f"s_lshl_b32 {sT1}, {sM}, 12")
        a(f"s_add_u32 {sKVl}, {sT0}, {sT1}")
        a(f"s_add_u32 {sKVl}, {sKVl}, {KV(0)}")
        for f in items(A1): f()
        def clr_items():
            its = [self.layer_start]
            for so, off in [(sOBl, 0), (sOBl, 1024)] + [(sKVl, f * 1024) for f in range(4)]:
                def f(so=so, off=off):
                    a(f"buffer_store_dwordx4 v[20:23], {vL16}, {srd(SRD_WS)}, {so} offen offset:{off} sc1"); vq.append("clr")
                its.append(f)
            return its
        mk(SRD_OUT, sPT + 12, 2048 * 1024)
        mk(SRD_DBG, sPT + 14, 256)
        a(f"s_lshl_b32 {sT0}, {sRT}, 10")
        a(f"s_and_b32 {sT1}, {sM}, 2")
        a(f"s_lshl_b32 {sT1}, {sT1}, 8")
        a(f"s_add_u32 {sSTout}, {sT0}, {sT1}")
        a(f"s_and_b32 {sT1}, {sM}, 1")
        a(f"s_lshl_b32 {sT1}, {sT1}, 3")
        a(f"s_add_u32 {sSTout}, {sSTout}, {sT1}")
        a(f"s_add_u32 {sSTout}, {sSTout}, {ST(1)}")
        a(f"s_lshl_b32 {sT0}, {sT}, 10")
        a(f"s_add_u32 {sSTin}, {sT0}, {ST(0)}")
        a(f"s_lshl_b32 {sT0}, {sT}, 15")
        a(f"s_add_u32 {sXBin}, {sT0}, {(XB(1) - 0x200000) & 0xffffffff}")
        a(f"s_lshl_b32 {sT0}, {sRT}, 15")
        a(f"s_lshl_b32 {sT1}, {sCT}, 11")
        a(f"s_add_u32 {sXBout}, {sT0}, {sT1}")
        a(f"s_add_u32 {sXBout}, {sXBout}, {XB(1)}")
        a(f"s_lshl_b32 {sT1}, {sW}, 13")
        a(f"s_add_u32 {sOIN}, {sT0}, {sT1}")
        a(f"s_add_u32 {sOIN}, {sOIN}, {OB(0)}")
        a(f"s_mov_b32 {sCSF}, {L_CSF}")
        a(f"s_mov_b32 {sRHO}, s64")
        a("s_mov_b32 s89, 0")
        a(f"s_lshl_b32 {sWOB}, {sCT}, 15")
        a(f"s_add_u32 {sWOB}, {sWOB}, {WOF}")
        for g in range(4):
            a(f"s_add_u32 {sT3}, {sW}, {g}")
            a(f"s_and_b32 {sT3}, {sT3}, 3")
            a(f"s_lshl_b32 {sT3}, {sT3}, 13")
            a(f"s_add_u32 s{40+g}, {sT3}, {sWOB}")
        a(f"s_mul_i32 {sWQN}, {sM}, 98304")
        a(f"s_add_u32 {sWQN}, {sWQN}, {WQF}")
        a(f"s_lshl_b32 {sT0}, {sR}, 4")
        a(f"s_add_u32 {sT0}, {sT0}, {sM}")
        a(f"s_and_b32 {sT1}, {sT0}, 3")
        a(f"s_lshl_b32 {sT1}, {sT1}, 3")
        a(f"s_or_b32 {sT2}, {sXCC}, 0x80")
        a(f"s_lshl_b32 {sU1}, {sT2}, {sT1}")
        a(f"s_lshl_b32 s99, 0x40, {sT1}")
        a(f"s_and_b32 {sU3}, {sT0}, 0xfc")
        a(f"""
        v_bfe_u32 {vT0}, {vC}, 1, 3
        v_xor_b32 {vT0}, {vT0}, {vH}
        v_lshlrev_b32 {vT0}, 4, {vT0}
        v_lshl_add_u32 {vT0}, {vC}, 7, {vT0}
        v_add_u32 v56, {sU2}, {vT0}
        v_xor_b32 v57, 32, v56
        v_xor_b32 v58, 64, v56
        v_xor_b32 v59, 0x60, v56
        """)
        a(f"v_cmp_gt_u32 {sH0}, 16, {vC}")
        a(f"v_cmp_le_u32 {sH1}, 16, {vC}")
        a(f"s_mov_b64 {sL0EX}, 0")
        a(f"s_mov_b64 {sWNEX}, 0")
        self.set_tr_addr(False)
        for j in range(6): a(f"v_add_u32 v{96+j}, s98, v{vTR+j}")
        q = vSTAT
        a("v_mov_b32 v60, 0x3f803f80")
        for i in range(4): a(f"v_mov_b32 v{q+i}, 0")
        for i in range(3): a(f"v_mov_b32 v{61+i}, 0")
        a(f"v_lshlrev_b32 {vCSA}, 3, {vC}")
        a(f"v_add_u32 {vCSA}, {sCSF}, {vCSA}")
        self.stamp(4, False)
        for f in items(SCH[1]): f()
        self.stamp(1, False)
        def wrd(s_):
            b = WF[s_ % 4]
            for j in range(4): ld(f"k{s_}", f"ds_read_b64_tr_b16 {R(b+2*j,2)}, v{vTR+2+j} offset:{s_*1024}")
        CT_ = 116
        def ctb(p): return 240 if p == 7 else CT_
        def csrd(p):
            for j in range(2, 6): ld(f"c{p}", f"ds_read_b64_tr_b16 {R(ctb(p)+2*j,2)}, v{96+j} offset:{p*4096}")
        def csdot(p):
            lwait(f"c{p}")
            for j in range(4):
                for ct in (1, 2): a(f"v_dot2_f32_bf16 v{61+ct}, v{ctb(p)+4*ct+j}, v60, v{61+ct}")
        def qrd(h, b):
            wait(f"q{4*h+3}")
            for k in range(4):
                for j in range(2): ld(f"cq{h}", f"ds_read_b64_tr_b16 {R(b+4*k+2*j,2)}, v{96+j} offset:{(4*h+k)*4096}")
        def qdot(h, b):
            lwait(f"cq{h}")
            for j in range(16): a(f"v_dot2_f32_bf16 v61, v{b+j}, v60, v61")
        def mf(s_, fill=None):
            b = WF[s_ % 4]; c0 = "0" if s_ == 0 else None
            lwait(f"k{s_}")
            a(f"{MFMA} {R(ACC_K,16)}, {R(b)}, {R(vXF+4*s_)}, {c0 or R(ACC_K,16)}")
            if fill: fill()
            a(f"{MFMA} {R(ACC_V,16)}, {R(vXF+4*s_)}, {R(b+4)}, {c0 or R(ACC_V,16)}")
            if fill: fill()
        SC0 = 0
        fdone = False
        for p in range(8):
            wait(f"x{p}")
            for k in range(4):
                ld(f"x{p}", f"ds_read_b128 {R(vXF + 4*(4*p+k))}, v{56+k} offset:{(p%4)*4096}")
            if p < 7: csrd(p)
            if p == 7:
                for s_ in range(28, 30): wrd(s_)
            a("s_barrier")
            if p == 7: self.stamp(6, False)
            if p < 7: self.stamp(p + 1, False, alt=True)
            if p < 7:
                for s_ in range(4 * p, 4 * p + 2): wrd(s_)
            else:
                a(f"v_lshlrev_b32 v102, 2, {vC}")
                a(f"v_add_u32 v102, s98, v102")
                for k in range(8): ld("sc", f"ds_read_b32 v{CT_+k}, v102 offset:{SC0 + k*128}")
            sch = SCH[p + 2] if p + 2 < len(SCH) else ""
            for k in range(0, len(sch), 2):
                if sch[k] == "x": assert int(sch[k + 1]) < p + 4
                if sch[k:k+2] == "q7": assert "wofs" in vq
            its = items(sch)
            last = lambda tags: max(i for i, t_ in enumerate(vq) if t_ in tags)
            if vq.count("clr") == 6 and "wofs" in vq and not fdone and last([f"x{p}"]) > last(["clr", "wqs", "wofs"]):
                its = [lambda: self.flag_set(sU1)] + its
                fdone = True
            if p == 6: assert last(["x6"]) > last(["w7"])
            if p == 7: assert fdone
            assert last([f"x{p}"]) > last([f"w{p}"])
            nit = len(its); cnt = [0]
            def tick(w=1.0, total=13.0):
                cnt[0] += w
                while its and (nit - len(its)) < cnt[0] * nit / total: its.pop(0)()
            tick()
            def sdot(p):
                for j in range(16):
                    r = vXF + 16 * p + j
                    a(f"v_dot2_f32_bf16 v{q+2*(j%2)}, v{r}, v60, v{q+2*(j%2)}")
                    a(f"v_dot2_f32_bf16 v{q+1+2*(j%2)}, v{r}, v{r}, v{q+1+2*(j%2)}")
                    if j % 4 == 3: tick()
            if p > 0: sdot(p - 1)
            else: tick(4)
            if p < 7:
                csdot(p)
                for s_ in range(4 * p + 2, 4 * p + 4): wrd(s_)
                if p == 6: csrd(7)
                for s_ in range(4 * p, 4 * p + 3): mf(s_, tick)
                if p == 5: qrd(0, 240)
                if p == 6: csdot(7); qrd(1, 240)
                mf(4 * p + 3, tick)
                assert not its
                if p == 5: qdot(0, 240)
                if p == 6:
                    qdot(1, 240)
                    a(f"v_lshlrev_b32 {vT0}, 2, {vLANE}")
                    a(f"s_lshl_b32 {sT0}, {sW}, 8")
                    a(f"v_add_u32 {vT0}, {sT0}, {vT0}")
                    a("s_nop 2")
                    for ct in range(3): ld("cw", f"ds_write_b32 {vT0}, v{61+ct} offset:{SC0 + ct*1024}")
                    a("s_waitcnt lgkmcnt(0)")
            else:
                for s_ in range(30, 32): wrd(s_)
                lwait("x7")
                sdot(7)
                t = CT_
                F = [f"v_add_f32 v{t}, v{t}, v{t+k}" for k in range(1, 8)]
                F += [x.strip() for x in f"""
                v_cvt_pk_bf16_f32 v{t+1}, v{t}, v{t}
                v_and_b32 v{t+2}, 0xffff0000, v{t+1}
                v_sub_f32 v{t+3}, v{t}, v{t+2}
                v_cvt_pk_bf16_f32 v{t+4}, v{t+3}, v{t+3}
                v_and_b32 v{t+5}, 0xffff0000, v{t+4}
                v_sub_f32 v{t+6}, v{t+3}, v{t+5}
                v_cvt_pk_bf16_f32 v{t+7}, v{t+6}, v{t+6}
                v_lshrrev_b32 v{t+8}, 16, v{t+2}
                v_or_b32 v{t+8}, v{t+8}, v{t+5}
                v_and_b32 v{t+9}, 0xffff, v{t+7}
                s_lshl_b32 {sT1}, {sW}, 8
                v_add_u32 v102, {sT1}, {vCSA}
                ds_write_b64 v102, v[{t+8}:{t+9}]
                v_mov_b32 v102, 0
                ds_write_b32 v102, v102 offset:{L_FW}
                """.strip().split("\n")]
                F += self.stats_ops()
                F += [f"ds_write_b32 {vT0}, {vRSTD} offset:{L_RS}"]
                F += [f"ds_read_b128 {R(vRS+4*qq)}, v21 offset:{L_RS + qq*32}" for qq in range(4)]
                lwait("sc")
                fi = [0]
                def fill():
                    for x in F[fi[0]:fi[0] + 8]:
                        if x.startswith("ds_"): ld("f", x)
                        else: a(x)
                    fi[0] += 8
                for s_ in range(28, 32): mf(s_, fill)
                assert fi[0] >= len(F)
                for i in (1, 2, 3):
                    for x in self.rd2(i): a(x)
                a("s_waitcnt lgkmcnt(0)")
                a("s_barrier")
                a(f"ds_read_b64 {R(WF[0],2)}, {vCSA} offset:256")
                a(f"ds_read_b64 {R(WF[0]+4,2)}, {vCSA} offset:512")
                for x in self.rd2(0): a(x)
                self.flag_load("v20")
                a("s_waitcnt lgkmcnt(0)")
        self.stamp(2, False); self.stamp(3, False); self.stamp(0); self.stamp(1)
        a("s_branch L_join")

    def l0_block(self, t):
        self.mask_tables(t)
        self.pads_init(t)
        t(f"s_mov_b32 {sBIG}, 0x5d800000")
        t(f"s_mov_b32 {sTINY}, 0x21800000")
        t("s_waitcnt lgkmcnt(0)")

    def pads_init(self, a):
        a(f"""
        v_lshrrev_b32 {vT0}, 1, {vLANE}
        v_mul_u32_u24 {vT0}, {TP}, {vT0}
        v_and_b32 {vT1}, 1, {vLANE}
        v_mul_u32_u24 {vT1}, 1040, {vT1}
        v_add_u32 {vT0}, {vT0}, {vT1}
        v_mov_b32 v120, 0x3f803f80
        v_mov_b32 v121, 0x3f803f80
        v_mov_b32 v122, 0x3f803f80
        v_mov_b32 v123, 0x3f803f80
        s_mov_b64 exec, 0xffffff
        ds_write_b128 {vT0}, v[120:123] offset:{L_KV + 3072}
        s_mov_b64 exec, -1
        """)

    def wof_loads2(self):
        a = self.a
        a(f"s_lshl_b32 {sT0}, s2, 2")
        a(f"s_add_u32 {sT0}, {sT0}, {sW}")
        a(f"s_bfe_u32 {sT1}, {sT0}, 0x50004")
        a(f"s_and_b32 {sT2}, {sT0}, 15")
        a(f"s_lshl_b32 {sT3}, {sT1}, 14")
        a(f"s_lshl_b32 {sT4}, {sT2}, 6")
        a(f"s_add_u32 {sT3}, {sT3}, {sT4}")
        a(f"v_lshrrev_b32 v103, 2, {vLANE}")
        a(f"v_lshlrev_b32 v103, 10, v103")
        a(f"v_and_b32 v106, 3, {vLANE}")
        a(f"v_lshl_add_u32 v103, v106, 4, v103")
        a(f"s_add_u32 m0, s98, {L_W + 7*4096}")
        lB, lD = self.lab("wob"), self.lab("wod")
        a(f"s_cmp_ge_u32 {sT0}, 512")
        a(f"s_cbranch_scc1 {lB}")
        a(f"buffer_load_dwordx4 v103, {srd(SRD_WOA)}, {sT3} offen lds")
        a(f"s_branch {lD}")
        a.label(lB)
        a(f"buffer_load_dwordx4 v103, {srd(SRD_WOB)}, {sT3} offen lds")
        a.label(lD)
        a(f"s_and_b32 s100, {sT0}, 512")
        a(f"s_lshl_b32 {sT2}, {sT2}, 5")
        a(f"s_add_u32 s100, s100, {sT2}")
        a(f"s_add_u32 s100, s100, {sT1}")
        a(f"s_lshl_b32 s100, s100, 10")
        a(f"s_add_u32 s100, s100, {WOF}")
        a(f"v_bfe_u32 v103, {vLANE}, 2, 2")
        a(f"v_lshlrev_b32 v103, 6, v103")
        a(f"v_lshl_add_u32 v103, v106, 3, v103")
        a(f"v_bfe_u32 v106, {vLANE}, 4, 1")
        a(f"v_lshl_add_u32 v103, v106, 5, v103")
        a(f"v_lshl_add_u32 v103, {vH}, 8, v103")
        a(f"s_add_u32 {sT0}, s98, {L_W + 7*4096}")
        a(f"v_add_u32 v103, {sT0}, v103")

    def wqf_loads(self):
        a = self.a
        a(f"s_lshl_b32 {sT0}, s2, 2")
        a(f"s_add_u32 {sT0}, {sT0}, {sW}")
        a(f"s_lshr_b32 {sT1}, {sT0}, 3")
        a(f"s_and_b32 {sT5}, {sT0}, 7")
        a(f"s_mul_i32 {sT3}, {sT1}, {4*3072}")
        a(f"s_lshl_b32 {sT0}, {sT5}, 7")
        a(f"s_add_u32 {sT3}, {sT3}, {sT0}")
        a(f"v_bfe_u32 {vT0}, {vLANE}, 3, 2")
        a(f"v_mul_u32_u24 v105, 3072, {vT0}")
        a(f"v_and_b32 v106, 7, {vLANE}")
        a(f"v_lshl_add_u32 v105, v106, 4, v105")
        a(f"v_lshl_add_u32 v105, {vH}, 10, v105")
        a(f"buffer_load_dwordx4 {AR(244)}, v105, {srd(SRD_WQB)}, {sT3} offen")
        a(f"s_mov_b64 exec, {sLO32}")
        a(f"buffer_load_dwordx4 {AR(248)}, v105, {srd(SRD_WQB)}, {sT3} offen offset:2048")
        a("s_mov_b64 exec, -1")
        a(f"s_mul_i32 {sT3}, {sT5}, {2*98304}")
        a(f"s_lshl_b32 {sT5}, {sT1}, 8")
        a(f"s_add_u32 s101, {sT3}, {sT5}")
        a(f"s_add_u32 s101, s101, {WQF}")
        a(f"v_lshlrev_b32 v104, 6, {vT0}")
        a(f"v_and_b32 v106, 3, {vLANE}")
        a(f"v_lshl_add_u32 v104, v106, 4, v104")
        a(f"v_bfe_u32 v106, {vLANE}, 2, 1")
        a(f"v_mul_u32_u24 v106, 98304, v106")
        a(f"v_add_u32 v104, v104, v106")
        a(f"v_lshl_add_u32 v104, {vH}, 15, v104")

    def resid_loads(self, t):
        t(f"v_lshrrev_b32 {vT0}, 2, {vLANE}")
        t(f"v_lshlrev_b32 {vT0}, 10, {vT0}")
        t(f"v_and_b32 {vT1}, 3, {vLANE}")
        t(f"v_lshl_add_u32 {vT0}, {vT1}, 4, {vT0}")
        t(f"s_lshl_b32 {sT0}, {sRT}, 15")
        t(f"s_lshl_b32 {sT1}, {sCT}, 6")
        t(f"s_add_u32 {sT0}, {sT0}, {sT1}")
        t(f"s_lshl_b32 {sT1}, {sW}, 11")
        for d in range(2):
            t(f"s_add_u32 m0, {sT1}, {L_XR + d*1024}")
            t(f"buffer_load_dwordx4 {vT0}, {srd(SRD_X)}, {sT0} offen lds")
            if d == 0: t(f"s_add_u32 {sT0}, {sT0}, 16384")

    def flag_load(self, dst):
        a = self.a
        a(f"v_lshlrev_b32 {vT0}, 2, {vLANE}")
        a(f"buffer_load_dword {dst}, {vT0}, {srd(SRD_DBG)}, 0 offen sc1")

    def flag_check(self, x, y, bit, setfast, layer=0):
        a, t = self.a, self.tail
        skip, slow, loop, back = self.lab("fsk"), self.lab("fsl"), self.lab("flp"), self.lab("fbk")
        l2, nw = self.lab("fl2"), self.lab("fnw")
        m = bit * 0x01010101
        a(f"s_cmp_lg_u32 {sL}, {layer}")
        a(f"s_cbranch_scc1 {skip}")
        a(f"v_and_b32 {y}, {m:#x}, {x}")
        a(f"v_cmp_ne_u32 vcc, {m:#x}, {y}")
        a(f"s_cbranch_vccnz {slow}")
        a.label(back)
        a(f"s_cmp_lg_u32 {sW}, 0")
        a(f"s_cbranch_scc1 {nw}")
        a(f"v_mov_b32 {y}, {layer+1}")
        a(f"v_mov_b32 {vT0}, 0")
        a(f"ds_write_b32 {vT0}, {y} offset:{L_FW}")
        a("s_waitcnt lgkmcnt(0)")
        a.label(nw)
        t.label(slow)
        t(f"s_mov_b32 {sTRY}, 0")
        t(f"s_cmp_eq_u32 {sW}, 0")
        t(f"s_cbranch_scc1 {loop}")
        t(f"v_mov_b32 {vT0}, 0")
        t.label(l2)
        t("s_sleep 2")
        t(f"ds_read_b32 {y}, {vT0} offset:{L_FW}")
        t("s_waitcnt lgkmcnt(0)")
        t(f"v_cmp_eq_u32 vcc, {layer+1}, {y}")
        t(f"s_cbranch_vccnz {loop}x")
        t(f"s_add_u32 {sTRY}, {sTRY}, 1")
        t(f"s_cmp_lt_u32 {sTRY}, {SPIN_LIMIT*8}")
        t(f"s_cbranch_scc1 {l2}")
        t.label(loop)
        t("s_sleep 12")
        t.label(loop + "x")
        t(f"v_lshlrev_b32 {vT0}, 2, {vLANE}")
        t(f"buffer_load_dword {x}, {vT0}, {srd(SRD_DBG)}, 0 offen sc1")
        t("s_waitcnt vmcnt(0)")
        t(f"v_and_b32 {y}, {m:#x}, {x}")
        t(f"v_cmp_ne_u32 vcc, {m:#x}, {y}")
        t(f"s_cbranch_vccz {back}")
        t(f"s_add_u32 {sTRY}, {sTRY}, 1")
        t(f"s_cmp_lt_u32 {sTRY}, {SPIN_LIMIT}")
        t(f"s_cbranch_scc1 {loop}")
        t(f"s_mov_b32 {sERR}, 100")
        t(f"s_branch {back}")
        if setfast:
            a(f"s_mul_i32 {sT0}, {sXCC}, 0x01010101")
            a(f"v_and_b32 {y}, 0x0f0f0f0f, {x}")
            a(f"v_cmp_eq_u32 vcc, {sT0}, {y}")
            a(f"s_lshl_b32 {sT1}, {sR}, 2")
            a(f"s_lshr_b64 {sMSK}, vcc, {sT1}")
            a(f"s_and_b32 {sT0}, s68, 15")
            a(f"s_cmp_eq_u32 {sT0}, 15")
            a(f"s_cselect_b32 {sFAST}, 1, 0")
            if os.environ.get("NOFAST"): a(f"s_mov_b32 {sFAST}, 0")
            a(f"s_cmp_eq_u32 {sERR}, 0")
            a(f"s_cselect_b64 {sCHK}, -1, 0")
        a.label(skip)

    def flag_wait(self, bit, setfast):
        a = self.a
        loop, done = self.lab("hw"), self.lab("hwd")
        m = bit * 0x01010101
        a(f"s_mov_b32 {sTRY}, 0")
        a(f"v_lshlrev_b32 {vT0}, 2, {vLANE}")
        a.label(loop)
        a(f"buffer_load_dword v20, {vT0}, {srd(SRD_DBG)}, 0 offen sc1")
        a("s_waitcnt vmcnt(0)")
        a(f"v_and_b32 v21, {m:#x}, v20")
        a(f"v_cmp_ne_u32 vcc, {m:#x}, v21")
        a(f"s_cbranch_vccz {done}")
        a("s_sleep 2")
        a(f"s_add_u32 {sTRY}, {sTRY}, 1")
        a(f"s_cmp_lt_u32 {sTRY}, {SPIN_LIMIT}")
        a(f"s_cbranch_scc1 {loop}")
        a(f"s_mov_b32 {sERR}, 100")
        a.label(done)
        if setfast:
            a(f"s_mul_i32 {sT0}, {sXCC}, 0x01010101")
            a(f"v_and_b32 v21, 0x0f0f0f0f, v20")
            a(f"v_cmp_eq_u32 vcc, {sT0}, v21")
            a(f"s_lshl_b32 {sT1}, {sR}, 2")
            a(f"s_lshr_b64 {sMSK}, vcc, {sT1}")
            a(f"s_and_b32 {sT0}, s68, 15")
            a(f"s_cmp_eq_u32 {sT0}, 15")
            a(f"s_cselect_b32 {sFAST}, 1, 0")
            if os.environ.get("NOFAST"): a(f"s_mov_b32 {sFAST}, 0")
            a(f"s_cmp_eq_u32 {sERR}, 0")
            a(f"s_cselect_b64 {sCHK}, -1, 0")

    def x_loads(self, t, g):
        t(f"s_add_u32 {sT0}, {sXBin}, {g*8192}")
        t(f"s_add_u32 {sT1}, {sXBin}, {g*8192+4096}")
        for i in range(8):
            s = 8 * g + i
            t(f"buffer_load_dwordx4 {R(vXF+4*s)}, {vL16}, {srd(SRD_WS)}, {sT0 if i < 4 else sT1} offen offset:{(i%4)*1024} sc1")

    def st_load(self):
        return f"buffer_load_dwordx4 {R(vSTAT)}, {vL16}, {srd(SRD_WS)}, {sSTin} offen sc1"
    def st_loads(self, t):
        t(self.st_load())

    def layer_start(self):
        a = self.a
        a("v_mov_b32 v20, -1\nv_mov_b32 v21, -1\nv_mov_b32 v22, -1\nv_mov_b32 v23, -1")
        lk = self.lab("clrk")
        a(f"s_bitcmp1_b32 {sL}, 0")
        a(f"s_cbranch_scc1 {lk}")
        a(f"s_cmp_lg_u32 {sW}, 3")
        a(f"s_cbranch_scc1 {lk}")
        a(f"s_add_u32 {sT0}, {sKVl}, 0x400000")
        for f in range(4):
            a(f"buffer_store_dwordx4 v[20:23], {vL16}, {srd(SRD_WS)}, {sT0} offen offset:{f*1024} sc1")
        a.label(lk)

    def group_clears(self):
        a = self.a
        l3 = self.lab("clr3")
        a(f"s_cmp_eq_u32 {sL}, 3")
        a(f"s_cbranch_scc1 {l3}")
        a("v_mov_b32 v20, -1\nv_mov_b32 v21, -1\nv_mov_b32 v22, -1\nv_mov_b32 v23, -1")
        a(f"s_add_u32 {sT0}, {sOBl}, 0x200000")
        self.store_msg([("v[20:23]", sXBout, 0), ("v[20:23]", sXBout, 1024), ("v[20:23]", sT0, 0), ("v[20:23]", sT0, 1024)], vL16)
        a(f"v_lshlrev_b32 {vT0}, 4, {vC}")
        self.store_msg([("v[20:21]", sSTout, 0)], vT0, width="dwordx2")
        a.label(l3)

    def kv2_clear(self, half):
        L = []
        if half == 0: L += ["v_mov_b32 v28, -1", "v_mov_b32 v29, -1", "v_mov_b32 v30, -1", "v_mov_b32 v31, -1", f"s_add_u32 {sT5}, {sKVl}, {KV(2)-KV(0)}"]
        L += [f"s_mov_b64 exec, {sL0EX}"]
        for f in (2 * half, 2 * half + 1):
            L += [f"buffer_store_dwordx4 v[28:31], {vL16}, {srd(SRD_WS)}, {sT5} offen offset:{f*1024} sc1"]
        L += ["s_mov_b64 exec, -1"]
        return L

    def nb_loads(self, t):
        for k, s in enumerate((sNB0, sNB1)):
            for f in range(4):
                t(f"buffer_load_dwordx4 {R(vSTG+16*k+4*f)}, {vL16}, {srd(SRD_WS)}, {s} offen offset:{f*1024} sc1")

    def stats_ops(self):
        q = vSTAT
        L = []
        for i in range(1, 2):
            L.append(f"v_add_f32 v{q}, v{q}, v{q+2*i}")
            L.append(f"v_add_f32 v{q+1}, v{q+1}, v{q+2*i+1}")
        L += [x.strip() for x in f"""
        v_mov_b32 v{q+2}, v{q}
        v_mov_b32 v{q+3}, v{q+1}
        v_mov_b32 v18, 0
        v_mov_b32 v19, 0
        v_permlane32_swap_b32 v{q}, v{q+2}
        v_permlane32_swap_b32 v{q+1}, v{q+3}
        s_lshl_b32 {sT0}, {sW}, 7
        v_lshlrev_b32 {vT0}, 2, {vC}
        v_add_f32 v{q}, v{q}, v{q+2}
        v_add_f32 v{q+1}, v{q+1}, v{q+3}
        v_mul_f32 v{q}, {f32hex(1/512)}, v{q}
        v_mul_f32 v{q+1}, {f32hex(1/512)}, v{q+1}
        v_fma_f32 v{q+1}, -v{q}, v{q}, v{q+1}
        v_max_f32 v{q+1}, 0, v{q+1}
        v_cvt_pk_bf16_f32 v{q+2}, v{q}, v{q+1}
        v_and_b32 v{q+3}, 0xffff0000, v{q+2}
        v_add_f32 v{q+3}, {f32hex(1e-5)}, v{q+3}
        v_cvt_pk_bf16_f32 v{q+3}, v{q+3}, v{q+3}
        v_and_b32 v{q+3}, 0xffff0000, v{q+3}
        v_sqrt_f32 v{q+3}, v{q+3}
        v_and_b32 v{q+2}, 0xffff, v{q+2}
        v_xor_b32 v{q+2}, 0x8000, v{q+2}
        v_cvt_pk_bf16_f32 v{q+3}, v{q+3}, v{q+3}
        v_and_b32 v{q+3}, 0xffff0000, v{q+3}
        v_rcp_f32 {vRSTD}, v{q+3}
        v_cndmask_b32_e64 v17, 0, v{q+2}, {sLO32}
        v_lshl_or_b32 v16, v17, 16, v17
        v_add_u32 {vT0}, {sT0}, {vT0}
        v_mul_f32 {vRSTDC}, {f32hex(QSCALE)}, {vRSTD}
        v_lshlrev_b32 v21, 4, {vH}
        v_add_u32 v21, {sT0}, v21
        """.strip().split("\n")]
        return L

    def x_load1(self, s):
        so = ["s78", "s79", "s80", "s81", "s82", "s83", "s64", "s65"][s // 4]
        return f"buffer_load_dwordx4 {R(vXF+4*s)}, {vL16}, {srd(SRD_WS)}, {so} offen offset:{(s%4)*1024} sc1"

    def q_order(self):
        return [32] + list(range(31, -1, -1))
    def rd2(self, i):
        order = self.q_order()
        if i >= len(order): return []
        s = order[i]; b = W2[i % len(W2)]
        if s == 32: return [f"ds_read_b64 {R(b,2)}, {vCSA} offset:0"]
        return [f"ds_read_b64_tr_b16 {R(b,2)}, v{vTR} offset:{s*1024}",
                f"ds_read_b64_tr_b16 {R(b+2,2)}, v{vTR+1} offset:{s*1024}"]

    def pass1(self, first):
        a = self.a
        PF = 3
        lq = []
        def ld(tag, ins): a(ins); lq.append(tag)
        def lwait(tag):
            n = len(lq) - 1 - max(i for i, t in enumerate(lq) if t == tag)
            a(f"s_waitcnt lgkmcnt({min(n,15)})")
        def rd1(s):
            b = WF[s % 4]
            if s < 32:
                return [(s, f"ds_read_b64_tr_b16 {R(b+2*j,2)}, v{vTR+2+j} offset:{s*1024}") for j in range(4)]
            if s == 32:
                return [(s, f"ds_read_b64 {R(b,2)}, {vCSA} offset:256"), (s, f"ds_read_b64 {R(b+4,2)}, {vCSA} offset:512")]
            i = 2 * (s - 33)
            return [(f"q{i}", x) for x in self.rd2(i)] + [(f"q{i+1}", x) for x in self.rd2(i + 1)]
        issued = []
        def vm(tag, ins): a(ins); issued.append(tag)
        def wait(tag):
            n = len(issued) - 1 - max(i for i, t in enumerate(issued) if t == tag)
            a(f"s_waitcnt vmcnt({n})")
        if not first:
            issued += list(range(UP))
            a("v_mov_b32 v60, 0")
        a(f"v_lshlrev_b32 {vCSA}, 3, {vC}")
        a(f"v_add_u32 {vCSA}, {sCSF}, {vCSA}")
        for s in range(PF):
            for t_, x in rd1(s): ld(t_, x)
        st = self.stats_ops(); si = 0
        SS = 25
        for s in range(32):
            if not first:
                wait(s)
                if s == SS:
                    wait("st")
                    a(f"v_max3_u32 v60, v60, v{vSTAT}, v{vSTAT+2}")
            if os.environ.get("P1ST"):
                p1, p2 = map(int, os.environ["P1ST"].split(","))
                if s == p1: self.stamp(7, alt=True)
                if s == p2: self.stamp(8, alt=True)
            b = WF[s % 4]
            nxt = rd1(s + PF)
            lwait(s)
            c0 = "0" if s == 0 else None
            def fill():
                nonlocal si
                if s >= SS:
                    for x in st[si:si + 3]: a(x)
                    si += 3
                    if si >= len(st) and si - 3 < len(st):
                        ld("rsw", f"ds_write_b32 {vT0}, {vRSTD} offset:{L_RS}")
                        for qq in range(4):
                            ld("rs", f"ds_read_b128 {R(vRS+4*qq)}, v21 offset:{L_RS + qq*32}")
            a(f"{MFMA} {R(ACC_K,16)}, {R(b)}, {R(vXF+4*s)}, {c0 or R(ACC_K,16)}")
            for t_, x in nxt[:2]: ld(t_, x)
            fill()
            if not first:
                if s + UP < 32: vm(s + UP, self.x_load1(s + UP))
                if s % 2 == 1: a(f"v_max3_u32 v60, v60, v{vXF+4*s}, v{vXF+4*s-4}")
            a(f"{MFMA} {R(ACC_V,16)}, {R(vXF+4*s)}, {R(b+4)}, {c0 or R(ACC_V,16)}")
            for t_, x in nxt[2:]: ld(t_, x)
            fill()
            if not first:
                if s == 17: vm("st", self.st_load())
            if s == 21:
                self.flag_load("v20"); issued.append("f")
            if not first and s == UP:
                a("v_cmp_eq_u32 vcc, -1, v60")
                a(f"s_and_b64 vcc, vcc, {sCHK}")
                a(f"s_cbranch_vccnz {self.l_restart}")
            if not first and s == 27:
                lnb = self.lab("nq")
                a(f"s_cmp_lg_u32 {sL}, 2")
                a(f"s_cbranch_scc1 {lnb}")
                a("s_barrier")
                a.label(lnb)
            if not first and s in (25, 28):
                h = (WB[0] + WB[1]) // 2 // 4 * 4
                lo, hi = (WB[0], h) if s == 25 else (h, WB[1])
                if hi > lo: self.l1_wob(lo, hi)
        assert si >= len(st)
        self.lq_end = lq

    def gemm(self):
        a, t = self.a, self.tail
        self.stamp(0)
        l0, ljoin, lredo, lrl = self.lab("g_l0"), self.lab("g_join"), self.lab("g_redo"), self.lab("g_rl")
        self.w_swap(0, layer=2)
        lpf, lpb = self.lab("xpf"), self.lab("xpb")
        a(f"s_waitcnt vmcnt({UP})")
        a("v_cmp_eq_u32 vcc, -1, v109")
        a(f"s_and_b64 vcc, vcc, {sCHK}")
        a(f"s_cbranch_vccnz {lpf}")
        a.label(lpb)
        self.l_restart = self.lab("xrs")
        t.label(self.l_restart)
        if self.dbg: t("s_add_u32 s84, s84, 1")
        t("s_waitcnt vmcnt(0) lgkmcnt(0)")
        t("s_add_u32 s89, s89, 1")
        t(f"s_cmp_lt_u32 s89, {SPIN_LIMIT}")
        t(f"s_cselect_b64 {sCHK}, {sCHK}, 0")
        t.label(lpf)
        if self.dbg: t("s_add_u32 s85, s85, 1")
        self.a = t
        self.probe("v108", sXBin, "v20", "v21", 1)
        self.a = a
        for k in range(UP): t(self.x_load1(k))
        t(f"s_branch {lpb}")
        self.stamp(1)
        self.pass1(False)
        a("v_cmp_eq_u32 vcc, -1, v60")
        a(f"s_and_b64 vcc, vcc, {sCHK}")
        a(f"s_cbranch_vccnz {lredo}")
        t.label(lredo)
        t(f"s_mov_b32 {sTRY}, 0")
        t("s_waitcnt vmcnt(0) lgkmcnt(0)")
        t("s_nop 7\ns_nop 7")
        t.label(lrl)
        if self.dbg: t("s_add_u32 s84, s84, 1")
        for k in range(32): t(self.x_load1(k))
        self.st_loads(t)
        t("s_waitcnt vmcnt(0)")
        self.maxtree(t, [vXF + 4 * k for k in range(32)] + [vSTAT + 2 * i for i in range(2)], vT0)
        t(f"v_cmp_eq_u32 vcc, -1, {vT0}")
        t(f"s_cbranch_vccz {l0}")
        t(f"s_add_u32 {sTRY}, {sTRY}, 1")
        t(f"s_cmp_lt_u32 {sTRY}, {SPIN_LIMIT}")
        t(f"s_cbranch_scc1 {lrl}")
        t(f"s_mov_b64 {sCHK}, 0")
        t(f"s_mov_b32 {sERR}, 2")
        t(f"s_branch {l0}")
        t.label(l0)
        self.a = t
        self.pass1(True)
        self.a = a
        t("s_waitcnt vmcnt(0)")
        t("s_branch L_join")
        a.label("L_join")
        self.stamp(2)
        lq = list(self.lq_end)
        if self.dbg: lq = [t_ for t_ in lq]
        def ld(tag, ins): a(ins); lq.append(tag)
        def lwait(tag):
            n = len(lq) - 1 - max(i for i, t_ in enumerate(lq) if t_ == tag)
            a(f"s_waitcnt lgkmcnt({min(n,15)})")
        b = WF[32 % 4]
        PF2 = 5
        lwait(32)
        a(f"{MFMA} {R(ACC_K,16)}, {R(b)}, v[16:19], {R(ACC_K,16)}")
        a(f"{MFMA} {R(ACC_V,16)}, v[16:19], {R(b+4)}, {R(ACC_V,16)}")
        for x in self.rd2(4): ld("q4", x)
        F = []
        def I(x): F.append((1, lambda x=x: a(x)))
        def L(tag, x): F.append((1, lambda tag=tag, x=x: ld(tag, x)))
        def G(n, fn): F.append((n, fn))
        for r in range(16): I(f"v_mul_f32 v{ACC_K+r}, {vRSTD}, v{ACC_K+r}")
        for j in range(8): I(f"v_cvt_pk_bf16_f32 v{vOWNK+j}, v{ACC_K+2*j}, v{ACC_K+2*j+1}")
        for f in (vOWNK, vOWNK + 4): I(f"v_min_u32 v{f}, 0xfffffffe, v{f}")
        G(1, lambda: lwait("rs"))
        for r in range(16): I(f"v_mul_f32 v{ACC_V+r}, v{vRS+r}, v{ACC_V+r}")
        for j in range(8): I(f"v_cvt_pk_bf16_f32 v{vOWNV+j}, v{ACC_V+2*j}, v{ACC_V+2*j+1}")
        for f in (vOWNV, vOWNV + 4): I(f"v_min_u32 v{f}, 0xfffffffe, v{f}")
        G(6, self.kv_publish)
        NF = len(F)
        G(0, lambda: self.stamp(3))
        I(f"s_mul_i32 {sT0}, {sW}, {TP}")
        I(f"v_add_u32 {vKA}, {sT0}, {vL16}")
        OWN = [vOWNK, vOWNK + 4, vOWNV, vOWNV + 4]
        for f in range(4): L("own", f"ds_write_b128 {vKA}, {R(OWN[f])} offset:{L_KV + 8*TP + PO[f]}")
        I(f"s_add_u32 {sT0}, {sT0}, 1024")
        I(f"v_mov_b32 {vT0}, {sT0}")
        I(f"v_cndmask_b32_e64 {vVA[0]}, {vT0}, {vKA}, {sH0}")
        I(f"v_cndmask_b32_e64 {vVA[1]}, {vT0}, {vKA}, {sH1}")
        self.flags_done = False
        def flags():
            self.flags_done = True
            lfs = self.lab("nofl")
            a(f"s_bitcmp1_b32 {sL}, 0")
            a(f"s_cbranch_scc1 {lfs}")
            a("s_waitcnt vmcnt(4)")
            lb, lr = self.lab("l0b"), self.lab("l0r")
            a(f"s_cmp_eq_u32 {sL}, 0")
            a(f"s_cbranch_scc1 {lb}")
            a.label(lr)
            t.label(lb)
            self.l0_block(t)
            t(f"s_branch {lr}")
            self.flag_check("v20", "v21", 0x80, True)
            self.flag_check("v20", "v21", 0x20, False, layer=2)
            a.label(lfs)
        G(6, flags)
        G(14, self.group_clears)
        def msel():
            a(f"s_bitcmp1_b32 {sL}, 0")
            a(f"s_cselect_b32 {sT2}, 512, 0")
            a(f"s_cselect_b32 {sT3}, 3, 4")
            a(f"s_cmp_eq_u32 {sT}, 0")
            a(f"s_cselect_b32 {sT3}, 5, {sT3}")
            a(f"s_lshl_b32 {sT3}, {sT3}, 8")
        G(6, msel)
        for x in self.mask_load(vMASK, sT2, vT0) + self.mask_load(vCZ, sT3, vT0):
            if x.startswith("ds_"): L("m", x)
            else: I(x)
        NB = len(F)
        G(12, self.nb_issue)
        order = self.q_order()
        fi = 0
        for i, s_ in enumerate(order):
            b = W2[i % len(W2)]
            lwait(f"q{i}")
            bop = "v[16:19]" if s_ == 32 else R(vXF + 4 * s_)
            a(f"{MFMA} {R(ACC_Q,16)}, {R(b)}, {bop}, {'0' if i == 0 else R(ACC_Q,16)}")
            for x in self.rd2(i + PF2): ld(f"q{i+PF2}", x)
            budget = 8 if fi < NF else 3
            while fi < len(F) and budget > 0:
                if fi == NB and i < int(os.environ.get("NBAT", "24")): break
                budget -= F[fi][0]; F[fi][1](); fi += 1
            if i in (10, 14, 18, 22) and WB[1] + (i - 10) < 32:
                self.l1_wob(WB[1] + (i - 10), WB[1] + (i - 10) + 4 if i < 22 else 32)
            if i == 16: assert self.flags_done
            if i in (16, 20) and NA0: self.l1_wob((i - 16) // 4 * NA0 // 2, ((i - 16) // 4 + 1) * NA0 // 2, layer=0, mat=0)
            if s_ == 6:
                assert fi > NF + 10
                for x in self.rd_tile(0): ld("t0", x)
        assert fi == len(F), (fi, len(F))
        a("s_nop 7\ns_nop 3")
        for r in range(16): a(f"v_mul_f32 v{ACC_Q+r}, {vRSTDC}, v{ACC_Q+r}")
        for j in range(8): a(f"v_cvt_pk_bf16_f32 v{vQ+j}, v{ACC_Q+2*j}, v{ACC_Q+2*j+1}")
        a("s_waitcnt lgkmcnt(0)")
        self.stamp(4)

    def kv_publish(self):
        a = self.a
        OWN = [vOWNK, vOWNK + 4, vOWNV, vOWNV + 4]
        lsk = self.lab("kvsk")
        ldo = self.lab("kvdo")
        a(f"s_bitcmp0_b32 {sL}, 0")
        a(f"s_cbranch_scc1 {ldo}")
        a(f"s_cmp_lg_u32 {sW}, 3")
        a(f"s_cbranch_scc1 {lsk}")
        a.label(ldo)
        for f in range(4):
            a(f"buffer_store_dwordx4 {R(OWN[f])}, {vL16}, {srd(SRD_WS)}, {sKVl} offen offset:{f*1024} sc1")
        a.label(lsk)

    def nb_issue(self):
        a = self.a
        a(f"s_sub_u32 {sT0}, {sW}, 8")
        a(f"s_lshl_b32 {sT1}, {sT0}, 16")
        a(f"s_add_u32 {sNB0}, {sKVl}, {sT1}")
        a(f"s_add_u32 {sNB1}, {sNB0}, 65536")
        a(f"s_add_i32 {sT0}, {sT0}, {sT}")
        a(f"s_cmp_lt_i32 {sT0}, 0")
        a(f"s_cselect_b32 {sNB0}, 0x7f000000, {sNB0}")
        a(f"s_cselect_b32 {sNB1}, 0x7f000000, {sNB1}")
        lA = self.lab("nbA")
        a(f"s_bitcmp0_b32 {sL}, 0")
        a(f"s_cbranch_scc1 {lA}")
        a(f"s_mov_b32 {sNB0}, 0x7f000000")
        a(f"s_cmp_lg_u32 {sW}, 3")
        a(f"s_cselect_b32 {sNB1}, 0x7f000000, {sNB1}")
        if not DIRECTNB: self.nb_loads(a)
        a.label(lA)
        if DIRECTNB: self.nb_loads(a)

    def flag_wait_safe(self):
        a = self.a
        loop, done = self.lab("hw"), self.lab("hwd")
        m = 0x80808080
        x, y = f"v{vSTG}", f"v{vSTG+1}"
        a(f"s_mov_b32 {sTRY}, 0")
        a(f"v_lshlrev_b32 {vT0}, 2, {vLANE}")
        a.label(loop)
        a(f"buffer_load_dword {x}, {vT0}, {srd(SRD_DBG)}, 0 offen sc1")
        a("s_waitcnt vmcnt(0)")
        a(f"v_and_b32 {y}, {m:#x}, {x}")
        a(f"v_cmp_ne_u32 vcc, {m:#x}, {y}")
        a(f"s_cbranch_vccz {done}")
        a("s_sleep 2")
        a(f"s_add_u32 {sTRY}, {sTRY}, 1")
        a(f"s_cmp_lt_u32 {sTRY}, {SPIN_LIMIT}")
        a(f"s_cbranch_scc1 {loop}")
        a(f"s_mov_b32 {sERR}, 100")
        a.label(done)
        a(f"s_mul_i32 {sT0}, {sXCC}, 0x01010101")
        a(f"v_and_b32 {y}, 0x0f0f0f0f, {x}")
        a(f"v_cmp_eq_u32 vcc, {sT0}, {y}")
        a(f"s_lshl_b32 {sT1}, {sR}, 2")
        a(f"s_lshr_b64 {sMSK}, vcc, {sT1}")
        a(f"s_and_b32 {sT0}, s68, 15")
        a(f"s_cmp_eq_u32 {sT0}, 15")
        a(f"s_cselect_b32 {sFAST}, 1, 0")
        if os.environ.get("NOFAST"): a(f"s_mov_b32 {sFAST}, 0")
        a(f"s_cmp_eq_u32 {sERR}, 0")
        a(f"s_cselect_b64 {sCHK}, -1, 0")

    def rd_tile(self, i, k=True):
        sl = vSL[i % 3]; o = L_KV + (8 - i) * TP
        r = [f"ds_read_b128 {R(sl)}, {vKA} offset:{o}", f"ds_read_b128 {R(sl+4)}, {vKA} offset:{o+1024}"]
        for h in range(2):
            r += [f"ds_read_b128 {R(sl+8+8*h)}, {vVA[h]} offset:{o+PO[2]}", f"ds_read_b128 {R(sl+12+8*h)}, {vVA[h]} offset:{o+PO[3]}"]
        return r
    def Sbuf(self, i, h): return (vSB if i % 2 == 0 else vSA)[h]
    def S_mfma(self, i, h, cm):
        ksrc = vSL[i % 3] + 4 * h
        return f"{MFMA} {R(self.Sbuf(i,h),16)}, {R(ksrc)}, {R(vQ+4*h)}, {R(cm,16)}"
    def PV(self, i, h, f):
        S = self.Sbuf(i, h); sl = vSL[i % 3]
        c = "0" if (i == 0 and f == 0) else R(vO[h], 16)
        return f"{MFMA} {R(vO[h],16)}, {R(sl+8+8*h+4*f)}, {R(S+4*f)}, {c}"
    def expcvt(self, i, h):
        S = self.Sbuf(i, h)
        v = [f"v_exp_f32 v{S+r}, v{S+r}" for r in range(16)]
        v += [f"v_cvt_pk_bf16_f32 v{S+j}, v{S+2*j}, v{S+2*j+1}" for j in range(8)]
        return v

    def attention(self, n, cmask, extra_at=None, bg=None, post_g5=None):
        a = self.a
        a("s_nop 0")
        a(self.S_mfma(0, 0, cmask(0)))
        a(self.S_mfma(0, 1, cmask(0)))
        def take(): return bg.pop(0) if bg else []
        def slots(ps): return [(p, take()) for p in ps]
        for t in range(n + 1):
            ex = []
            if t == 0:
                ex += [(0, ["s_nop 7", "s_nop 3"])]
            if t >= 1:
                ex += [(1, [self.PV(t - 1, 1, 0)]), (7, [self.PV(t - 1, 1, 1)])]
                if t + 1 <= n:
                    pre = self.invalid_fix(t + 1) if self.fix_invalid else []
                    ex += [(14, pre + ["s_waitcnt lgkmcnt(0)", self.S_mfma(t + 1, 0, cmask(t + 1))])]
                ex += slots((3, 9, 16, 21))
            for x in interleave(self.expcvt(t, 0), ex): a(x)
            if t == 0:
                a("s_waitcnt vmcnt(0)")
                lsk = self.lab("nbw")
                if n == 1:
                    a(f"s_cmp_lg_u32 {sW}, 3")
                    a(f"s_cbranch_scc1 {lsk}")
                fs = range(8) if n == 8 else range(4, 8)
                self.check_or_poll([vSTG + 4 * f for f in fs], lambda t_: self.nb_loads(t_), vT0, 10)
                a(f"s_mul_i32 {sT0}, {sW}, {2*TP}")
                a(f"v_add_u32 {vT0}, {sT0}, {vL16}")
                for f in fs:
                    a(f"ds_write_b128 {vT0}, {R(vSTG+4*f)} offset:{L_KV + CH(f)}")
                a("s_waitcnt lgkmcnt(0)")
                a.label(lsk)
                a("s_barrier")
                self.stamp(5)
                for x in self.rd_tile(1): a(x)
                if post_g5: post_g5()
            if extra_at and t in extra_at: extra_at[t]()
            ex = []
            if t == 0:
                ex += [(1, [self.PV(0, 0, 0)]), (6, [self.PV(0, 0, 1)])]
                pre = self.invalid_fix(1) if self.fix_invalid else []
                ex += [(11, pre + ["s_waitcnt lgkmcnt(0)", self.S_mfma(1, 0, cmask(1))])]
                if 2 <= n: ex += [(12, self.rd_tile(2))]
                ex += [(17, [self.S_mfma(1, 1, cmask(1))])]
                ex += slots((3, 8, 14, 21))
            else:
                if t + 2 <= n: ex += [(0, self.rd_tile(t + 2))]
                ex += [(2, [self.PV(t, 0, 0)]), (8, [self.PV(t, 0, 1)])]
                if t + 1 <= n: ex += [(14, [self.S_mfma(t + 1, 1, cmask(t + 1))])]
                ex += slots((4, 10, 16, 21))
            for x in interleave(self.expcvt(t, 1), ex): a(x)
        a("s_nop 1")
        a(self.PV(n, 1, 0)); a(self.PV(n, 1, 1))
        while bg:
            for x in bg.pop(0): a(x)

    def invalid_fix(self, i):
        t = self.tail
        lf, lb = self.lab("fix"), self.lab("fixb")
        t.label(lf)
        t("s_nop 7\ns_nop 7")
        t(f"v_mov_b32 {vT0}, {NEG_INF:#x}")
        for r in range(16): t(f"v_mov_b32 v{vCZ+r}, {vT0}")
        t("s_nop 1")
        t(f"s_branch {lb}")
        return [f"s_cmp_eq_u32 {sT}, {i-1}", f"s_cbranch_scc1 {lf}", f"{lb}:"]

    def softmax_fallback(self, n, tdiag, tlast, lentry, lback):
        t = self.tail
        t.label(lentry)
        if self.dbg: t("s_add_u32 s85, s85, 1")
        S = vSA[0]; K = vSL[1]; V = vSL[0]; M = "v25"; AD = "v26"
        def tile_setup(h):
            t(f"s_cmp_eq_u32 {sT4}, 0")
            t(f"s_cselect_b32 {sT2}, {tdiag}, 4")
            t(f"s_cmp_eq_u32 {sT4}, {n}")
            t(f"s_cselect_b32 {sT2}, {tlast}, {sT2}")
            t(f"s_cmp_gt_u32 {sT4}, {sT}")
            t(f"s_cselect_b32 {sT2}, 5, {sT2}")
            t(f"s_lshl_b32 {sT2}, {sT2}, 8")
            for x in self.mask_load(vMASK, sT2, vT0): t(x)
            t(f"s_mul_i32 {sT3}, {sT4}, {TP}")
            t(f"s_sub_u32 {sT3}, {8*TP}, {sT3}")
            t(f"v_add_u32 {AD}, {sT3}, {vKA}")
            t(f"v_add_u32 v28, {sT3}, {vVA[h]}")
        for h in range(2):
            la, lb = self.lab("fbA"), self.lab("fbB")
            t(f"v_mov_b32 {M}, {NEG_INF:#x}")
            t(f"s_mov_b32 {sT4}, 0")
            t.label(la)
            tile_setup(h)
            t(f"ds_read_b128 {R(K)}, {AD} offset:{L_KV + h*1024}")
            t("s_waitcnt lgkmcnt(0)")
            t(f"{MFMA} {R(S,16)}, {R(K)}, {R(vQ+4*h)}, {R(vMASK,16)}")
            t("s_nop 7\ns_nop 7")
            for r in range(0, 16, 2): t(f"v_max3_f32 {M}, {M}, v{S+r}, v{S+r+1}")
            t(f"s_add_u32 {sT4}, {sT4}, 1")
            t(f"s_cmp_le_u32 {sT4}, {n}")
            t(f"s_cbranch_scc1 {la}")
            t(f"v_mov_b32 v27, {M}")
            t("s_nop 1")
            t(f"v_permlane32_swap_b32 {M}, v27")
            t("s_nop 1")
            t(f"v_max_f32 {M}, {M}, v27")
            for r in range(16): t(f"v_mov_b32 v{vO[h]+r}, 0")
            t(f"s_mov_b32 {sT4}, 0")
            t.label(lb)
            tile_setup(h)
            t(f"ds_read_b128 {R(K)}, {AD} offset:{L_KV + h*1024}")
            t(f"ds_read_b128 {R(V+8+8*h)}, v28 offset:{L_KV + PO[2]}")
            t(f"ds_read_b128 {R(V+12+8*h)}, v28 offset:{L_KV + PO[3]}")
            t("s_waitcnt lgkmcnt(0)")
            t(f"{MFMA} {R(S,16)}, {R(K)}, {R(vQ+4*h)}, {R(vMASK,16)}")
            t("s_nop 7\ns_nop 7")
            for r in range(16): t(f"v_sub_f32 v{S+r}, v{S+r}, {M}")
            for r in range(16): t(f"v_exp_f32 v{S+r}, v{S+r}")
            t("s_nop 0")
            for j in range(8): t(f"v_cvt_pk_bf16_f32 v{S+j}, v{S+2*j}, v{S+2*j+1}")
            t("s_nop 1")
            t(f"{MFMA} {R(vO[h],16)}, {R(V+8+8*h)}, {R(S)}, {R(vO[h],16)}")
            t(f"{MFMA} {R(vO[h],16)}, {R(V+12+8*h)}, {R(S+4)}, {R(vO[h],16)}")
            t("s_nop 7\ns_nop 7")
            t(f"s_add_u32 {sT4}, {sT4}, 1")
            t(f"s_cmp_le_u32 {sT4}, {n}")
            t(f"s_cbranch_scc1 {lb}")
        t(f"s_branch {lback}")

    def attn_finish(self, n, tdiag, tlast):
        a = self.a
        self.stamp(6)
        lfb, lbk = self.lab("fb"), self.lab("fbk")
        a("s_nop 7\ns_nop 3")
        a(f"v_max_f32 v25, v{vO[0]+8}, v{vO[1]}")
        a(f"v_min_f32 v26, v{vO[0]+8}, v{vO[1]}")
        a(f"v_add_f32 v27, v{vO[0]+8}, v{vO[1]}")
        a(f"v_cmp_nle_f32 vcc, v25, {sBIG}")
        a(f"v_cmp_nge_f32 {sMSK}, v26, {sTINY}")
        a(f"s_or_b64 vcc, vcc, {sMSK}")
        a(f"v_cmp_u_f32 {sMSK}, v27, v27")
        a(f"s_or_b64 vcc, vcc, {sMSK}")
        a(f"s_cbranch_vccnz {lfb}")
        a.label(lbk)
        self.softmax_fallback(n, tdiag, tlast, lfb, lbk)
        a(f"v_rcp_f32 v20, v{vO[0]+8}")
        a(f"v_rcp_f32 v21, v{vO[1]}")
        a("s_nop 0")
        for r in range(8): a(f"v_mul_f32 v{vO[0]+r}, v20, v{vO[0]+r}")
        for r in range(8): a(f"v_mul_f32 v{vO[1]+8+r}, v21, v{vO[1]+8+r}")
        d = vSA[0]
        for j in range(4): a(f"v_cvt_pk_bf16_f32 v{d+j}, v{vO[0]+2*j}, v{vO[0]+2*j+1}")
        for j in range(4): a(f"v_cvt_pk_bf16_f32 v{d+4+j}, v{vO[1]+8+2*j}, v{vO[1]+8+2*j+1}")
        a(f"v_min_u32 v{d}, 0xfffffffe, v{d}")
        a(f"v_min_u32 v{d+4}, 0xfffffffe, v{d+4}")
        self.store_msg([(R(d), sOBl, 0), (R(d + 4), sOBl, 1024)], vL16)
        self.stamp(7)

    def wo_items(self, mat, dst, so, order=None):
        its = []
        for n in (order or range(32)):
            L = []
            if n % 4 == 0: L += [f"s_add_u32 {so}, s{40+n//8}, {mat*0x80000 + (n%8)*1024}"]
            L += [f"buffer_load_dwordx4 {AR(dst + n*4)}, {vL16}, {srd(SRD_WS)}, {so} offen offset:{(n%4)*1024}"]
            its.append(L)
        return its
    def wloc(self, ct, p):
        return ("v33", p * 1024) if ct == 2 else ("v32", ct * 32768 + p * 1024)
    def wloc_setup(self, a):
        a(f"s_lshl_b32 {sT0}, {sW}, 13")
        a(f"s_add_u32 {sT0}, {sT0}, {L_W}")
        a(f"v_add_u32 v32, {sT0}, {vL16}")
        a(f"v_add_u32 v33, 0x10000, v32")

    def attn_A(self, l0):
        a = self.a
        self.fix_invalid = True
        def first_mask():
            a(f"s_cmp_ge_u32 {sT}, 8")
            a(f"s_cselect_b32 {sT2}, 1, 5")
            a(f"s_lshl_b32 {sT2}, {sT2}, 8")
            for x in self.mask_load(vMASK, sT2, vT0): a(x)
        NS = 66
        bg = [[] for _ in range(NS)]
        def spread(items, s0, s1):
            for k, it in enumerate(items): bg[s0 + int(k * (s1 - s0) / len(items))] += it
        locs = [(ct, p) for ct in (1, 2, 0) for p in range(8)]
        if l0:
            sv = []
            for ct, p in locs:
                ad, of = self.wloc(ct, p)
                sv.append([f"ds_read_b128 {AR(128 + 4*(8 + TO.index(ct)*8 + p))}, {ad} offset:{of}"])
            spread(sv, 0, 8)
            dm = []
            for k, (ct, p) in enumerate(locs):
                L = []
                if k == 0: L += [f"s_lshl_b32 s64, {sW}, 13", f"s_add_u32 s65, s64, {sWQN}"]
                if p % 4 == 0: L += [f"s_add_u32 m0, s64, {L_W + ct*32768 + p*1024}", f"s_add_u32 s82, s65, {ct*32768 + p*1024}"]
                L += [f"buffer_load_dwordx4 {vL16}, {srd(SRD_WS)}, s82 offen offset:{(p%4)*1024} lds"]
                dm.append(L)
            XP = os.environ.get("XP", "")
            if "d" in XP: dm = [x[:-1] for x in dm]
            spread(dm, 14, int(os.environ.get("DME", "60")))
            if "w" not in XP: spread(self.wo_items(0, 0, "s83")[NA0:], 0, int(os.environ.get("WOE", "56")))
            cl = []
            cl.append([f"s_lshr_b32 s80, s2, 3", f"s_lshl_b32 s80, s80, 2", f"s_add_u32 s80, s80, {sW}", f"s_lshl_b32 s80, s80, 12",
                       f"s_add_u32 s80, s80, {WOF + 0x80000}", f"v_lshlrev_b32 v34, 7, {vC}",
                       f"buffer_load_dword {vWD}, v34, {srd(SRD_WS)}, s80 offen"])
            if "c" not in XP: spread(cl, int(os.environ.get("CLS", "40")), int(os.environ.get("CLS", "40")) + 12)
        else:
            rs = []
            for j, (ct, p) in enumerate(locs):
                ad, of = self.wloc(ct, p)
                rs.append([f"ds_write_b128 {ad}, {AR(128 + 4*(TO.index(ct)*8+p))} offset:{of}"])
            spread(rs, 0, 12)
            wo = self.wo_items(0, 128, "s83", list(range(24, 32)) + list(range(24)))
            spread(wo[:8], 2, 22)
            spread(wo[8:], 22, 60)
        def post():
            if l0 and "r" not in os.environ.get("XP", ""): self.resid_loads(a)
            self.wloc_setup(a)
        self.attention(8, lambda i: vMASK if i in (0, 8) else vCZ, {3: first_mask}, bg, post)

    def attn_B(self):
        self.fix_invalid = False
        def post():
            a, t = self.a, self.tail
            lp, lpb = self.lab("pb"), self.lab("pbb")
            a(f"s_cmp_eq_u32 {sL}, 1")
            a(f"s_cbranch_scc1 {lp}")
            a.label(lpb)
            t.label(lp)
            t(f"s_lshr_b32 s99, s99, 1")
            self.flag_set("s99", t, "v25", "v26")
            t(f"s_branch {lpb}")
        self.attention(1, lambda i: vMASK if i == 0 else vCZ, None, [], post)
        self.attn_finish(1, 2, 3)

    def w_swap(self, ct, layer=1):
        a, t = self.a, self.tail
        k = TO.index(ct)
        lsw, lswr = self.lab("sw"), self.lab("swr")
        a(f"s_cmp_eq_u32 {sL}, {layer}")
        a(f"s_cbranch_scc1 {lsw}")
        a.label(lswr)
        t.label(lsw)
        if k == 0: self.wloc_setup(t)
        for p in range(8):
            ad, of = self.wloc(ct, p)
            t(f"ds_read_b128 {AR(128 + 4*(k*8 + p))}, {ad} offset:{of}")
            t(f"ds_write_b128 {ad}, {AR(128 + 4*(8 + k*8 + p))} offset:{of}")
        t(f"s_branch {lswr}")

    def l1_wob(self, lo, hi, layer=1, mat=1):
        a, t = self.a, self.tail
        lb, lr = self.lab("wb"), self.lab("wbr")
        a(f"s_cmp_eq_u32 {sL}, {layer}")
        a(f"s_cbranch_scc1 {lb}")
        a.label(lr)
        t.label(lb)
        for it in self.wo_items(mat, 0, sT5)[lo:hi]:
            for x in it: t(x)
        t(f"s_branch {lr}")

    def o_loads(self, t):
        t(f"s_add_u32 {sT1}, {sOIN}, 4096")
        for i in range(8):
            t(f"buffer_load_dwordx4 {R(vXF+4*i)}, {vL16}, {srd(SRD_WS)}, {sOIN if i < 4 else sT1} offen offset:{(i%4)*1024} sc1")

    def outproj(self):
        a, t = self.a, self.tail
        ACC = 64
        self.stamp(8)
        def accinit(a):
            for i in range(8):
                a(f"v_lshlrev_b32 v{ACC+2*i}, 16, v{96+i}")
                a(f"v_and_b32 v{ACC+2*i+1}, 0xffff0000, v{96+i}")
        a(f"s_lshl_b32 {sT0}, {sW}, 11")
        a(f"v_add_u32 {vT0}, {sT0}, {vL16}")
        a(f"ds_read_b128 v[96:99], {vT0} offset:{L_XR}")
        a(f"ds_read_b128 v[100:103], {vT0} offset:{L_XR+1024}")
        a(f"s_mul_i32 {sT0}, {sW}, {2*TP}")
        a(f"v_add_u32 v104, {sT0}, {vL16}")
        for g in (1, 2, 3):
            a(f"s_add_u32 {sT0}, {sW}, {g}")
            a(f"s_and_b32 {sT0}, {sT0}, 3")
            a(f"s_mul_i32 {sT0}, {sT0}, {2*TP}")
            a(f"v_add_u32 v{104+g}, {sT0}, {vL16}")
        a("s_waitcnt lgkmcnt(0)")
        accinit(a)
        l0, l0r = self.lab("trp"), self.lab("trr")
        a(f"s_cmp_eq_u32 {sL}, 0")
        a(f"s_cbranch_scc1 {l0}")
        t.label(l0)
        t("s_waitcnt vmcnt(2)")
        t(f"v_lshlrev_b32 {vT0}, 6, {vC}")
        t(f"v_lshl_add_u32 {vT0}, {vH}, 3, {vT0}")
        t(f"s_lshl_b32 {sT0}, {sW}, 11")
        t(f"v_add_u32 {vT0}, {sT0}, {vT0}")
        for q in range(4): t(f"ds_read_b64 {R(96+2*q,2)}, {vT0} offset:{L_XR + q*16}")
        self.a = t
        self.set_tr_addr(True)
        self.colsum1(160, int(os.environ.get("CSH", "2")), lambda: self.o_loads(t))
        self.a = a
        accinit(t)
        t(f"s_branch {l0r}")
        self.o_loads(a)
        a.label(l0r)
        a(f"s_add_u32 {sXBin}, {sXBin}, 0x200000")
        a(f"s_cmp_eq_u32 {sL}, 1")
        a(f"s_cselect_b32 {sT2}, {sRHO}, 0")
        for k, so in enumerate(["s78", "s79", "s80", "s81", "s82", "s83", "s64", "s65"]):
            a(f"s_add_u32 {so}, {sT2}, {k}")
            a(f"s_and_b32 {so}, {so}, 7")
            a(f"s_lshl_b32 {so}, {so}, 12")
            a(f"s_add_u32 {so}, {so}, {sXBin}")
        a(f"v_and_b32 v108, 15, {vLANE}")
        a(f"v_lshlrev_b32 v108, 11, v108")
        a(f"v_add_u32 v108, 2032, v108")
        self.w_swap(1)
        self.w_swap(2)
        lc, lcr = self.lab("kc"), self.lab("kcr")
        a(f"s_cmp_eq_u32 {sL}, 0")
        a(f"s_cbranch_scc1 {lc}")
        a("s_waitcnt vmcnt(0)")
        a.label(lcr)
        t.label(lc)
        t("v_mov_b32 v20, -1\nv_mov_b32 v21, -1\nv_mov_b32 v22, -1\nv_mov_b32 v23, -1")
        t(f"s_add_u32 {sT0}, {sKVl}, {KV(2)-KV(0)}")
        for f in range(4): t(f"buffer_store_dwordx4 v[20:23], {vL16}, {srd(SRD_WS)}, {sT0} offen offset:{f*1024} sc1")
        t("s_waitcnt vmcnt(4)")
        t(f"s_cmp_lg_u32 {sW}, 3")
        t(f"s_cbranch_scc1 {lcr}")
        t(f"s_add_u32 {sT0}, {sT0}, 0x400000")
        for f in range(4): t(f"buffer_store_dwordx4 v[20:23], {vL16}, {srd(SRD_WS)}, {sT0} offen offset:{f*1024} sc1")
        t(f"s_branch {lcr}")
        self.check_or_poll([vXF + 4 * i for i in range(8)], lambda t: self.o_loads(t), vT0, 30)
        a("s_barrier")
        self.stamp(9)
        lB, lD, lZ = self.lab("opB"), self.lab("opD"), self.lab("opZ")
        a(f"s_bitcmp1_b32 {sL}, 0")
        a(f"s_cbranch_scc1 {lB}")
        a(f"s_cmp_eq_u32 {sL}, 0")
        a(f"s_cbranch_scc1 {lZ}")
        for var in (2, 0, 1):
            mat = 1 if var == 2 else 0
            if var == 1: a.label(lB)
            if var == 0: a.label(lZ)
            side = self.wo_items(1, 0, sT5)[:NOB] if var == 0 else []
            ns = len(side); k = [0]
            def mf(i):
                a(f"{MFMA} {R(ACC,16)}, {AR(mat*128+4*i)}, {R(vXF+4*i)}, {R(ACC,16)}")
            def sd(n):
                while k[0] < ns and k[0] < (n + 1) * ns / 32.0 and k[0] <= n:
                    for x in side[k[0]]: a(x)
                    k[0] += 1
            F2 = []
            if var == 0:
                rd2_, F2, W2_ = self.colsum2(1, 32)
                for x in rd2_: a(x)
            for i in range(4):
                mf(i)
                for c in (2 * i, 2 * i + 1):
                    a(f"ds_write_b128 v104, {R(vXF+4*c)} offset:{L_OT + CH(c)}")
            sd(3)
            a("s_waitcnt lgkmcnt(0)")
            a("s_barrier")
            rd = lambda i: a(f"ds_read_b128 {R(vXF+4*i)}, v{104 + i//8} offset:{L_OT + CH(i%8)}")
            for i in range(8, 12): rd(i)
            nr = 12
            for i in range(4, 32):
                if i >= 8: a(f"s_waitcnt lgkmcnt({min(15, nr - 1 - i)})")
                mf(i)
                for _ in range(2):
                    if nr < 32 and nr - i < 12: rd(nr); nr += 1
                sd(i)
                for x in F2[:2]: a(x)
                F2 = F2[2:]
            assert k[0] == ns and not F2
            if var == 0: a(W2_)
            if var != 1: a(f"s_branch {lD}")
        a.label(lD)
        self.stamp(10)
        a("s_nop 7\ns_nop 3")
        for j in range(8): a(f"v_cvt_pk_bf16_f32 v{96+j}, v{ACC+2*j}, v{ACC+2*j+1}")
        llast = self.lab("last")
        a(f"s_cmp_eq_u32 {sL}, 3")
        a(f"s_cbranch_scc1 {llast}")
        a(f"v_min_u32 v96, 0xfffffffe, v96")
        a(f"v_min_u32 v100, 0xfffffffe, v100")
        self.store_msg([("v[96:99]", sXBout, 0), ("v[100:103]", sXBout, 1024)], vL16)
        if WB[0] > NOB: self.l1_wob(NOB, WB[0], layer=0)
        for i in range(8):
            a(f"v_lshlrev_b32 v{ACC+2*i}, 16, v{96+i}")
            a(f"v_and_b32 v{ACC+2*i+1}, 0xffff0000, v{96+i}")
        def hook():
            a(f"buffer_load_dword v109, v108, {srd(SRD_WS)}, {sXBin} offen sc1")
            for k in range(UP): a(self.x_load1(k))
        self.xstats_store(ACC, sSTout, hook)
        a(f"s_lshl_b32 {sT0}, {sW}, 11")
        a(f"v_add_u32 {vT0}, {sT0}, {vL16}")
        a(f"ds_write_b128 {vT0}, v[96:99] offset:{L_XR}")
        a(f"ds_write_b128 {vT0}, v[100:103] offset:{L_XR+1024}")
        return llast

    def build(self):
        a = self.a
        self.prologue()
        a.label("L_layer")
        self.gemm()
        lb, ld = self.lab("aB"), self.lab("aD")
        a(f"s_bitcmp1_b32 {sL}, 0")
        a(f"s_cbranch_scc1 {lb}")
        l2, lf = self.lab("a2"), self.lab("af")
        a(f"s_cmp_lg_u32 {sL}, 0")
        a(f"s_cbranch_scc1 {l2}")
        self.attn_A(True)
        a(f"s_branch {lf}")
        a.label(l2)
        self.attn_A(False)
        a.label(lf)
        self.attn_finish(8, 0, 1)
        a(f"s_branch {ld}")
        a.label(lb)
        self.attn_B()
        a.label(ld)
        llast = self.outproj()
        a(f"s_add_u32 {sL}, {sL}, 1")
        a(f"s_add_u32 {sXBout}, {sXBout}, 0x200000")
        a(f"s_add_u32 {sOBl}, {sOBl}, 0x200000")
        a(f"s_add_u32 {sOIN}, {sOIN}, 0x200000")
        a(f"s_add_u32 {sKVl}, {sKVl}, 0x400000")
        a(f"s_add_u32 {sSTin}, {sSTin}, 0x40000")
        a(f"s_add_u32 {sSTout}, {sSTout}, 0x40000")
        a(f"s_xor_b32 {sCSF}, {sCSF}, {L_CSF ^ (L_CSF + 768)}")
        a("s_branch L_layer")
        a.label(llast)
        a(f"v_lshlrev_b32 {vT0}, 10, {vC}")
        a(f"v_lshl_add_u32 {vT0}, {vH}, 3, {vT0}")
        a(f"s_lshl_b32 {sT0}, {sRT}, 15")
        a(f"s_lshl_b32 {sT1}, {sCT}, 6")
        a(f"s_add_u32 {sT0}, {sT0}, {sT1}")
        for q in range(4):
            a(f"buffer_store_dwordx2 {R(96+2*q,2)}, {vT0}, {srd(SRD_OUT)}, {sT0} offen offset:{q*16}")
        if self.dbg:
            self.stamp(11)
            a("s_memtime s[96:97]\ns_waitcnt lgkmcnt(0)\nv_writelane_b32 v0, s96, 61")
            a("v_writelane_b32 v0, s84, 56\nv_writelane_b32 v0, s85, 57\nv_writelane_b32 v0, s86, 58\nv_writelane_b32 v0, s87, 59")
            a(f"s_lshl_b32 {sT0}, s2, 10")
            a(f"s_lshl_b32 {sT1}, {sW}, 8")
            a(f"s_add_u32 {sT0}, {sT0}, {sT1}")
            a(f"s_add_u32 {sT0}, {sT0}, {WS_DBG + 0x10000}")
            a(f"v_lshlrev_b32 v22, 2, {vLANE}")
            a(f"buffer_store_dword v0, v22, {srd(SRD_WS)}, {sT0} offen")
            a(f"v_mov_b32 v20, {sERR}")
            a(f"v_mov_b32 v21, {sFAST}")
            a(f"s_lshl_b32 {sT0}, s2, 5")
            a(f"s_lshl_b32 {sT1}, {sW}, 3")
            a(f"s_add_u32 {sT0}, {sT0}, {sT1}")
            a(f"s_add_u32 {sT0}, {sT0}, {WS_DBG}")
            a("v_mov_b32 v22, 0")
            a("s_mov_b64 exec, 1")
            a(f"buffer_store_dwordx2 v[20:21], v22, {srd(SRD_WS)}, {sT0} offen")
        a.label("L_end")
        a("s_endpgm")
        return a.text() + self.tail.text() + "L_codeend:\n"


def full(dbg=False):
    HEADER = open("interleave_layers__sliding_block__sliding_local_dilated__prompt.s.ref").read().split("; Override launch")[0]
    g = Gen(dbg)
    body = g.build()
    return (HEADER + f"; @launch grid=(256,1,1) block=(256,1,1) lds={LDS_BYTES}\n" +
            '.amdgcn_target "amdgcn-amd-amdhsa--gfx950"\n' + f""".text
.globl {NAME}
.p2align 8
.type {NAME},@function
{NAME}:
{body}
.section .rodata,"a"
.p2align 6
.amdhsa_kernel {NAME}
  .amdhsa_next_free_vgpr 512
  .amdhsa_next_free_sgpr 102
  .amdhsa_accum_offset 256
  .amdhsa_group_segment_fixed_size 0
  .amdhsa_kernarg_size 72
  .amdhsa_user_sgpr_count 2
  .amdhsa_user_sgpr_kernarg_segment_ptr 1
  .amdhsa_system_sgpr_workgroup_id_x 1
.end_amdhsa_kernel
""")

if __name__ == "__main__":
    dbg = "--dbg" in sys.argv
    out = [x for x in sys.argv[1:] if not x.startswith("--")]
    txt = full(dbg)
    open(out[0], "w").write(txt)
    from asmlib import build
    build(txt, out[0].replace(".s", ".co"), NAME)
    print("ok", len(txt.splitlines()), "lines")
```

```python
import sys, os
sys.path.insert(0, "work")
from asmlib import Asm

NAME = "interleave_layers__sliding_block__sliding_local_dilated__prompt_kernel"

XB = lambda l: (l - 1) * 0x200000
OB = lambda l: 0x600000 + l * 0x200000
KV = lambda l: 0xE00000 + l * 0x400000
ST = lambda l: 0x1E00000 + l * 0x40000
WOF = 0x1F00000
WQF = 0x2000000
WS_USED = 0x2300000
WS_DBG = 0x2400000
WS_SIZE = 0x2800000
TP = 4128
PO = [0, 1024, 2048, 3088]
L_KV = 0
L_OT = 0
L_FW = 49536
L_XR = 49664
L_CSF = 57856
L_RS = 59392
L_MT = 59904
L_SCR = 61440
def CH(i): return (i // 4) * TP + PO[i % 4]
L_W = 65536
LDS_BYTES = 160 * 1024
sW, sR, sM, sL, sFAST = "s3", "s4", "s5", "s6", "s7"
SRD_X, SRD_WQA, SRD_WQB, SRD_WOA, SRD_WOB, SRD_OUT, SRD_DBG, SRD_WS, SRD_WN = 8, 12, 16, 20, 24, 28, 32, 36, 40
def srd(i): return f"s[{i}:{i+3}]"
sCHK = "s[44:45]"
sT0, sT1, sT2, sT3, sT4, sT5 = "s46", "s47", "s48", "s49", "s50", "s51"
sTRY = "s52"
sXCC = "s53"
sT = "s54"
sRT = "s55"
sCT = "s56"
sXBin, sOBl, sKVl, sSTin, sXBout, sSTout = "s57", "s58", "s59", "s60", "s61", "s62"
sOIN = "s63"
sLO32 = "s[66:67]"
sMSK = "s[68:69]"
sCSF = "s70"
sERR = "s71"
sPT = 72
sH0 = "s[72:73]"
sH1 = "s[74:75]"
sNB0, sNB1 = "s76", "s77"
sL0EX = "s[84:85]"
sWNEX = "s[86:87]"
sWQN = "s90"
sWOB = "s91"
sBIG, sTINY = "s100", "s101"
sU0, sU1, sU2, sU3 = "s92", "s93", "s94", "s95"
vTID, vLANE, vC, vH, vL16 = "v0", "v1", "v2", "v3", "v4"
vTR = 5
vWD = "v11"
vRSTD, vRSTDC = "v12", "v13"
vT0, vT1 = "v14", "v15"
vCSA = "v15"
vQ = 16
vMASK = 232
vCZ = 48
vSA = (64, 80)
vO = (96, 112)
vSB = (128, 144)
vSL = (160, 184, 208)
vXF = 128
vSTG = 64
vKA = "v248"
vVA = ("v249", "v250")
ACC_K, ACC_V, ACC_Q = 64, 80, 96
WF = [24, 32, 40, 48]
W2 = [32, 36, 40, 44, 24, 28]
vRS = 112
vSTAT = 112
vOWNK = 64
vOWNV = 80
SPIN_LIMIT = 40000
NEG_INF = 0xFF800000
QSCALE = 0.25 * 1.4426950408889634
CODE_KB = 40
PP = int(os.environ.get('PP', '1'))
STEP = 's_xor_b32' if PP else 's_add_u32'
sRHO = 's88'
OSL = int(os.environ.get('OSL', '0'))
TO = (1, 2, 0)
UP = int(os.environ.get('UP', '8'))
NA0 = int(os.environ.get('NA0', '8'))
WB = [int(x) for x in os.environ.get('WB', '24,24').split(',')]
NWB = int(os.environ.get('NWB', '8'))
NOB = int(os.environ.get('NOB', '16'))
DIRECTNB = int(os.environ.get('DIRECTNB', '1'))

def R(b, n=4): return f"v[{b}:{b+n-1}]"
def AR(b, n=4): return f"a[{b}:{b+n-1}]"
def f32hex(x):
    import struct
    return "0x%08x" % struct.unpack("<I", struct.pack("<f", x))[0]
MFMA = "v_mfma_f32_32x32x16_bf16"

def interleave(valu, extras):
    out = []
    ex = sorted(extras, key=lambda e: e[0])
    k = 0
    for i, v in enumerate(valu + [None]):
        while k < len(ex) and ex[k][0] <= i:
            out += ex[k][1]; k += 1
        if v is not None: out.append(v)
    while k < len(ex):
        out += ex[k][1]; k += 1
    return out

class Gen:
    def __init__(self, dbg=False):
        self.a = Asm()
        self.tail = Asm()
        self.dbg = dbg
        self.nl = 0
    def lab(self, p):
        self.nl += 1
        return f"L_{p}_{self.nl}"

    def stamp(self, p, inloop=True, alt=False):
        if not self.dbg: return
        if inloop and p in (7, 8) and bool(os.environ.get("P1ST")) != alt: return
        if not inloop and p > 0 and bool(os.environ.get("PST")) != alt: return
        a = self.a
        a("s_memtime s[96:97]" if os.environ.get("CYC") else "s_memrealtime s[96:97]")
        if inloop:
            a(f"s_mul_i32 s98, {sL}, 12")
            a(f"s_add_u32 m0, s98, {p + 8}")
        else:
            a(f"s_mov_b32 m0, {p}")
        a("s_waitcnt lgkmcnt(0)")
        a("v_writelane_b32 v0, s96, m0")

    def maxtree(self, a, regs, dst):
        regs = list(regs)
        a(f"v_max3_u32 {dst}, v{regs[0]}, v{regs[1]}, v{regs[2]}")
        i = 3
        while i < len(regs):
            if i + 1 < len(regs):
                a(f"v_max3_u32 {dst}, {dst}, v{regs[i]}, v{regs[i+1]}"); i += 2
            else:
                a(f"v_max_u32 {dst}, {dst}, v{regs[i]}"); i += 1
    def check_or_poll(self, chk_regs, reload_fn, tmp, errcode):
        a, t = self.a, self.tail
        slow, back, loop = self.lab("slow"), self.lab("back"), self.lab("sloop")
        self.maxtree(a, chk_regs, tmp)
        a(f"v_cmp_eq_u32 vcc, -1, {tmp}")
        a(f"s_and_b64 vcc, vcc, {sCHK}")
        a(f"s_cbranch_vccnz {slow}")
        a.label(back)
        t.label(slow)
        t(f"s_mov_b32 {sTRY}, 0")
        t.label(loop)
        if self.dbg:
            c = "s84" if errcode <= 4 else "s85" if errcode == 5 else "s86" if errcode == 10 else "s87"
            t(f"s_add_u32 {c}, {c}, 1")
        reload_fn(t)
        t("s_waitcnt vmcnt(0)")
        self.maxtree(t, chk_regs, tmp)
        t(f"v_cmp_eq_u32 vcc, -1, {tmp}")
        t(f"s_cbranch_vccz {back}")
        t(f"s_add_u32 {sTRY}, {sTRY}, 1")
        t(f"s_cmp_lt_u32 {sTRY}, {SPIN_LIMIT}")
        t(f"s_cbranch_scc1 {loop}")
        t(f"s_mov_b64 {sCHK}, 0")
        t(f"s_mov_b32 {sERR}, {errcode}")
        t(f"s_branch {back}")

    def probe(self, voff, sbase, va, vb, errcode):
        a = self.a
        loop, done, tmo = self.lab("pl"), self.lab("pd"), self.lab("pt")
        ld = lambda v: a(f"buffer_load_dword {v}, {voff}, {srd(SRD_WS)}, {sbase} offen sc1")
        a(f"s_mov_b32 {sTRY}, 0")
        ld(va);
        a("s_sleep 1")
        ld(vb)
        a.label(loop)
        for v in (va, vb):
            a("s_waitcnt vmcnt(1)")
            a(f"v_cmp_eq_u32 vcc, -1, {v}")
            a(f"s_and_b64 vcc, vcc, {sCHK}")
            a(f"s_cbranch_vccz {done}")
            ld(v)
        a(f"s_add_u32 {sTRY}, {sTRY}, 1")
        a(f"s_cmp_lt_u32 {sTRY}, {SPIN_LIMIT}")
        a(f"s_cbranch_scc1 {loop}")
        a(f"s_mov_b64 {sCHK}, 0")
        a(f"s_mov_b32 {sERR}, {errcode}")
        a.label(done)

    def store_msg(self, data, voff, width="dwordx4"):
        a, t = self.a, self.tail
        l1, l2 = self.lab("stsl"), self.lab("stdn")
        a(f"s_cmp_eq_u32 {sFAST}, 0")
        a(f"s_cbranch_scc1 {l1}")
        for d, s, im in data:
            o = f" offset:{im}" if im else ""
            a(f"buffer_store_{width} {d}, {voff}, {srd(SRD_WS)}, {s} offen{o}")
        a.label(l2)
        t.label(l1)
        for d, s, im in data:
            o = f" offset:{im}" if im else ""
            t(f"buffer_store_{width} {d}, {voff}, {srd(SRD_WS)}, {s} offen{o} sc1")
        t(f"s_branch {l2}")

    def w_dma(self, cts):
        a = self.a
        a(f"s_mul_i32 {sT0}, {sW}, {16*3072}")
        a(f"s_lshl_b32 {sT1}, {sM}, 6")
        a(f"s_add_u32 {sT0}, {sT0}, {sT1}")
        a(f"s_lshl_b32 {sT1}, {sW}, 10")
        for i in range(8):
            for ct in cts:
                a(f"s_add_u32 m0, {sT1}, {L_W + ct*32768 + i*4096}")
                a(f"s_add_u32 {sT2}, {sT0}, {i*64*3072 + ct*1024}")
                a(f"buffer_load_dwordx4 {vWD}, {srd(SRD_WN)}, {sT2} offen lds")

    def colsum1(self, tb, hook_at, hook):
        a = self.a
        a(f"s_lshl_b32 {sT2}, {sW}, 13")
        a(f"v_mov_b32 v20, 0x3f803f80")
        jobs = [(ct, hf) for ct in range(3) for hf in range(2)]
        def rd(n):
            ct, hf = jobs[n]; b = tb + 16 * (n % 2)
            a(f"v_add_u32 {vT0}, {sT2}, v{vTR+2*ct}")
            a(f"v_add_u32 {vT1}, {sT2}, v{vTR+2*ct+1}")
            for s in range(4):
                a(f"ds_read_b64_tr_b16 {R(b+4*s,2)}, {vT0} offset:{(hf*4+s)*1024}")
                a(f"ds_read_b64_tr_b16 {R(b+4*s+2,2)}, {vT1} offset:{(hf*4+s)*1024}")
        for ct in range(3): a(f"v_mov_b32 v{21+ct}, 0")
        rd(0)
        for n in range(6):
            if n + 1 < 6: rd(n + 1)
            if n == hook_at: hook()
            a(f"s_waitcnt lgkmcnt({8 if n + 1 < 6 else 0})")
            ct = jobs[n][0]; b = tb + 16 * (n % 2)
            for j in range(16):
                a(f"v_dot2_f32_bf16 v{21+ct}, v{b+j}, v20, v{21+ct}")
        a(f"v_lshlrev_b32 {vT0}, 2, {vLANE}")
        a(f"s_lshl_b32 {sT0}, {sW}, 8")
        a(f"v_add_u32 {vT0}, {sT0}, {vT0}")
        a("s_nop 2")
        for ct in range(3):
            a(f"ds_write_b32 {vT0}, v{21+ct} offset:{L_SCR + ct*1024}")
        a("s_waitcnt lgkmcnt(0)")

    def colsum2(self, mat, t):
        ad = f"v{t+10}"
        rd = [f"s_min_u32 {sT0}, {sW}, 2", f"s_lshl_b32 {sT1}, {sT0}, 10", f"v_lshlrev_b32 {ad}, 2, {vC}", f"v_add_u32 {ad}, {sT1}, {ad}"]
        rd += [f"ds_read_b32 v{t+p}, {ad} offset:{L_SCR + p*128}" for p in range(8)]
        F = [f"v_add_f32 v{t}, v{t}, v{t+k}" for k in range(1, 8)]
        F += [x.strip() for x in f"""
        v_cvt_pk_bf16_f32 v{t+1}, v{t}, v{t}
        v_and_b32 v{t+2}, 0xffff0000, v{t+1}
        v_sub_f32 v{t+3}, v{t}, v{t+2}
        v_cvt_pk_bf16_f32 v{t+4}, v{t+3}, v{t+3}
        v_and_b32 v{t+5}, 0xffff0000, v{t+4}
        v_sub_f32 v{t+6}, v{t+3}, v{t+5}
        v_cvt_pk_bf16_f32 v{t+7}, v{t+6}, v{t+6}
        v_lshrrev_b32 v{t+8}, 16, v{t+2}
        v_or_b32 v{t+8}, v{t+8}, v{t+5}
        v_and_b32 v{t+9}, 0xffff, v{t+7}
        s_lshl_b32 {sT0}, {sT0}, 8
        v_lshlrev_b32 {ad}, 3, {vC}
        v_add_u32 {ad}, {sT0}, {ad}
        """.strip().split("\n")]
        W = f"ds_write_b64 {ad}, v[{t+8}:{t+9}] offset:{L_CSF + mat*768}"
        return rd, F, W

    def set_tr_addr(self, permuted):
        a = self.a
        a(f"v_bfe_u32 {vT0}, {vLANE}, 2, 2")
        a(f"v_lshlrev_b32 {vT0}, 6, {vT0}")
        a(f"v_bfe_u32 {vT1}, {vLANE}, 4, 1")
        a(f"v_lshl_add_u32 {vT0}, {vT1}, 5, {vT0}")
        a(f"v_and_b32 {vT1}, 3, {vLANE}")
        a(f"v_lshl_add_u32 {vT0}, {vT1}, 3, {vT0}")
        a(f"v_lshl_add_u32 {vT0}, {vH}, {8 if permuted else 9}, {vT0}")
        for ct in range(3):
            a(f"v_add_u32 v{vTR+2*ct}, {L_W + ct*32768}, {vT0}")
            a(f"v_add_u32 v{vTR+2*ct+1}, {L_W + ct*32768 + (512 if permuted else 256)}, {vT0}")

    def xstats_store(self, src16, soff_s, hook):
        a = self.a
        a(f"v_add_f32 v20, v{src16}, v{src16+1}")
        a(f"v_mul_f32 v21, v{src16}, v{src16}")
        a(f"v_fmac_f32 v21, v{src16+1}, v{src16+1}")
        for i in range(2, 16):
            a(f"v_add_f32 v20, v20, v{src16+i}")
            a(f"v_fmac_f32 v21, v{src16+i}, v{src16+i}")
        a(f"v_lshlrev_b32 {vT0}, 3, {vLANE}")
        a(f"s_lshl_b32 {sT0}, {sW}, 9")
        a(f"v_add_u32 {vT1}, {sT0}, {vT0}")
        a(f"ds_write_b64 {vT1}, v[20:21] offset:{L_SCR}")
        a("s_waitcnt lgkmcnt(0)")
        a("s_barrier")
        hook()
        lsk = self.lab("xs")
        a(f"s_cmp_lg_u32 {sW}, 1")
        a(f"s_cbranch_scc1 {lsk}")
        for k, w in enumerate((0, 2, 3)):
            a(f"ds_read_b64 v[{22+2*k}:{23+2*k}], {vT0} offset:{L_SCR + w*512}")
        a(f"v_lshlrev_b32 {vT0}, 4, {vC}")
        for k in range(3):
            a(f"s_waitcnt lgkmcnt({2-k})")
            a(f"v_add_f32 v20, v20, v{22+2*k}")
            a(f"v_add_f32 v21, v21, v{23+2*k}")
        a("v_mov_b32 v22, v20")
        a("v_mov_b32 v23, v21")
        a("s_nop 1")
        a("v_permlane32_swap_b32 v20, v22")
        a("v_permlane32_swap_b32 v21, v23")
        a("s_nop 1")
        a("v_add_f32 v20, v20, v22")
        a("v_add_f32 v21, v21, v23")
        a("v_min_u32 v20, 0xfffffffe, v20")
        a(f"s_mov_b64 exec, {sLO32}")
        self.store_msg([("v[20:21]", soff_s, 0)], vT0, width="dwordx2")
        a("s_mov_b64 exec, -1")
        a.label(lsk)

    def mask_tables(self, a):
        a(f"v_mov_b32 v117, {NEG_INF:#x}")
        a(f"v_lshlrev_b32 {vT0}, 2, {vLANE}")
        a(f"v_cmp_ge_u32 vcc, 32, {vLANE}")
        a(f"v_sub_u32 {vT1}, 32, {vLANE}")
        a(f"v_cndmask_b32_e64 v112, v117, 0, vcc")
        a(f"v_cndmask_b32_e64 v113, 0, v117, vcc")
        a(f"v_and_b32 v114, 0xfffffff1, {vT1}")
        a(f"v_cmp_eq_u32 vcc, 0, v114")
        a(f"v_add_u32 {vT1}, 32, {vT1}")
        a(f"v_and_b32 v115, 0xfffffff1, {vT1}")
        a(f"v_cndmask_b32_e64 v114, v117, 0, vcc")
        a(f"v_cmp_eq_u32 vcc, 0, v115")
        a(f"v_mov_b32 v116, 0")
        a("s_nop 0")
        a(f"v_cndmask_b32_e64 v115, v117, 0, vcc")
        for k in range(6):
            a(f"ds_write_b32 {vT0}, v{112+k} offset:{L_MT + k*256}")

    def mask_load(self, dst, tbl, tmp):
        L = [f"v_lshlrev_b32 {tmp}, 2, {vH}", f"v_sub_u32 {tmp}, {tmp}, {vC}", f"v_lshlrev_b32 {tmp}, 2, {tmp}"]
        if isinstance(tbl, int): L += [f"v_add_u32 {tmp}, {L_MT + 128 + tbl*256}, {tmp}"]
        else: L += [f"v_add_u32 {tmp}, {L_MT + 128}, {tmp}", f"v_add_u32 {tmp}, {tbl}, {tmp}"]
        for k in range(8):
            b0 = 8 * (k // 2) + 2 * (k % 2)
            L += [f"ds_read2_b32 {R(dst+2*k,2)}, {tmp} offset0:{b0} offset1:{b0+1}"]
        return L

    def flag_set(self, sval, a=None, va=vT0, vb="v20"):
        a = a or self.a
        lsk = self.lab("hs")
        a(f"s_cmp_lg_u32 {sW}, 0")
        a(f"s_cbranch_scc1 {lsk}")
        a(f"v_mov_b32 {va}, {sval}")
        a(f"v_mov_b32 {vb}, 0")
        a("s_mov_b64 exec, 1")
        a(f"buffer_atomic_or {va}, {vb}, {srd(SRD_DBG)}, {sU3} offen sc1")
        a("s_mov_b64 exec, -1")
        a.label(lsk)

    def prologue(self):
        a = self.a
        a(f"""
        s_cmp_ge_u32 s2, 256
        s_cbranch_scc1 L_end
        s_load_dwordx16 s[{sPT}:{sPT+15}], s[0:1], 0
        s_load_dwordx2 s[88:89], s[0:1], 64
        s_getpc_b64 s[40:41]
        L_pc:
        v_and_b32 {vLANE}, 63, v0
        v_lshrrev_b32 {vT0}, 6, v0
        v_and_b32 {vC}, 31, v0
        v_readfirstlane_b32 {sW}, {vT0}
        s_and_b32 s41, s41, 0xffff
        s_mov_b32 s42, L_codeend-L_pc
        s_mov_b32 s43, 0x20000
        v_lshlrev_b32 {vT1}, 7, {vLANE}
        s_lshr_b32 {sT1}, s2, 3
        s_lshl_b32 {sT0}, {sT1}, 2
        s_add_u32 {sT0}, {sT0}, {sW}
        s_lshl_b32 {sT0}, {sT0}, 9
        s_mov_b64 exec, 15
        buffer_load_dword v24, {vT1}, s[40:43], {sT0} offen
        s_mov_b64 exec, -1
        v_bfe_u32 {vH}, v0, 5, 1
        v_lshlrev_b32 {vL16}, 4, {vLANE}
        s_and_b32 {sT0}, s2, 7
        s_lshl_b32 {sR}, {sT0}, 1
        s_lshr_b32 {sT2}, {sT1}, 4
        s_add_u32 {sR}, {sR}, {sT2}
        s_and_b32 {sM}, {sT1}, 15
        s_getreg_b32 {sXCC}, hwreg(HW_REG_XCC_ID)
        s_and_b32 {sXCC}, {sXCC}, 15
        s_mov_b32 {sL}, 0
        s_mov_b32 {sFAST}, 0
        s_mov_b32 {sERR}, 0
        s_mov_b64 {sCHK}, 0
        s_mov_b32 s66, -1
        s_mov_b32 s67, 0
        s_lshl_b32 {sT}, {sR}, 2
        s_lshr_b32 {sT0}, {sM}, 2
        s_add_u32 {sRT}, {sT}, {sT0}
        s_add_u32 {sT}, {sT}, {sW}
        s_and_b32 {sCT}, {sM}, 3
        s_lshl_b32 {sCT}, {sCT}, 2
        s_add_u32 {sCT}, {sCT}, {sW}
        v_lshrrev_b32 {vT0}, 2, {vLANE}
        v_mul_u32_u24 {vWD}, 3072, {vT0}
        v_and_b32 {vT0}, 3, {vLANE}
        v_lshl_add_u32 {vWD}, {vT0}, 4, {vWD}
        s_and_b32 {sT0}, {sM}, 1
        s_lshl_b32 {sT0}, {sT0}, 2
        s_and_b32 {sT1}, {sR}, 1
        s_lshl_b32 {sT1}, {sT1}, 1
        s_add_u32 {sT0}, {sT0}, {sT1}
        s_lshr_b32 {sT1}, {sM}, 1
        s_add_u32 s64, {sT0}, {sT1}
        s_mul_i32 s65, {sW}, {16*3072}
        s_lshl_b32 {sT1}, {sM}, 6
        s_add_u32 s65, s65, {sT1}
        s_lshl_b32 s98, {sW}, 10
        v_lshrrev_b32 {vT0}, 3, {vLANE}
        v_lshlrev_b32 v16, 10, {vT0}
        v_and_b32 {vT0}, 7, {vLANE}
        v_lshrrev_b32 {vT1}, 4, {vLANE}
        v_xor_b32 {vT0}, {vT0}, {vT1}
        v_lshl_add_u32 v16, {vT0}, 4, v16
        v_xor_b32 v17, 64, v16
        s_lshl_b32 {sU0}, {sT}, 15
        s_lshl_b32 {sU2}, {sW}, 14
        s_waitcnt lgkmcnt(0)
        """)
        self.stamp(0, False)
        if self.dbg:
            a("s_memtime s[96:97]\ns_waitcnt lgkmcnt(0)\nv_writelane_b32 v0, s96, 60")
        def mk(d, p, size):
            a(f"s_mov_b32 s{d}, s{p}")
            a(f"s_and_b32 s{d+1}, s{p+1}, 0xffff")
            a(f"s_mov_b32 s{d+2}, {size}")
            a(f"s_mov_b32 s{d+3}, 0x20000")
        vq = ["code"]
        def wait(tag):
            n = len(vq) - 1 - max(i for i, t in enumerate(vq) if t == tag)
            a(f"s_waitcnt vmcnt({n})")
        def wd_items(p, cts=(1, 2), tag="w"):
            its = []
            for n, ct in enumerate(cts):
                def f(n=n, ct=ct):
                    if n == 0:
                        a(f"s_add_u32 {sT4}, s64, {p}")
                        a(f"s_and_b32 {sT4}, {sT4}, 7")
                        a(f"s_mul_i32 {sT4}, {sT4}, {64*3072}")
                        a(f"s_add_u32 {sT4}, {sT4}, s65")
                    a(f"s_add_u32 m0, s98, {L_W + ct*32768 + p*4096}")
                    a(f"s_add_u32 {sT2}, {sT4}, {ct*1024}")
                    a(f"buffer_load_dwordx4 {vWD}, {srd(SRD_WQA)}, {sT2} offen lds")
                    vq.append(f"{tag}{p}")
                its.append(f)
            return its
        def xd_items(p):
            its = []
            for d in range(4):
                def f(d=d):
                    if d == 0:
                        a(f"s_add_u32 {sT4}, s64, {p}")
                        a(f"s_and_b32 {sT4}, {sT4}, 7")
                        a(f"s_lshl_b32 {sT4}, {sT4}, 7")
                        a(f"s_add_u32 {sT4}, {sT4}, {sU0}")
                    a(f"s_add_u32 m0, {sU2}, {(p%4)*4096 + d*1024}")
                    a(f"s_add_u32 {sT2}, {sT4}, {d*8192}")
                    a(f"buffer_load_dwordx4 v{16 + d%2}, {srd(SRD_X)}, {sT2} offen lds")
                    vq.append(f"x{p}")
                its.append(f)
            return its
        def wd(p):
            for f in wd_items(p): f()
        def xd(p):
            for f in xd_items(p): f()
        LA = int(os.environ.get("LA", "2"))
        mk(SRD_WQA, sPT + 2, 512 * 3072)
        mk(SRD_X, sPT + 0, 2048 * 1024)
        def tch():
            a(f"s_lshr_b32 {sT0}, s2, 3")
            a(f"s_lshl_b32 {sT0}, {sT0}, 2")
            a(f"s_add_u32 {sT0}, {sT0}, {sW}")
            a(f"s_mul_i32 {sT0}, {sT0}, {12*1024}")
            a(f"v_lshlrev_b32 {vT0}, 10, {vLANE}")
            a("s_mov_b64 exec, 0xfff")
            a(f"buffer_load_dword v107, {vT0}, {srd(SRD_WQA)}, {sT0} offen offset:384")
            a("s_mov_b64 exec, -1")
            vq.append("tch")
        def prod():
            self.wqf_loads(); vq.extend(["wqf"] * 2)
            self.wof_loads2(); vq.append("wof")
            a(f"v_mov_b32 {vT0}, {sOBl}")
            a(f"s_add_u32 {sT0}, {sKVl}, 0x400000")
            a(f"v_writelane_b32 {vT0}, {sKVl}, 1")
            a(f"v_writelane_b32 {vT0}, {sT0}, 2")
            a(f"v_writelane_b32 {vT0}, s100, 3")
            a(f"v_writelane_b32 {vT0}, s101, 4")
            a("s_mov_b64 exec, 31")
            a(f"buffer_load_dword v107, {vT0}, {srd(SRD_WS)}, 0 offen sc1")
            a("s_mov_b64 exec, -1")
            vq.append("pt")
        lq = []
        def ld(tag, ins): a(ins); lq.append(tag)
        def lwait(tag):
            n = len(lq) - 1 - max(i for i, t in enumerate(lq) if t == tag)
            a(f"s_waitcnt lgkmcnt({min(n,15)})")
        def st_items():
            def f0():
                wait("wof")
                a(f"buffer_store_dwordx4 {AR(244)}, v104, {srd(SRD_WS)}, s101 offen sc1"); vq.append("wqs")
                ld("wof", f"ds_read_b64_tr_b16 v[108:109], v103")
                ld("wof", f"ds_read_b64_tr_b16 v[110:111], v103 offset:512")
            def f1():
                a(f"s_add_u32 {sT0}, s101, 65536")
                a(f"s_mov_b64 exec, {sLO32}")
                a(f"buffer_store_dwordx4 {AR(248)}, v104, {srd(SRD_WS)}, {sT0} offen sc1"); vq.append("wqs")
                a("s_mov_b64 exec, -1")
            def f2():
                lwait("wof")
                a(f"buffer_store_dwordx4 v[108:111], {vL16}, {srd(SRD_WS)}, s100 offen sc1"); vq.append("wofs")
            return [f0, f1, f2]
        def items(sch):
            its = []
            for k in range(0, len(sch), 2):
                c, n = sch[k], int(sch[k + 1])
                if c == "w": its += wd_items(n)
                if c == "q": its += wd_items(n, (0,), "q")
                if c == "x": its += xd_items(n)
                if c == "t": its.append(tch)
                if c == "P": its.append(prod)
                if c == "s": its += st_items()
                if c == "f":
                    def f():
                        n = len(vq) - 1 - max(i for i, t_ in enumerate(vq) if t_ in ("clr", "wqs", "wofs"))
                        a(f"s_waitcnt vmcnt({n})"); self.st_waited = True
                    its.append(f)
                if c == "c": its += (clr_items()[:4] if n == 0 else clr_items()[4:])
            return its
        SCH = os.environ.get("SCH", "t0w0x0|,P0w1x1,w2x2w3c0,s0c1x3w4,x4w5x5,w6w7x6,x7q0q1q2q3,q4q5q6q7").split(",")
        A0, A1 = SCH[0].split("|")
        for f in items(A0): f()
        mk(SRD_WOA, sPT + 4, 512 * 1024)
        mk(SRD_WOB, sPT + 10, 512 * 1024)
        mk(SRD_WQB, sPT + 8, 512 * 3072)
        self.stamp(5, False)
        if os.environ.get("WSOFF"):
            a(f"s_add_u32 s88, s88, {int(os.environ['WSOFF']) << 20}")
            a("s_addc_u32 s89, s89, 0")
        mk(SRD_WS, 88, WS_SIZE if self.dbg else WS_USED)
        a(f"s_lshl_b32 {sT0}, {sT}, 15")
        a(f"s_lshl_b32 {sT1}, {sM}, 11")
        a(f"s_add_u32 {sOBl}, {sT0}, {sT1}")
        a(f"s_add_u32 {sOBl}, {sOBl}, {OB(0)}")
        a(f"s_lshl_b32 {sT0}, {sT}, 16")
        a(f"s_lshl_b32 {sT1}, {sM}, 12")
        a(f"s_add_u32 {sKVl}, {sT0}, {sT1}")
        a(f"s_add_u32 {sKVl}, {sKVl}, {KV(0)}")
        for f in items(A1): f()
        def clr_items():
            def f0():
                a("v_mov_b32 v20, -1\nv_mov_b32 v21, -1\nv_mov_b32 v22, -1\nv_mov_b32 v23, -1")
                a(f"s_sub_u32 {sT0}, 3, {sW}")
                a(f"s_lshl_b32 {sT0}, {sT0}, 16")
                a(f"s_add_u32 {sT0}, {sT0}, {sKVl}")
                a(f"s_add_u32 {sT0}, {sT0}, s98")
                a(f"s_add_u32 {sT0}, {sT0}, 0x400000")
                a(f"buffer_store_dwordx4 v[20:23], {vL16}, {srd(SRD_WS)}, {sT0} offen sc1"); vq.append("clr")
            its = [f0]
            for so, off in [(sOBl, 0), (sOBl, 1024)] + [(sKVl, f * 1024) for f in range(4)]:
                def f(so=so, off=off):
                    a(f"buffer_store_dwordx4 v[20:23], {vL16}, {srd(SRD_WS)}, {so} offen offset:{off} sc1"); vq.append("clr")
                its.append(f)
            return its
        mk(SRD_OUT, sPT + 12, 2048 * 1024)
        mk(SRD_DBG, sPT + 14, 256)
        a(f"s_lshl_b32 {sT0}, {sRT}, 10")
        a(f"s_and_b32 {sT1}, {sM}, 2")
        a(f"s_lshl_b32 {sT1}, {sT1}, 8")
        a(f"s_add_u32 {sSTout}, {sT0}, {sT1}")
        a(f"s_and_b32 {sT1}, {sM}, 1")
        a(f"s_lshl_b32 {sT1}, {sT1}, 3")
        a(f"s_add_u32 {sSTout}, {sSTout}, {sT1}")
        a(f"s_add_u32 {sSTout}, {sSTout}, {ST(1)}")
        a(f"s_lshl_b32 {sT0}, {sT}, 10")
        a(f"s_add_u32 {sSTin}, {sT0}, {ST(0)}")
        a(f"s_lshl_b32 {sT0}, {sT}, 15")
        a(f"s_add_u32 {sXBin}, {sT0}, {0x200000 if PP else (XB(1) - 0x200000) & 0xffffffff}")
        a(f"s_lshl_b32 {sT0}, {sRT}, 15")
        a(f"s_lshl_b32 {sT1}, {sCT}, 11")
        a(f"s_add_u32 {sXBout}, {sT0}, {sT1}")
        a(f"s_add_u32 {sXBout}, {sXBout}, {XB(1)}")
        a(f"s_lshl_b32 {sT1}, {sW}, 13")
        a(f"s_add_u32 {sOIN}, {sT0}, {sT1}")
        a(f"s_add_u32 {sOIN}, {sOIN}, {OB(0)}")
        a(f"s_mov_b32 {sCSF}, {L_CSF}")
        a(f"s_mov_b32 {sRHO}, s64")
        a("s_mov_b32 s89, 0")
        a(f"s_lshl_b32 {sWOB}, {sCT}, 15")
        a(f"s_add_u32 {sWOB}, {sWOB}, {WOF}")
        for g in range(4):
            a(f"s_add_u32 {sT3}, {sW}, {g}")
            a(f"s_and_b32 {sT3}, {sT3}, 3")
            a(f"s_lshl_b32 {sT3}, {sT3}, 13")
            a(f"s_add_u32 s{40+g}, {sT3}, {sWOB}")
        a(f"s_mul_i32 {sWQN}, {sM}, 98304")
        a(f"s_add_u32 {sWQN}, {sWQN}, {WQF}")
        a(f"s_lshl_b32 {sT0}, {sR}, 4")
        a(f"s_add_u32 {sT0}, {sT0}, {sM}")
        a(f"s_and_b32 {sT1}, {sT0}, 3")
        a(f"s_lshl_b32 {sT1}, {sT1}, 3")
        a(f"s_or_b32 {sT2}, {sXCC}, 0x80")
        a(f"s_lshl_b32 {sU1}, {sT2}, {sT1}")
        a(f"s_lshl_b32 s99, 0x40, {sT1}")
        a(f"s_and_b32 {sU3}, {sT0}, 0xfc")
        a(f"""
        v_bfe_u32 {vT0}, {vC}, 1, 3
        v_xor_b32 {vT0}, {vT0}, {vH}
        v_lshlrev_b32 {vT0}, 4, {vT0}
        v_lshl_add_u32 {vT0}, {vC}, 7, {vT0}
        v_add_u32 v56, {sU2}, {vT0}
        v_xor_b32 v57, 32, v56
        v_xor_b32 v58, 64, v56
        v_xor_b32 v59, 0x60, v56
        """)
        a(f"v_cmp_gt_u32 {sH0}, 16, {vC}")
        a(f"v_cmp_le_u32 {sH1}, 16, {vC}")
        a(f"s_mov_b64 {sL0EX}, 0")
        a(f"s_mov_b64 {sWNEX}, 0")
        self.set_tr_addr(False)
        for j in range(6): a(f"v_add_u32 v{96+j}, s98, v{vTR+j}")
        q = vSTAT
        a("v_mov_b32 v60, 0x3f803f80")
        for i in range(4): a(f"v_mov_b32 v{q+i}, 0")
        for i in range(3): a(f"v_mov_b32 v{61+i}, 0")
        a(f"v_lshlrev_b32 {vCSA}, 3, {vC}")
        a(f"v_add_u32 {vCSA}, {sCSF}, {vCSA}")
        self.stamp(4, False)
        for f in items(SCH[1]): f()
        self.stamp(1, False)
        def wrd(s_):
            b = WF[s_ % 4]
            for j in range(4): ld(f"k{s_}", f"ds_read_b64_tr_b16 {R(b+2*j,2)}, v{vTR+2+j} offset:{s_*1024}")
        CT_ = 116
        def ctb(p): return 240 if p == 7 else CT_
        def csrd(p):
            for j in range(2, 6): ld(f"c{p}", f"ds_read_b64_tr_b16 {R(ctb(p)+2*j,2)}, v{96+j} offset:{p*4096}")
        def csdot(p):
            lwait(f"c{p}")
            for j in range(4):
                for ct in (1, 2): a(f"v_dot2_f32_bf16 v{61+ct}, v{ctb(p)+4*ct+j}, v60, v{61+ct}")
        def qrd(h, b):
            wait(f"q{4*h+3}")
            for k in range(4):
                for j in range(2): ld(f"cq{h}", f"ds_read_b64_tr_b16 {R(b+4*k+2*j,2)}, v{96+j} offset:{(4*h+k)*4096}")
        def qdot(h, b):
            lwait(f"cq{h}")
            for j in range(16): a(f"v_dot2_f32_bf16 v61, v{b+j}, v60, v61")
        def mf(s_, fill=None):
            b = WF[s_ % 4]; c0 = "0" if s_ == 0 else None
            lwait(f"k{s_}")
            a(f"{MFMA} {R(ACC_K,16)}, {R(b)}, {R(vXF+4*s_)}, {c0 or R(ACC_K,16)}")
            if fill: fill()
            a(f"{MFMA} {R(ACC_V,16)}, {R(vXF+4*s_)}, {R(b+4)}, {c0 or R(ACC_V,16)}")
            if fill: fill()
        SC0 = 0
        fdone = False
        FLP = int(os.environ.get("FLP", "6"))
        def early_flags():
            wait("fl")
            self.flag_check("v20", "v21", 0x80, True)
            a(f"s_and_b32 {sT4}, {sR}, 1")
            a(f"s_lshl_b32 {sT4}, {sT4}, 2")
            a(f"s_add_u32 {sT4}, {sT4}, {sW}")
            a(f"s_mul_i32 {sT4}, {sT4}, 12288")
            a(f"s_add_u32 {sT4}, {sT4}, {sWQN}")
            a(f"s_add_u32 {sT5}, {sT4}, 6144")
            a(f"v_min_u32 v22, 47, {vLANE}")
            a(f"v_lshlrev_b32 v22, 7, v22")
            a(f"buffer_load_dword {vWD}, v22, {srd(SRD_WS)}, {sT4} offen"); vq.append("t2")
            a(f"buffer_load_dword {vWD}, v22, {srd(SRD_WS)}, {sT5} offen"); vq.append("t2")
        for p in range(8):
            wait(f"x{p}")
            for k in range(4):
                ld(f"x{p}", f"ds_read_b128 {R(vXF + 4*(4*p+k))}, v{56+k} offset:{(p%4)*4096}")
            if p < 7: csrd(p)
            if p == 7:
                for s_ in range(28, 30): wrd(s_)
            a("s_barrier")
            if p == 7: self.stamp(6, False)
            if p < 7: self.stamp(p + 1, False, alt=True)
            if p < 7:
                for s_ in range(4 * p, 4 * p + 2): wrd(s_)
            else:
                a(f"v_lshlrev_b32 v102, 2, {vC}")
                a(f"v_add_u32 v102, s98, v102")
                for k in range(8): ld("sc", f"ds_read_b32 v{CT_+k}, v102 offset:{SC0 + k*128}")
            sch = SCH[p + 2] if p + 2 < len(SCH) else ""
            for k in range(0, len(sch), 2):
                if sch[k] == "x": assert int(sch[k + 1]) < p + 4
                if sch[k:k+2] == "q7": assert "wofs" in vq
            its = items(sch)
            last = lambda tags: max(i for i, t_ in enumerate(vq) if t_ in tags)
            if vq.count("clr") == 7 and "wofs" in vq and not fdone and (last([f"x{p}"]) > last(["clr", "wqs", "wofs"]) or getattr(self, "st_waited", False)):
                its = [lambda: self.flag_set(sU1)] + its
                fdone = True
            if p == 6: assert last(["x6"]) > last(["w7"])
            if p == 7: assert fdone
            assert last([f"x{p}"]) > last([f"w{p}"])
            nit = len(its); cnt = [0]
            def tick(w=1.0, total=13.0):
                cnt[0] += w
                while its and (nit - len(its)) < cnt[0] * nit / total: its.pop(0)()
            tick()
            def sdot(p):
                for j in range(16):
                    r = vXF + 16 * p + j
                    a(f"v_dot2_f32_bf16 v{q+2*(j%2)}, v{r}, v60, v{q+2*(j%2)}")
                    a(f"v_dot2_f32_bf16 v{q+1+2*(j%2)}, v{r}, v{r}, v{q+1+2*(j%2)}")
                    if j % 4 == 3: tick()
            if p > 0: sdot(p - 1)
            else: tick(4)
            if p < 7:
                csdot(p)
                for s_ in range(4 * p + 2, 4 * p + 4): wrd(s_)
                if p == 6: csrd(7)
                for s_ in range(4 * p, 4 * p + 3): mf(s_, tick)
                if p == 5: qrd(0, 240)
                if p == 6: csdot(7); qrd(1, 240)
                mf(4 * p + 3, tick)
                assert not its
                if p == 5:
                    qdot(0, 240)
                    a(f"v_mov_b32 v102, 0")
                    ld("fw", f"ds_write_b32 v102, v102 offset:{L_FW}")
                    a("s_waitcnt lgkmcnt(0)")
                if p == FLP:
                    assert fdone
                    self.flag_load("v20"); vq.append("fl")
                if p == 6:
                    qdot(1, 240)
                    a(f"v_lshlrev_b32 {vT0}, 2, {vLANE}")
                    a(f"s_lshl_b32 {sT0}, {sW}, 8")
                    a(f"v_add_u32 {vT0}, {sT0}, {vT0}")
                    a("s_nop 2")
                    for ct in range(3): ld("cw", f"ds_write_b32 {vT0}, v{61+ct} offset:{SC0 + ct*1024}")
                    a("s_waitcnt lgkmcnt(0)")
                    if FLP == 5: early_flags()
            else:
                for s_ in range(30, 32): wrd(s_)
                lwait("x7")
                sdot(7)
                if FLP == 6: early_flags()
                t = CT_
                F = [f"v_add_f32 v{t}, v{t}, v{t+k}" for k in range(1, 8)]
                F += [x.strip() for x in f"""
                v_cvt_pk_bf16_f32 v{t+1}, v{t}, v{t}
                v_and_b32 v{t+2}, 0xffff0000, v{t+1}
                v_sub_f32 v{t+3}, v{t}, v{t+2}
                v_cvt_pk_bf16_f32 v{t+4}, v{t+3}, v{t+3}
                v_and_b32 v{t+5}, 0xffff0000, v{t+4}
                v_sub_f32 v{t+6}, v{t+3}, v{t+5}
                v_cvt_pk_bf16_f32 v{t+7}, v{t+6}, v{t+6}
                v_lshrrev_b32 v{t+8}, 16, v{t+2}
                v_or_b32 v{t+8}, v{t+8}, v{t+5}
                v_and_b32 v{t+9}, 0xffff, v{t+7}
                s_lshl_b32 {sT1}, {sW}, 8
                v_add_u32 v102, {sT1}, {vCSA}
                ds_write_b64 v102, v[{t+8}:{t+9}]
                """.strip().split("\n")]
                F += self.stats_ops()
                F += [f"ds_write_b32 {vT0}, {vRSTD} offset:{L_RS}"]
                F += [f"ds_read_b128 {R(vRS+4*qq)}, v21 offset:{L_RS + qq*32}" for qq in range(4)]
                lwait("sc")
                fi = [0]
                def fill():
                    for x in F[fi[0]:fi[0] + 8]:
                        if x.startswith("ds_"): ld("f", x)
                        else: a(x)
                    fi[0] += 8
                for s_ in range(28, 32): mf(s_, fill)
                assert fi[0] >= len(F)
                for i in (1, 2, 3):
                    for x in self.rd2(i): a(x)
                a("s_waitcnt lgkmcnt(0)")
                a("s_barrier")
                a(f"ds_read_b64 {R(WF[0],2)}, {vCSA} offset:256")
                a(f"ds_read_b64 {R(WF[0]+4,2)}, {vCSA} offset:512")
                for x in self.rd2(0): a(x)
                a("s_waitcnt lgkmcnt(0)")
        self.stamp(2, False); self.stamp(3, False); self.stamp(0); self.stamp(1)
        a("s_branch L_join")

    def l0_block(self, t):
        self.mask_tables(t)
        self.pads_init(t)
        t(f"s_mov_b32 {sBIG}, 0x5d800000")
        t(f"s_mov_b32 {sTINY}, 0x21800000")
        t("s_waitcnt lgkmcnt(0)")

    def pads_init(self, a):
        a(f"""
        v_lshrrev_b32 {vT0}, 1, {vLANE}
        v_mul_u32_u24 {vT0}, {TP}, {vT0}
        v_and_b32 {vT1}, 1, {vLANE}
        v_mul_u32_u24 {vT1}, 1040, {vT1}
        v_add_u32 {vT0}, {vT0}, {vT1}
        v_mov_b32 v120, 0x3f803f80
        v_mov_b32 v121, 0x3f803f80
        v_mov_b32 v122, 0x3f803f80
        v_mov_b32 v123, 0x3f803f80
        s_mov_b64 exec, 0xffffff
        ds_write_b128 {vT0}, v[120:123] offset:{L_KV + 3072}
        s_mov_b64 exec, -1
        """)

    def wof_loads2(self):
        a = self.a
        a(f"s_lshl_b32 {sT0}, s2, 2")
        a(f"s_add_u32 {sT0}, {sT0}, {sW}")
        a(f"s_bfe_u32 {sT1}, {sT0}, 0x50004")
        a(f"s_and_b32 {sT2}, {sT0}, 15")
        a(f"s_lshl_b32 {sT3}, {sT1}, 14")
        a(f"s_lshl_b32 {sT4}, {sT2}, 6")
        a(f"s_add_u32 {sT3}, {sT3}, {sT4}")
        a(f"v_lshrrev_b32 v103, 2, {vLANE}")
        a(f"v_lshlrev_b32 v103, 10, v103")
        a(f"v_and_b32 v106, 3, {vLANE}")
        a(f"v_lshl_add_u32 v103, v106, 4, v103")
        a(f"s_add_u32 m0, s98, {L_W + 7*4096}")
        lB, lD = self.lab("wob"), self.lab("wod")
        a(f"s_cmp_ge_u32 {sT0}, 512")
        a(f"s_cbranch_scc1 {lB}")
        a(f"buffer_load_dwordx4 v103, {srd(SRD_WOA)}, {sT3} offen lds")
        a(f"s_branch {lD}")
        a.label(lB)
        a(f"buffer_load_dwordx4 v103, {srd(SRD_WOB)}, {sT3} offen lds")
        a.label(lD)
        a(f"s_and_b32 s100, {sT0}, 512")
        a(f"s_lshl_b32 {sT2}, {sT2}, 5")
        a(f"s_add_u32 s100, s100, {sT2}")
        a(f"s_add_u32 s100, s100, {sT1}")
        a(f"s_lshl_b32 s100, s100, 10")
        a(f"s_add_u32 s100, s100, {WOF}")
        a(f"v_bfe_u32 v103, {vLANE}, 2, 2")
        a(f"v_lshlrev_b32 v103, 6, v103")
        a(f"v_lshl_add_u32 v103, v106, 3, v103")
        a(f"v_bfe_u32 v106, {vLANE}, 4, 1")
        a(f"v_lshl_add_u32 v103, v106, 5, v103")
        a(f"v_lshl_add_u32 v103, {vH}, 8, v103")
        a(f"s_add_u32 {sT0}, s98, {L_W + 7*4096}")
        a(f"v_add_u32 v103, {sT0}, v103")

    def wqf_loads(self):
        a = self.a
        a(f"s_lshl_b32 {sT0}, s2, 2")
        a(f"s_add_u32 {sT0}, {sT0}, {sW}")
        a(f"s_lshr_b32 {sT1}, {sT0}, 3")
        a(f"s_and_b32 {sT5}, {sT0}, 7")
        a(f"s_mul_i32 {sT3}, {sT1}, {4*3072}")
        a(f"s_lshl_b32 {sT0}, {sT5}, 7")
        a(f"s_add_u32 {sT3}, {sT3}, {sT0}")
        a(f"v_bfe_u32 {vT0}, {vLANE}, 3, 2")
        a(f"v_mul_u32_u24 v105, 3072, {vT0}")
        a(f"v_and_b32 v106, 7, {vLANE}")
        a(f"v_lshl_add_u32 v105, v106, 4, v105")
        a(f"v_lshl_add_u32 v105, {vH}, 10, v105")
        a(f"buffer_load_dwordx4 {AR(244)}, v105, {srd(SRD_WQB)}, {sT3} offen")
        a(f"s_mov_b64 exec, {sLO32}")
        a(f"buffer_load_dwordx4 {AR(248)}, v105, {srd(SRD_WQB)}, {sT3} offen offset:2048")
        a("s_mov_b64 exec, -1")
        a(f"s_mul_i32 {sT3}, {sT5}, {2*98304}")
        a(f"s_lshl_b32 {sT5}, {sT1}, 8")
        a(f"s_add_u32 s101, {sT3}, {sT5}")
        a(f"s_add_u32 s101, s101, {WQF}")
        a(f"v_lshlrev_b32 v104, 6, {vT0}")
        a(f"v_and_b32 v106, 3, {vLANE}")
        a(f"v_lshl_add_u32 v104, v106, 4, v104")
        a(f"v_bfe_u32 v106, {vLANE}, 2, 1")
        a(f"v_mul_u32_u24 v106, 98304, v106")
        a(f"v_add_u32 v104, v104, v106")
        a(f"v_lshl_add_u32 v104, {vH}, 15, v104")

    def resid_loads(self, t):
        t(f"v_lshrrev_b32 {vT0}, 2, {vLANE}")
        t(f"v_lshlrev_b32 {vT0}, 10, {vT0}")
        t(f"v_and_b32 {vT1}, 3, {vLANE}")
        t(f"v_lshl_add_u32 {vT0}, {vT1}, 4, {vT0}")
        t(f"s_lshl_b32 {sT0}, {sRT}, 15")
        t(f"s_lshl_b32 {sT1}, {sCT}, 6")
        t(f"s_add_u32 {sT0}, {sT0}, {sT1}")
        t(f"s_lshl_b32 {sT1}, {sW}, 11")
        for d in range(2):
            t(f"s_add_u32 m0, {sT1}, {L_XR + d*1024}")
            t(f"buffer_load_dwordx4 {vT0}, {srd(SRD_X)}, {sT0} offen lds")
            if d == 0: t(f"s_add_u32 {sT0}, {sT0}, 16384")

    def flag_load(self, dst):
        a = self.a
        a(f"v_lshlrev_b32 {vT0}, 2, {vLANE}")
        a(f"buffer_load_dword {dst}, {vT0}, {srd(SRD_DBG)}, 0 offen sc1")

    def flag_check(self, x, y, bit, setfast, layer=0):
        a, t = self.a, self.tail
        skip, slow, loop, back = self.lab("fsk"), self.lab("fsl"), self.lab("flp"), self.lab("fbk")
        l2, nw = self.lab("fl2"), self.lab("fnw")
        m = bit * 0x01010101
        a(f"s_cmp_lg_u32 {sL}, {layer}")
        a(f"s_cbranch_scc1 {skip}")
        a(f"v_and_b32 {y}, {m:#x}, {x}")
        a(f"v_cmp_ne_u32 vcc, {m:#x}, {y}")
        a(f"s_cbranch_vccnz {slow}")
        a.label(back)
        a(f"s_cmp_lg_u32 {sW}, 0")
        a(f"s_cbranch_scc1 {nw}")
        a(f"v_mov_b32 {y}, {layer+1}")
        a(f"v_mov_b32 {vT0}, 0")
        a(f"ds_write_b32 {vT0}, {y} offset:{L_FW}")
        a("s_waitcnt lgkmcnt(0)")
        a.label(nw)
        t.label(slow)
        t(f"s_mov_b32 {sTRY}, 0")
        t(f"s_cmp_eq_u32 {sW}, 0")
        t(f"s_cbranch_scc1 {loop}")
        t(f"v_mov_b32 {vT0}, 0")
        t.label(l2)
        t("s_sleep 2")
        t(f"ds_read_b32 {y}, {vT0} offset:{L_FW}")
        t("s_waitcnt lgkmcnt(0)")
        t(f"v_cmp_eq_u32 vcc, {layer+1}, {y}")
        t(f"s_cbranch_vccnz {loop}x")
        t(f"s_add_u32 {sTRY}, {sTRY}, 1")
        t(f"s_cmp_lt_u32 {sTRY}, {SPIN_LIMIT*8}")
        t(f"s_cbranch_scc1 {l2}")
        t.label(loop)
        t("s_sleep 12")
        t.label(loop + "x")
        t(f"v_lshlrev_b32 {vT0}, 2, {vLANE}")
        t(f"buffer_load_dword {x}, {vT0}, {srd(SRD_DBG)}, 0 offen sc1")
        t("s_waitcnt vmcnt(0)")
        t(f"v_and_b32 {y}, {m:#x}, {x}")
        t(f"v_cmp_ne_u32 vcc, {m:#x}, {y}")
        t(f"s_cbranch_vccz {back}")
        t(f"s_add_u32 {sTRY}, {sTRY}, 1")
        t(f"s_cmp_lt_u32 {sTRY}, {SPIN_LIMIT}")
        t(f"s_cbranch_scc1 {loop}")
        t(f"s_mov_b32 {sERR}, 100")
        t(f"s_branch {back}")
        if setfast:
            a(f"s_mul_i32 {sT0}, {sXCC}, 0x01010101")
            a(f"v_and_b32 {y}, 0x0f0f0f0f, {x}")
            a(f"v_cmp_eq_u32 vcc, {sT0}, {y}")
            a(f"s_lshl_b32 {sT1}, {sR}, 2")
            a(f"s_lshr_b64 {sMSK}, vcc, {sT1}")
            a(f"s_and_b32 {sT0}, s68, 15")
            a(f"s_cmp_eq_u32 {sT0}, 15")
            a(f"s_cselect_b32 {sFAST}, 1, 0")
            if os.environ.get("NOFAST"): a(f"s_mov_b32 {sFAST}, 0")
            a(f"s_cmp_eq_u32 {sERR}, 0")
            a(f"s_cselect_b64 {sCHK}, -1, 0")
        a.label(skip)

    def flag_wait(self, bit, setfast):
        a = self.a
        loop, done = self.lab("hw"), self.lab("hwd")
        m = bit * 0x01010101
        a(f"s_mov_b32 {sTRY}, 0")
        a(f"v_lshlrev_b32 {vT0}, 2, {vLANE}")
        a.label(loop)
        a(f"buffer_load_dword v20, {vT0}, {srd(SRD_DBG)}, 0 offen sc1")
        a("s_waitcnt vmcnt(0)")
        a(f"v_and_b32 v21, {m:#x}, v20")
        a(f"v_cmp_ne_u32 vcc, {m:#x}, v21")
        a(f"s_cbranch_vccz {done}")
        a("s_sleep 2")
        a(f"s_add_u32 {sTRY}, {sTRY}, 1")
        a(f"s_cmp_lt_u32 {sTRY}, {SPIN_LIMIT}")
        a(f"s_cbranch_scc1 {loop}")
        a(f"s_mov_b32 {sERR}, 100")
        a.label(done)
        if setfast:
            a(f"s_mul_i32 {sT0}, {sXCC}, 0x01010101")
            a(f"v_and_b32 v21, 0x0f0f0f0f, v20")
            a(f"v_cmp_eq_u32 vcc, {sT0}, v21")
            a(f"s_lshl_b32 {sT1}, {sR}, 2")
            a(f"s_lshr_b64 {sMSK}, vcc, {sT1}")
            a(f"s_and_b32 {sT0}, s68, 15")
            a(f"s_cmp_eq_u32 {sT0}, 15")
            a(f"s_cselect_b32 {sFAST}, 1, 0")
            if os.environ.get("NOFAST"): a(f"s_mov_b32 {sFAST}, 0")
            a(f"s_cmp_eq_u32 {sERR}, 0")
            a(f"s_cselect_b64 {sCHK}, -1, 0")

    def x_loads(self, t, g):
        t(f"s_add_u32 {sT0}, {sXBin}, {g*8192}")
        t(f"s_add_u32 {sT1}, {sXBin}, {g*8192+4096}")
        for i in range(8):
            s = 8 * g + i
            t(f"buffer_load_dwordx4 {R(vXF+4*s)}, {vL16}, {srd(SRD_WS)}, {sT0 if i < 4 else sT1} offen offset:{(i%4)*1024} sc1")

    def st_load(self):
        return f"buffer_load_dwordx4 {R(vSTAT)}, {vL16}, {srd(SRD_WS)}, {sSTin} offen sc1"
    def st_loads(self, t):
        t(self.st_load())

    def layer_start(self):
        a = self.a
        a("v_mov_b32 v20, -1\nv_mov_b32 v21, -1\nv_mov_b32 v22, -1\nv_mov_b32 v23, -1")
        lk = self.lab("clrk")
        a(f"s_bitcmp1_b32 {sL}, 0")
        a(f"s_cbranch_scc1 {lk}")
        a(f"s_cmp_lg_u32 {sW}, 3")
        a(f"s_cbranch_scc1 {lk}")
        a(f"s_add_u32 {sT0}, {sKVl}, 0x400000")
        for f in range(4):
            a(f"buffer_store_dwordx4 v[20:23], {vL16}, {srd(SRD_WS)}, {sT0} offen offset:{f*1024} sc1")
        a.label(lk)

    def group_clear_items(self):
        a = self.a
        def f0():
            assert self.flags_done
            a("v_mov_b32 v20, -1\nv_mov_b32 v21, -1\nv_mov_b32 v22, -1\nv_mov_b32 v23, -1")
        def f1():
            a(f"{STEP} s79, {sOBl}, 0x200000")
            a(f"s_cmp_eq_u32 {sL}, 3")
            a(f"s_cselect_b32 s78, 0x7f000000, {sXBout}")
            a(f"s_cselect_b32 s79, 0x7f000000, s79")
            a(f"s_cselect_b32 s80, 0x7f000000, {sSTout}")
        its = [f0, f1]
        for so in ("s78", "s79"):
            its.append(lambda so=so: self.store_msg([("v[20:23]", so, 0), ("v[20:23]", so, 1024)], vL16))
        def f2():
            a(f"v_lshlrev_b32 {vT1}, 4, {vC}")
            self.store_msg([("v[20:21]", "s80", 0)], vT1, width="dwordx2")
        its.append(f2)
        return its

    def kv2_clear(self, half):
        L = []
        if half == 0: L += ["v_mov_b32 v28, -1", "v_mov_b32 v29, -1", "v_mov_b32 v30, -1", "v_mov_b32 v31, -1", f"s_add_u32 {sT5}, {sKVl}, {KV(2)-KV(0)}"]
        L += [f"s_mov_b64 exec, {sL0EX}"]
        for f in (2 * half, 2 * half + 1):
            L += [f"buffer_store_dwordx4 v[28:31], {vL16}, {srd(SRD_WS)}, {sT5} offen offset:{f*1024} sc1"]
        L += ["s_mov_b64 exec, -1"]
        return L

    def nb_loads(self, t):
        for k, s in enumerate((sNB0, sNB1)):
            for f in range(4):
                t(f"buffer_load_dwordx4 {R(vSTG+16*k+4*f)}, {vL16}, {srd(SRD_WS)}, {s} offen offset:{f*1024} sc1")

    def stats_ops(self):
        q = vSTAT
        L = []
        for i in range(1, 2):
            L.append(f"v_add_f32 v{q}, v{q}, v{q+2*i}")
            L.append(f"v_add_f32 v{q+1}, v{q+1}, v{q+2*i+1}")
        L += [x.strip() for x in f"""
        v_mov_b32 v{q+2}, v{q}
        v_mov_b32 v{q+3}, v{q+1}
        v_mov_b32 v18, 0
        v_mov_b32 v19, 0
        v_permlane32_swap_b32 v{q}, v{q+2}
        v_permlane32_swap_b32 v{q+1}, v{q+3}
        s_lshl_b32 {sT0}, {sW}, 7
        v_lshlrev_b32 {vT0}, 2, {vC}
        v_add_f32 v{q}, v{q}, v{q+2}
        v_add_f32 v{q+1}, v{q+1}, v{q+3}
        v_mul_f32 v{q}, {f32hex(1/512)}, v{q}
        v_mul_f32 v{q+1}, {f32hex(1/512)}, v{q+1}
        v_fma_f32 v{q+1}, -v{q}, v{q}, v{q+1}
        v_max_f32 v{q+1}, 0, v{q+1}
        v_cvt_pk_bf16_f32 v{q+2}, v{q}, v{q+1}
        v_and_b32 v{q+3}, 0xffff0000, v{q+2}
        v_add_f32 v{q+3}, {f32hex(1e-5)}, v{q+3}
        v_cvt_pk_bf16_f32 v{q+3}, v{q+3}, v{q+3}
        v_and_b32 v{q+3}, 0xffff0000, v{q+3}
        v_sqrt_f32 v{q+3}, v{q+3}
        v_and_b32 v{q+2}, 0xffff, v{q+2}
        v_xor_b32 v{q+2}, 0x8000, v{q+2}
        v_cvt_pk_bf16_f32 v{q+3}, v{q+3}, v{q+3}
        v_and_b32 v{q+3}, 0xffff0000, v{q+3}
        v_rcp_f32 {vRSTD}, v{q+3}
        v_cndmask_b32_e64 v17, 0, v{q+2}, {sLO32}
        v_lshl_or_b32 v16, v17, 16, v17
        v_add_u32 {vT0}, {sT0}, {vT0}
        v_mul_f32 {vRSTDC}, {f32hex(QSCALE)}, {vRSTD}
        v_lshlrev_b32 v21, 4, {vH}
        v_add_u32 v21, {sT0}, v21
        """.strip().split("\n")]
        return L

    def x_load1(self, s):
        so = ["s78", "s79", "s80", "s81", "s82", "s83", "s64", "s65"][s // 4]
        return f"buffer_load_dwordx4 {R(vXF+4*s)}, {vL16}, {srd(SRD_WS)}, {so} offen offset:{(s%4)*1024} sc1"

    def q_order(self):
        return [32] + list(range(31, -1, -1))
    def rd2(self, i):
        order = self.q_order()
        if i >= len(order): return []
        s = order[i]; b = W2[i % len(W2)]
        if s == 32: return [f"ds_read_b64 {R(b,2)}, {vCSA} offset:0"]
        return [f"ds_read_b64_tr_b16 {R(b,2)}, v{vTR} offset:{s*1024}",
                f"ds_read_b64_tr_b16 {R(b+2,2)}, v{vTR+1} offset:{s*1024}"]

    def pass1(self, first):
        a = self.a
        PF = 3
        lq = []
        def ld(tag, ins): a(ins); lq.append(tag)
        def lwait(tag):
            n = len(lq) - 1 - max(i for i, t in enumerate(lq) if t == tag)
            a(f"s_waitcnt lgkmcnt({min(n,15)})")
        def rd1(s):
            b = WF[s % 4]
            if s < 32:
                return [(s, f"ds_read_b64_tr_b16 {R(b+2*j,2)}, v{vTR+2+j} offset:{s*1024}") for j in range(4)]
            if s == 32:
                return [(s, f"ds_read_b64 {R(b,2)}, {vCSA} offset:256"), (s, f"ds_read_b64 {R(b+4,2)}, {vCSA} offset:512")]
            i = 2 * (s - 33)
            return [(f"q{i}", x) for x in self.rd2(i)] + [(f"q{i+1}", x) for x in self.rd2(i + 1)]
        issued = []
        def vm(tag, ins): a(ins); issued.append(tag)
        def wait(tag):
            n = len(issued) - 1 - max(i for i, t in enumerate(issued) if t == tag)
            a(f"s_waitcnt vmcnt({n})")
        if not first:
            issued += list(range(UP))
            a("v_mov_b32 v60, 0")
        a(f"v_lshlrev_b32 {vCSA}, 3, {vC}")
        a(f"v_add_u32 {vCSA}, {sCSF}, {vCSA}")
        for s in range(PF):
            for t_, x in rd1(s): ld(t_, x)
        st = self.stats_ops(); si = 0
        SS = 25
        for s in range(32):
            if not first:
                wait(s)
                if s == SS:
                    wait("st")
                    a(f"v_max3_u32 v60, v60, v{vSTAT}, v{vSTAT+2}")
            if os.environ.get("P1ST"):
                p1, p2 = map(int, os.environ["P1ST"].split(","))
                if s == p1: self.stamp(7, alt=True)
                if s == p2: self.stamp(8, alt=True)
            b = WF[s % 4]
            nxt = rd1(s + PF)
            lwait(s)
            c0 = "0" if s == 0 else None
            def fill():
                nonlocal si
                if s >= SS:
                    for x in st[si:si + 3]: a(x)
                    si += 3
                    if si >= len(st) and si - 3 < len(st):
                        ld("rsw", f"ds_write_b32 {vT0}, {vRSTD} offset:{L_RS}")
                        for qq in range(4):
                            ld("rs", f"ds_read_b128 {R(vRS+4*qq)}, v21 offset:{L_RS + qq*32}")
            a(f"{MFMA} {R(ACC_K,16)}, {R(b)}, {R(vXF+4*s)}, {c0 or R(ACC_K,16)}")
            for t_, x in nxt[:2]: ld(t_, x)
            fill()
            if not first:
                if s + UP < 32: vm(s + UP, self.x_load1(s + UP))
                if s % 2 == 1: a(f"v_max3_u32 v60, v60, v{vXF+4*s}, v{vXF+4*s-4}")
            a(f"{MFMA} {R(ACC_V,16)}, {R(vXF+4*s)}, {R(b+4)}, {c0 or R(ACC_V,16)}")
            for t_, x in nxt[2:]: ld(t_, x)
            fill()
            if not first:
                if s == 17: vm("st", self.st_load())
            if s == 21:
                self.flag_load("v20"); issued.append("f")
            if not first and s == UP:
                a("v_cmp_eq_u32 vcc, -1, v60")
                a(f"s_and_b64 vcc, vcc, {sCHK}")
                a(f"s_cbranch_vccnz {self.l_restart}")
            if not first and s == 27:
                lnb = self.lab("nq")
                a(f"s_cmp_lg_u32 {sL}, 2")
                a(f"s_cbranch_scc1 {lnb}")
                a("s_barrier")
                a.label(lnb)
            if not first and s in (25, 28):
                h = (WB[0] + WB[1]) // 2 // 4 * 4
                lo, hi = (WB[0], h) if s == 25 else (h, WB[1])
                if hi > lo: self.l1_wob(lo, hi)
        assert si >= len(st)
        self.lq_end = lq

    def gemm(self):
        a, t = self.a, self.tail
        self.stamp(0)
        l0, ljoin, lredo, lrl = self.lab("g_l0"), self.lab("g_join"), self.lab("g_redo"), self.lab("g_rl")
        self.w_swap(0, layer=2)
        lpf, lpb = self.lab("xpf"), self.lab("xpb")
        a(f"s_waitcnt vmcnt({UP})")
        a("v_cmp_eq_u32 vcc, -1, v109")
        a(f"s_and_b64 vcc, vcc, {sCHK}")
        a(f"s_cbranch_vccnz {lpf}")
        a.label(lpb)
        self.l_restart = self.lab("xrs")
        t.label(self.l_restart)
        if self.dbg: t("s_add_u32 s84, s84, 1")
        t("s_waitcnt vmcnt(0) lgkmcnt(0)")
        t("s_add_u32 s89, s89, 1")
        t(f"s_cmp_lt_u32 s89, {SPIN_LIMIT}")
        t(f"s_cselect_b64 {sCHK}, {sCHK}, 0")
        t.label(lpf)
        if self.dbg: t("s_add_u32 s85, s85, 1")
        self.a = t
        self.probe("v108", sXBin, "v20", "v21", 1)
        self.a = a
        for k in range(UP): t(self.x_load1(k))
        t(f"s_branch {lpb}")
        self.stamp(1)
        self.pass1(False)
        a("v_cmp_eq_u32 vcc, -1, v60")
        a(f"s_and_b64 vcc, vcc, {sCHK}")
        a(f"s_cbranch_vccnz {lredo}")
        t.label(lredo)
        t(f"s_mov_b32 {sTRY}, 0")
        t("s_waitcnt vmcnt(0) lgkmcnt(0)")
        t("s_nop 7\ns_nop 7")
        t.label(lrl)
        if self.dbg: t("s_add_u32 s84, s84, 1")
        for k in range(32): t(self.x_load1(k))
        self.st_loads(t)
        t("s_waitcnt vmcnt(0)")
        self.maxtree(t, [vXF + 4 * k for k in range(32)] + [vSTAT + 2 * i for i in range(2)], vT0)
        t(f"v_cmp_eq_u32 vcc, -1, {vT0}")
        t(f"s_cbranch_vccz {l0}")
        t(f"s_add_u32 {sTRY}, {sTRY}, 1")
        t(f"s_cmp_lt_u32 {sTRY}, {SPIN_LIMIT}")
        t(f"s_cbranch_scc1 {lrl}")
        t(f"s_mov_b64 {sCHK}, 0")
        t(f"s_mov_b32 {sERR}, 2")
        t(f"s_branch {l0}")
        t.label(l0)
        self.a = t
        self.pass1(True)
        self.a = a
        t("s_waitcnt vmcnt(0)")
        t("s_branch L_join")
        a.label("L_join")
        self.stamp(2)
        lq = list(self.lq_end)
        if self.dbg: lq = [t_ for t_ in lq]
        def ld(tag, ins): a(ins); lq.append(tag)
        def lwait(tag):
            n = len(lq) - 1 - max(i for i, t_ in enumerate(lq) if t_ == tag)
            a(f"s_waitcnt lgkmcnt({min(n,15)})")
        b = WF[32 % 4]
        PF2 = 5
        lwait(32)
        a(f"{MFMA} {R(ACC_K,16)}, {R(b)}, v[16:19], {R(ACC_K,16)}")
        a(f"{MFMA} {R(ACC_V,16)}, v[16:19], {R(b+4)}, {R(ACC_V,16)}")
        for x in self.rd2(4): ld("q4", x)
        F = []
        def I(x): F.append((1, lambda x=x: a(x)))
        def L(tag, x): F.append((1, lambda tag=tag, x=x: ld(tag, x)))
        def G(n, fn): F.append((n, fn))
        for r in range(16): I(f"v_mul_f32 v{ACC_K+r}, {vRSTD}, v{ACC_K+r}")
        for j in range(8): I(f"v_cvt_pk_bf16_f32 v{vOWNK+j}, v{ACC_K+2*j}, v{ACC_K+2*j+1}")
        for f in (vOWNK, vOWNK + 4): I(f"v_min_u32 v{f}, 0xfffffffe, v{f}")
        G(4, lambda: self.kv_publish(0))
        G(1, lambda: lwait("rs"))
        for r in range(16): I(f"v_mul_f32 v{ACC_V+r}, v{vRS+r}, v{ACC_V+r}")
        for j in range(8): I(f"v_cvt_pk_bf16_f32 v{vOWNV+j}, v{ACC_V+2*j}, v{ACC_V+2*j+1}")
        for f in (vOWNV, vOWNV + 4): I(f"v_min_u32 v{f}, 0xfffffffe, v{f}")
        G(4, lambda: self.kv_publish(1))
        NF = len(F)
        G(0, lambda: self.stamp(3))
        I(f"s_mul_i32 {sT0}, {sW}, {TP}")
        I(f"v_add_u32 {vKA}, {sT0}, {vL16}")
        OWN = [vOWNK, vOWNK + 4, vOWNV, vOWNV + 4]
        for f in range(4): L("own", f"ds_write_b128 {vKA}, {R(OWN[f])} offset:{L_KV + 8*TP + PO[f]}")
        I(f"s_add_u32 {sT0}, {sT0}, 1024")
        I(f"v_mov_b32 {vT0}, {sT0}")
        I(f"v_cndmask_b32_e64 {vVA[0]}, {vT0}, {vKA}, {sH0}")
        I(f"v_cndmask_b32_e64 {vVA[1]}, {vT0}, {vKA}, {sH1}")
        self.flags_done = False
        def flags():
            self.flags_done = True
            lfs = self.lab("nofl")
            a(f"s_bitcmp1_b32 {sL}, 0")
            a(f"s_cbranch_scc1 {lfs}")
            lb = self.lab("l0b")
            a(f"s_cmp_eq_u32 {sL}, 0")
            a(f"s_cbranch_scc1 {lb}")
            t.label(lb)
            self.l0_block(t)
            t(f"s_branch {lfs}")
            a("s_waitcnt vmcnt(4)")
            self.flag_check("v20", "v21", 0x20, False, layer=2)
            a.label(lfs)
        G(6, flags)
        for x in self.nb_addr(): G(x.count("\n") + 1, lambda x=x: a(x))
        G(0, lambda: setattr(self, "nb_ready", True))
        def msel():
            a(f"s_bitcmp1_b32 {sL}, 0")
            a(f"s_cselect_b32 {sT2}, 512, 0")
            a(f"s_cselect_b32 {sT3}, 3, 4")
            a(f"s_cmp_eq_u32 {sT}, 0")
            a(f"s_cselect_b32 {sT3}, 5, {sT3}")
            a(f"s_lshl_b32 {sT3}, {sT3}, 8")
        G(6, msel)
        for x in self.mask_load(vMASK, sT2, vT0) + self.mask_load(vCZ, sT3, vT0):
            if x.startswith("ds_"): L("m", x)
            else: I(x)
        self.nb_ready = False
        NBAT = int(os.environ.get("NBAT", "24")); CLAT = int(os.environ.get("CLAT", "14"))
        placed = {}
        def place(g, fn): placed.setdefault(g, []).append(fn)
        for k in range(8):
            def f(k=k):
                assert self.nb_ready
                a(f"buffer_load_dwordx4 {R(vSTG+4*k)}, {vL16}, {srd(SRD_WS)}, {(sNB0, sNB1)[k//4]} offen offset:{(k%4)*1024} sc1")
            place(NBAT + k // 2, f)
        for k, f in enumerate(self.group_clear_items()): place(CLAT + k, f)
        order = self.q_order()
        fi = 0
        for i, s_ in enumerate(order):
            b = W2[i % len(W2)]
            lwait(f"q{i}")
            bop = "v[16:19]" if s_ == 32 else R(vXF + 4 * s_)
            a(f"{MFMA} {R(ACC_Q,16)}, {R(b)}, {bop}, {'0' if i == 0 else R(ACC_Q,16)}")
            for x in self.rd2(i + PF2): ld(f"q{i+PF2}", x)
            budget = 8 if fi < NF else 3
            for f in placed.get(i, []): f(); budget -= 2
            while fi < len(F) and budget > 0:
                budget -= F[fi][0]; F[fi][1](); fi += 1
            if i in (10, 14, 18, 22) and WB[1] + (i - 10) < 32:
                self.l1_wob(WB[1] + (i - 10), WB[1] + (i - 10) + 4 if i < 22 else 32)
            if i == 16: assert self.flags_done
            if i in (16, 20) and NA0: self.l1_wob((i - 16) // 4 * NA0 // 2, ((i - 16) // 4 + 1) * NA0 // 2, layer=0, mat=0)
            if s_ == 6:
                assert fi > NF + 10
                for x in self.rd_tile(0): ld("t0", x)
        assert fi == len(F), (fi, len(F))
        a("s_nop 7\ns_nop 3")
        for r in range(16): a(f"v_mul_f32 v{ACC_Q+r}, {vRSTDC}, v{ACC_Q+r}")
        for j in range(8): a(f"v_cvt_pk_bf16_f32 v{vQ+j}, v{ACC_Q+2*j}, v{ACC_Q+2*j+1}")
        a("s_waitcnt lgkmcnt(0)")
        self.stamp(4)

    def kv_publish(self, half):
        a = self.a
        OWN = [vOWNK, vOWNK + 4, vOWNV, vOWNV + 4]
        lsk = self.lab("kvsk")
        if half == 0:
            a(f"s_cmp_lg_u32 {sW}, 3")
            a(f"s_cselect_b32 {sT4}, {sL}, 0")
            a(f"s_and_b32 {sT4}, {sT4}, 1")
        else:
            a(f"s_cmp_lg_u32 {sT4}, 0")
        a(f"s_cbranch_scc1 {lsk}")
        for f in (2 * half, 2 * half + 1):
            a(f"buffer_store_dwordx4 {R(OWN[f])}, {vL16}, {srd(SRD_WS)}, {sKVl} offen offset:{f*1024} sc1")
        if half == 1 and os.environ.get("DUAL"):
            a(f"s_bitcmp1_b32 {sR}, 0")
            a(f"s_cbranch_scc1 {lsk}")
            for f in range(4):
                a(f"buffer_store_dwordx4 {R(OWN[f])}, {vL16}, {srd(SRD_WS)}, {sKVl} offen offset:{f*1024}")
        a.label(lsk)

    def nb_addr(self):
        return [f"s_sub_u32 {sT0}, {sW}, 8", f"s_lshl_b32 {sT1}, {sT0}, 16", f"s_add_u32 {sNB0}, {sKVl}, {sT1}",
                f"s_add_u32 {sNB1}, {sNB0}, 65536", f"s_add_i32 {sT0}, {sT0}, {sT}",
                f"s_cmp_lt_i32 {sT0}, 0\n s_cselect_b32 {sNB0}, 0x7f000000, {sNB0}\n s_cselect_b32 {sNB1}, 0x7f000000, {sNB1}",
                f"s_bitcmp1_b32 {sL}, 0\n s_cselect_b32 {sNB0}, 0x7f000000, {sNB0}",
                f"s_cmp_lg_u32 {sT4}, 0\n s_cselect_b32 {sNB1}, 0x7f000000, {sNB1}"]

    def flag_wait_safe(self):
        a = self.a
        loop, done = self.lab("hw"), self.lab("hwd")
        m = 0x80808080
        x, y = f"v{vSTG}", f"v{vSTG+1}"
        a(f"s_mov_b32 {sTRY}, 0")
        a(f"v_lshlrev_b32 {vT0}, 2, {vLANE}")
        a.label(loop)
        a(f"buffer_load_dword {x}, {vT0}, {srd(SRD_DBG)}, 0 offen sc1")
        a("s_waitcnt vmcnt(0)")
        a(f"v_and_b32 {y}, {m:#x}, {x}")
        a(f"v_cmp_ne_u32 vcc, {m:#x}, {y}")
        a(f"s_cbranch_vccz {done}")
        a("s_sleep 2")
        a(f"s_add_u32 {sTRY}, {sTRY}, 1")
        a(f"s_cmp_lt_u32 {sTRY}, {SPIN_LIMIT}")
        a(f"s_cbranch_scc1 {loop}")
        a(f"s_mov_b32 {sERR}, 100")
        a.label(done)
        a(f"s_mul_i32 {sT0}, {sXCC}, 0x01010101")
        a(f"v_and_b32 {y}, 0x0f0f0f0f, {x}")
        a(f"v_cmp_eq_u32 vcc, {sT0}, {y}")
        a(f"s_lshl_b32 {sT1}, {sR}, 2")
        a(f"s_lshr_b64 {sMSK}, vcc, {sT1}")
        a(f"s_and_b32 {sT0}, s68, 15")
        a(f"s_cmp_eq_u32 {sT0}, 15")
        a(f"s_cselect_b32 {sFAST}, 1, 0")
        if os.environ.get("NOFAST"): a(f"s_mov_b32 {sFAST}, 0")
        a(f"s_cmp_eq_u32 {sERR}, 0")
        a(f"s_cselect_b64 {sCHK}, -1, 0")

    def rd_tile(self, i, k=True):
        sl = vSL[i % 3]; o = L_KV + (8 - i) * TP
        r = [f"ds_read_b128 {R(sl)}, {vKA} offset:{o}", f"ds_read_b128 {R(sl+4)}, {vKA} offset:{o+1024}"]
        for h in range(2):
            r += [f"ds_read_b128 {R(sl+8+8*h)}, {vVA[h]} offset:{o+PO[2]}", f"ds_read_b128 {R(sl+12+8*h)}, {vVA[h]} offset:{o+PO[3]}"]
        return r
    def Sbuf(self, i, h): return (vSB if i % 2 == 0 else vSA)[h]
    def S_mfma(self, i, h, cm):
        ksrc = vSL[i % 3] + 4 * h
        return f"{MFMA} {R(self.Sbuf(i,h),16)}, {R(ksrc)}, {R(vQ+4*h)}, {R(cm,16)}"
    def PV(self, i, h, f):
        S = self.Sbuf(i, h); sl = vSL[i % 3]
        c = "0" if (i == 0 and f == 0) else R(vO[h], 16)
        return f"{MFMA} {R(vO[h],16)}, {R(sl+8+8*h+4*f)}, {R(S+4*f)}, {c}"
    def expcvt(self, i, h):
        S = self.Sbuf(i, h)
        v = [f"v_exp_f32 v{S+r}, v{S+r}" for r in range(16)]
        v += [f"v_cvt_pk_bf16_f32 v{S+j}, v{S+2*j}, v{S+2*j+1}" for j in range(8)]
        return v

    def attention(self, n, cmask, extra_at=None, bg=None, post_g5=None, pre_g5=None):
        a = self.a
        a("s_nop 0")
        a(self.S_mfma(0, 0, cmask(0)))
        a(self.S_mfma(0, 1, cmask(0)))
        def take(): return bg.pop(0) if bg else []
        def slots(ps): return [(p, take()) for p in ps]
        for t in range(n + 1):
            ex = []
            if t == 0:
                ex += [(0, ["s_nop 7", "s_nop 3"])]
            if t >= 1:
                ex += [(1, [self.PV(t - 1, 1, 0)]), (7, [self.PV(t - 1, 1, 1)])]
                if t + 1 <= n:
                    pre = self.invalid_fix(t + 1) if self.fix_invalid else []
                    ex += [(14, pre + ["s_waitcnt lgkmcnt(0)", self.S_mfma(t + 1, 0, cmask(t + 1))])]
                ex += slots((3, 9, 16, 21))
            for x in interleave(self.expcvt(t, 0), ex): a(x)
            if t == 0:
                if pre_g5: pre_g5()
                if os.environ.get("P1ST") == "99,99": self.stamp(7, alt=True)
                a("s_waitcnt vmcnt(0)")
                if os.environ.get("P1ST") == "99,99": self.stamp(8, alt=True)
                lsk = self.lab("nbw")
                if n == 1:
                    a(f"s_cmp_lg_u32 {sW}, 3")
                    a(f"s_cbranch_scc1 {lsk}")
                fs = range(8) if n == 8 else range(4, 8)
                self.check_or_poll([vSTG + 4 * f for f in fs], lambda t_: self.nb_loads(t_), vT0, 10)
                a(f"s_mul_i32 {sT0}, {sW}, {2*TP}")
                a(f"v_add_u32 {vT0}, {sT0}, {vL16}")
                for f in fs:
                    a(f"ds_write_b128 {vT0}, {R(vSTG+4*f)} offset:{L_KV + CH(f)}")
                a("s_waitcnt lgkmcnt(0)")
                a.label(lsk)
                a("s_barrier")
                self.stamp(5)
                for x in self.rd_tile(1): a(x)
                if post_g5: post_g5()
            if extra_at and t in extra_at: extra_at[t]()
            ex = []
            if t == 0:
                ex += [(1, [self.PV(0, 0, 0)]), (6, [self.PV(0, 0, 1)])]
                pre = self.invalid_fix(1) if self.fix_invalid else []
                ex += [(11, pre + ["s_waitcnt lgkmcnt(0)", self.S_mfma(1, 0, cmask(1))])]
                if 2 <= n: ex += [(12, self.rd_tile(2))]
                ex += [(17, [self.S_mfma(1, 1, cmask(1))])]
                ex += slots((3, 8, 14, 21))
            else:
                if t + 2 <= n: ex += [(0, self.rd_tile(t + 2))]
                ex += [(2, [self.PV(t, 0, 0)]), (8, [self.PV(t, 0, 1)])]
                if t + 1 <= n: ex += [(14, [self.S_mfma(t + 1, 1, cmask(t + 1))])]
                ex += slots((4, 10, 16, 21))
            for x in interleave(self.expcvt(t, 1), ex): a(x)
        a("s_nop 1")
        a(self.PV(n, 1, 0)); a(self.PV(n, 1, 1))
        while bg:
            for x in bg.pop(0): a(x)

    def invalid_fix(self, i):
        t = self.tail
        lf, lb = self.lab("fix"), self.lab("fixb")
        t.label(lf)
        t("s_nop 7\ns_nop 7")
        t(f"v_mov_b32 {vT0}, {NEG_INF:#x}")
        for r in range(16): t(f"v_mov_b32 v{vCZ+r}, {vT0}")
        t("s_nop 1")
        t(f"s_branch {lb}")
        return [f"s_cmp_eq_u32 {sT}, {i-1}", f"s_cbranch_scc1 {lf}", f"{lb}:"]

    def softmax_fallback(self, n, tdiag, tlast, lentry, lback):
        t = self.tail
        t.label(lentry)
        if self.dbg: t("s_add_u32 s85, s85, 1")
        S = vSA[0]; K = vSL[1]; V = vSL[0]; M = "v25"; AD = "v26"
        def tile_setup(h):
            t(f"s_cmp_eq_u32 {sT4}, 0")
            t(f"s_cselect_b32 {sT2}, {tdiag}, 4")
            t(f"s_cmp_eq_u32 {sT4}, {n}")
            t(f"s_cselect_b32 {sT2}, {tlast}, {sT2}")
            t(f"s_cmp_gt_u32 {sT4}, {sT}")
            t(f"s_cselect_b32 {sT2}, 5, {sT2}")
            t(f"s_lshl_b32 {sT2}, {sT2}, 8")
            for x in self.mask_load(vMASK, sT2, vT0): t(x)
            t(f"s_mul_i32 {sT3}, {sT4}, {TP}")
            t(f"s_sub_u32 {sT3}, {8*TP}, {sT3}")
            t(f"v_add_u32 {AD}, {sT3}, {vKA}")
            t(f"v_add_u32 v28, {sT3}, {vVA[h]}")
        for h in range(2):
            la, lb = self.lab("fbA"), self.lab("fbB")
            t(f"v_mov_b32 {M}, {NEG_INF:#x}")
            t(f"s_mov_b32 {sT4}, 0")
            t.label(la)
            tile_setup(h)
            t(f"ds_read_b128 {R(K)}, {AD} offset:{L_KV + h*1024}")
            t("s_waitcnt lgkmcnt(0)")
            t(f"{MFMA} {R(S,16)}, {R(K)}, {R(vQ+4*h)}, {R(vMASK,16)}")
            t("s_nop 7\ns_nop 7")
            for r in range(0, 16, 2): t(f"v_max3_f32 {M}, {M}, v{S+r}, v{S+r+1}")
            t(f"s_add_u32 {sT4}, {sT4}, 1")
            t(f"s_cmp_le_u32 {sT4}, {n}")
            t(f"s_cbranch_scc1 {la}")
            t(f"v_mov_b32 v27, {M}")
            t("s_nop 1")
            t(f"v_permlane32_swap_b32 {M}, v27")
            t("s_nop 1")
            t(f"v_max_f32 {M}, {M}, v27")
            for r in range(16): t(f"v_mov_b32 v{vO[h]+r}, 0")
            t(f"s_mov_b32 {sT4}, 0")
            t.label(lb)
            tile_setup(h)
            t(f"ds_read_b128 {R(K)}, {AD} offset:{L_KV + h*1024}")
            t(f"ds_read_b128 {R(V+8+8*h)}, v28 offset:{L_KV + PO[2]}")
            t(f"ds_read_b128 {R(V+12+8*h)}, v28 offset:{L_KV + PO[3]}")
            t("s_waitcnt lgkmcnt(0)")
            t(f"{MFMA} {R(S,16)}, {R(K)}, {R(vQ+4*h)}, {R(vMASK,16)}")
            t("s_nop 7\ns_nop 7")
            for r in range(16): t(f"v_sub_f32 v{S+r}, v{S+r}, {M}")
            for r in range(16): t(f"v_exp_f32 v{S+r}, v{S+r}")
            t("s_nop 0")
            for j in range(8): t(f"v_cvt_pk_bf16_f32 v{S+j}, v{S+2*j}, v{S+2*j+1}")
            t("s_nop 1")
            t(f"{MFMA} {R(vO[h],16)}, {R(V+8+8*h)}, {R(S)}, {R(vO[h],16)}")
            t(f"{MFMA} {R(vO[h],16)}, {R(V+12+8*h)}, {R(S+4)}, {R(vO[h],16)}")
            t("s_nop 7\ns_nop 7")
            t(f"s_add_u32 {sT4}, {sT4}, 1")
            t(f"s_cmp_le_u32 {sT4}, {n}")
            t(f"s_cbranch_scc1 {lb}")
        t(f"s_branch {lback}")

    def attn_finish(self, n, tdiag, tlast):
        a = self.a
        self.stamp(6)
        lfb, lbk = self.lab("fb"), self.lab("fbk")
        a("s_nop 7\ns_nop 3")
        a(f"v_max_f32 v25, v{vO[0]+8}, v{vO[1]}")
        a(f"v_min_f32 v26, v{vO[0]+8}, v{vO[1]}")
        a(f"v_add_f32 v27, v{vO[0]+8}, v{vO[1]}")
        a(f"v_cmp_nle_f32 vcc, v25, {sBIG}")
        a(f"v_cmp_nge_f32 {sMSK}, v26, {sTINY}")
        a(f"s_or_b64 vcc, vcc, {sMSK}")
        a(f"v_cmp_u_f32 {sMSK}, v27, v27")
        a(f"s_or_b64 vcc, vcc, {sMSK}")
        a(f"s_cbranch_vccnz {lfb}")
        a.label(lbk)
        self.softmax_fallback(n, tdiag, tlast, lfb, lbk)
        a(f"v_rcp_f32 v20, v{vO[0]+8}")
        a(f"v_rcp_f32 v21, v{vO[1]}")
        a("s_nop 0")
        for r in range(8): a(f"v_mul_f32 v{vO[0]+r}, v20, v{vO[0]+r}")
        for r in range(8): a(f"v_mul_f32 v{vO[1]+8+r}, v21, v{vO[1]+8+r}")
        d = vSA[0]
        for j in range(4): a(f"v_cvt_pk_bf16_f32 v{d+j}, v{vO[0]+2*j}, v{vO[0]+2*j+1}")
        for j in range(4): a(f"v_cvt_pk_bf16_f32 v{d+4+j}, v{vO[1]+8+2*j}, v{vO[1]+8+2*j+1}")
        a(f"v_min_u32 v{d}, 0xfffffffe, v{d}")
        a(f"v_min_u32 v{d+4}, 0xfffffffe, v{d+4}")
        self.store_msg([(R(d), sOBl, 0), (R(d + 4), sOBl, 1024)], vL16)
        self.stamp(7)

    def wo_items(self, mat, dst, so, order=None):
        its = []
        for n in (order or range(32)):
            L = []
            if n % 4 == 0: L += [f"s_add_u32 {so}, s{40+n//8}, {mat*0x80000 + (n%8)*1024}"]
            L += [f"buffer_load_dwordx4 {AR(dst + n*4)}, {vL16}, {srd(SRD_WS)}, {so} offen offset:{(n%4)*1024}"]
            its.append(L)
        return its
    def wloc(self, ct, p):
        return ("v33", p * 1024) if ct == 2 else ("v32", ct * 32768 + p * 1024)
    def wloc_setup(self, a):
        a(f"s_lshl_b32 {sT0}, {sW}, 13")
        a(f"s_add_u32 {sT0}, {sT0}, {L_W}")
        a(f"v_add_u32 v32, {sT0}, {vL16}")
        a(f"v_add_u32 v33, 0x10000, v32")

    def attn_A(self, l0):
        a = self.a
        self.fix_invalid = True
        def first_mask():
            a(f"s_cmp_ge_u32 {sT}, 8")
            a(f"s_cselect_b32 {sT2}, 1, 5")
            a(f"s_lshl_b32 {sT2}, {sT2}, 8")
            for x in self.mask_load(vMASK, sT2, vT0): a(x)
        NS = 66
        bg = [[] for _ in range(NS)]
        def spread(items, s0, s1):
            for k, it in enumerate(items): bg[s0 + int(k * (s1 - s0) / len(items))] += it
        locs = [(ct, p) for ct in (1, 2, 0) for p in range(8)]
        if l0:
            sv = []
            for ct, p in locs:
                ad, of = self.wloc(ct, p)
                sv.append([f"ds_read_b128 {AR(128 + 4*(8 + TO.index(ct)*8 + p))}, {ad} offset:{of}"])
            pre = [x for it in sv for x in it]
            dm = []
            for k, (ct, p) in enumerate(locs):
                L = []
                if k == 0: L += [f"s_lshl_b32 s64, {sW}, 13", f"s_add_u32 s65, s64, {sWQN}"]
                if p % 4 == 0: L += [f"s_add_u32 m0, s64, {L_W + ct*32768 + p*1024}", f"s_add_u32 s82, s65, {ct*32768 + p*1024}"]
                L += [f"buffer_load_dwordx4 {vL16}, {srd(SRD_WS)}, s82 offen offset:{(p%4)*1024} lds"]
                dm.append(L)
            XP = os.environ.get("XP", "")
            if "d" in XP: dm = [x[:-1] for x in dm]
            spread(dm, 0, int(os.environ.get("DME", "60")))
            if "w" not in XP: spread(self.wo_items(0, 0, "s83")[NA0:], 0, int(os.environ.get("WOE", "56")))
            cl = []
            if int(os.environ.get("TLBW", "0")):
                fl = [f"v_and_b32 v35, 15, {vLANE}", "v_lshlrev_b32 v35, 7, v35", f"v_bfe_u32 v36, {vLANE}, 4, 1", "v_lshlrev_b32 v36, 21, v36",
                      f"v_mov_b32 v37, {sXBout}", f"v_mov_b32 v38, {sOBl}", f"v_cndmask_b32_e64 v37, v38, v37, {sLO32}",
                      "v_xor_b32 v37, v37, v36", "v_add_u32 v35, v35, v37",
                      f"buffer_load_dword {vWD}, v35, {srd(SRD_WS)}, 0 offen sc1"]
                bg[int(os.environ.get("FLS", "2"))] += fl
            cl.append([f"s_lshr_b32 s80, s2, 3", f"s_lshl_b32 s80, s80, 2", f"s_add_u32 s80, s80, {sW}", f"s_lshl_b32 s80, s80, 12",
                       f"s_add_u32 s80, s80, {WOF + 0x80000}", f"v_lshlrev_b32 v34, 7, {vC}",
                       f"buffer_load_dword {vWD}, v34, {srd(SRD_WS)}, s80 offen"])
            if "c" not in XP: spread(cl, int(os.environ.get("CLS", "40")), int(os.environ.get("CLS", "40")) + 12)
        else:
            rs = []
            for j, (ct, p) in enumerate(locs):
                ad, of = self.wloc(ct, p)
                rs.append([f"ds_write_b128 {ad}, {AR(128 + 4*(TO.index(ct)*8+p))} offset:{of}"])
            pre = ["s_barrier"] + [x for it in rs for x in it]
            spread(self.wo_items(0, 128, "s83"), 0, 56)
        def post():
            if l0: self.resid_loads(a)
        def pre_():
            self.wloc_setup(a)
            for x in pre: a(x)
        self.attention(8, lambda i: vMASK if i in (0, 8) else vCZ, {3: first_mask}, bg, post, pre_)

    def attn_B(self):
        self.fix_invalid = False
        def post():
            a, t = self.a, self.tail
            lp, lpb = self.lab("pb"), self.lab("pbb")
            a(f"s_cmp_eq_u32 {sL}, 1")
            a(f"s_cbranch_scc1 {lp}")
            a.label(lpb)
            t.label(lp)
            t(f"s_lshr_b32 s99, s99, 1")
            self.flag_set("s99", t, "v25", "v26")
            t(f"s_branch {lpb}")
        self.attention(1, lambda i: vMASK if i == 0 else vCZ, None, [], post)
        self.attn_finish(1, 2, 3)

    def w_swap(self, ct, layer=1):
        a, t = self.a, self.tail
        k = TO.index(ct)
        lsw, lswr = self.lab("sw"), self.lab("swr")
        a(f"s_cmp_eq_u32 {sL}, {layer}")
        a(f"s_cbranch_scc1 {lsw}")
        a.label(lswr)
        t.label(lsw)
        if k == 0: self.wloc_setup(t)
        for p in range(8):
            ad, of = self.wloc(ct, p)
            t(f"ds_read_b128 {AR(128 + 4*(k*8 + p))}, {ad} offset:{of}")
            t(f"ds_write_b128 {ad}, {AR(128 + 4*(8 + k*8 + p))} offset:{of}")
        t(f"s_branch {lswr}")

    def l1_wob(self, lo, hi, layer=1, mat=1):
        a, t = self.a, self.tail
        lb, lr = self.lab("wb"), self.lab("wbr")
        a(f"s_cmp_eq_u32 {sL}, {layer}")
        a(f"s_cbranch_scc1 {lb}")
        a.label(lr)
        t.label(lb)
        for it in self.wo_items(mat, 0, sT5)[lo:hi]:
            for x in it: t(x)
        t(f"s_branch {lr}")

    def o_loads(self, t):
        t(f"s_add_u32 {sT1}, {sOIN}, 4096")
        for i in range(8):
            t(f"buffer_load_dwordx4 {R(vXF+4*i)}, {vL16}, {srd(SRD_WS)}, {sOIN if i < 4 else sT1} offen offset:{(i%4)*1024} sc1")

    def outproj(self):
        a, t = self.a, self.tail
        ACC = 64
        self.stamp(8)
        def accinit(a):
            for i in range(8):
                a(f"v_lshlrev_b32 v{ACC+2*i}, 16, v{96+i}")
                a(f"v_and_b32 v{ACC+2*i+1}, 0xffff0000, v{96+i}")
        a(f"s_lshl_b32 {sT0}, {sW}, 11")
        a(f"v_add_u32 {vT0}, {sT0}, {vL16}")
        a(f"ds_read_b128 v[96:99], {vT0} offset:{L_XR}")
        a(f"ds_read_b128 v[100:103], {vT0} offset:{L_XR+1024}")
        a(f"s_mul_i32 {sT0}, {sW}, {2*TP}")
        a(f"v_add_u32 v104, {sT0}, {vL16}")
        for g in (1, 2, 3):
            a(f"s_add_u32 {sT0}, {sW}, {g}")
            a(f"s_and_b32 {sT0}, {sT0}, 3")
            a(f"s_mul_i32 {sT0}, {sT0}, {2*TP}")
            a(f"v_add_u32 v{104+g}, {sT0}, {vL16}")
        a("s_waitcnt lgkmcnt(0)")
        accinit(a)
        l0, l0r = self.lab("trp"), self.lab("trr")
        a(f"s_cmp_eq_u32 {sL}, 0")
        a(f"s_cbranch_scc1 {l0}")
        t.label(l0)
        t("s_waitcnt vmcnt(2)")
        t(f"v_lshlrev_b32 {vT0}, 6, {vC}")
        t(f"v_lshl_add_u32 {vT0}, {vH}, 3, {vT0}")
        t(f"s_lshl_b32 {sT0}, {sW}, 11")
        t(f"v_add_u32 {vT0}, {sT0}, {vT0}")
        for q in range(4): t(f"ds_read_b64 {R(96+2*q,2)}, {vT0} offset:{L_XR + q*16}")
        self.a = t
        self.set_tr_addr(True)
        self.colsum1(160, int(os.environ.get("CSH", "2")), lambda: self.o_loads(t))
        self.a = a
        accinit(t)
        t(f"s_branch {l0r}")
        self.o_loads(a)
        a.label(l0r)
        a(f"{STEP} {sXBin}, {sXBin}, 0x200000")
        a(f"s_cmp_eq_u32 {sL}, 1")
        a(f"s_cselect_b32 {sT2}, {sRHO}, 0")
        for k, so in enumerate(["s78", "s79", "s80", "s81", "s82", "s83", "s64", "s65"]):
            a(f"s_add_u32 {so}, {sT2}, {k}")
            a(f"s_and_b32 {so}, {so}, 7")
            a(f"s_lshl_b32 {so}, {so}, 12")
            a(f"s_add_u32 {so}, {so}, {sXBin}")
        a(f"v_and_b32 v108, 15, {vLANE}")
        a(f"v_lshlrev_b32 v108, 11, v108")
        a(f"v_add_u32 v108, 2032, v108")
        self.w_swap(1)
        self.w_swap(2)
        lc, lcr = self.lab("kc"), self.lab("kcr")
        a(f"s_cmp_eq_u32 {sL}, 0")
        a(f"s_cbranch_scc1 {lc}")
        a("s_waitcnt vmcnt(0)")
        a.label(lcr)
        t.label(lc)
        t("v_mov_b32 v20, -1\nv_mov_b32 v21, -1\nv_mov_b32 v22, -1\nv_mov_b32 v23, -1")
        t(f"s_add_u32 {sT0}, {sKVl}, {KV(2)-KV(0)}")
        for f in range(4): t(f"buffer_store_dwordx4 v[20:23], {vL16}, {srd(SRD_WS)}, {sT0} offen offset:{f*1024} sc1")
        t(f"s_sub_u32 {sT1}, 3, {sW}")
        t(f"s_lshl_b32 {sT1}, {sT1}, 16")
        t(f"s_add_u32 {sT0}, {sT0}, {sT1}")
        t(f"s_lshl_b32 {sT1}, {sW}, 10")
        t(f"s_add_u32 {sT0}, {sT0}, {sT1}")
        t(f"s_add_u32 {sT0}, {sT0}, 0x400000")
        t(f"buffer_store_dwordx4 v[20:23], {vL16}, {srd(SRD_WS)}, {sT0} offen sc1")
        t("s_waitcnt vmcnt(5)")
        t(f"s_branch {lcr}")
        self.check_or_poll([vXF + 4 * i for i in range(8)], lambda t: self.o_loads(t), vT0, 30)
        a("s_barrier")
        self.stamp(9)
        lB, lD, lZ = self.lab("opB"), self.lab("opD"), self.lab("opZ")
        a(f"s_bitcmp1_b32 {sL}, 0")
        a(f"s_cbranch_scc1 {lB}")
        a(f"s_cmp_eq_u32 {sL}, 0")
        a(f"s_cbranch_scc1 {lZ}")
        for var in (2, 0, 1):
            mat = 1 if var == 2 else 0
            if var == 1: a.label(lB)
            if var == 0: a.label(lZ)
            side = self.wo_items(1, 0, sT5)[:NOB] if var == 0 else []
            ns = len(side); k = [0]
            def mf(i):
                a(f"{MFMA} {R(ACC,16)}, {AR(mat*128+4*i)}, {R(vXF+4*i)}, {R(ACC,16)}")
            def sd(n):
                while k[0] < ns and k[0] < (n + 1) * ns / 32.0 and k[0] <= n:
                    for x in side[k[0]]: a(x)
                    k[0] += 1
            F2 = []
            if var == 0:
                rd2_, F2, W2_ = self.colsum2(1, 32)
                for x in rd2_: a(x)
            for i in range(4):
                mf(i)
                for c in (2 * i, 2 * i + 1):
                    a(f"ds_write_b128 v104, {R(vXF+4*c)} offset:{L_OT + CH(c)}")
            sd(3)
            a("s_waitcnt lgkmcnt(0)")
            a("s_barrier")
            rd = lambda i: a(f"ds_read_b128 {R(vXF+4*i)}, v{104 + i//8} offset:{L_OT + CH(i%8)}")
            for i in range(8, 12): rd(i)
            nr = 12
            for i in range(4, 32):
                if i >= 8: a(f"s_waitcnt lgkmcnt({min(15, nr - 1 - i)})")
                mf(i)
                for _ in range(2):
                    if nr < 32 and nr - i < 12: rd(nr); nr += 1
                sd(i)
                for x in F2[:2]: a(x)
                F2 = F2[2:]
            assert k[0] == ns and not F2
            if var == 0: a(W2_)
            if var != 1: a(f"s_branch {lD}")
        a.label(lD)
        self.stamp(10)
        a("s_nop 7\ns_nop 3")
        for j in range(8): a(f"v_cvt_pk_bf16_f32 v{96+j}, v{ACC+2*j}, v{ACC+2*j+1}")
        llast = self.lab("last")
        a(f"s_cmp_eq_u32 {sL}, 3")
        a(f"s_cbranch_scc1 {llast}")
        a(f"v_min_u32 v96, 0xfffffffe, v96")
        a(f"v_min_u32 v100, 0xfffffffe, v100")
        self.store_msg([("v[96:99]", sXBout, 0), ("v[100:103]", sXBout, 1024)], vL16)
        if WB[0] > NOB: self.l1_wob(NOB, WB[0], layer=0)
        for i in range(8):
            a(f"v_lshlrev_b32 v{ACC+2*i}, 16, v{96+i}")
            a(f"v_and_b32 v{ACC+2*i+1}, 0xffff0000, v{96+i}")
        def hook():
            a(f"buffer_load_dword v109, v108, {srd(SRD_WS)}, {sXBin} offen sc1")
            for k in range(UP): a(self.x_load1(k))
        self.xstats_store(ACC, sSTout, hook)
        a(f"s_lshl_b32 {sT0}, {sW}, 11")
        a(f"v_add_u32 {vT0}, {sT0}, {vL16}")
        a(f"ds_write_b128 {vT0}, v[96:99] offset:{L_XR}")
        a(f"ds_write_b128 {vT0}, v[100:103] offset:{L_XR+1024}")
        return llast

    def build(self):
        a = self.a
        self.prologue()
        a.label("L_layer")
        self.gemm()
        lb, ld = self.lab("aB"), self.lab("aD")
        a(f"s_bitcmp1_b32 {sL}, 0")
        a(f"s_cbranch_scc1 {lb}")
        l2, lf = self.lab("a2"), self.lab("af")
        a(f"s_cmp_lg_u32 {sL}, 0")
        a(f"s_cbranch_scc1 {l2}")
        self.attn_A(True)
        a(f"s_branch {lf}")
        a.label(l2)
        self.attn_A(False)
        a.label(lf)
        self.attn_finish(8, 0, 1)
        a(f"s_branch {ld}")
        a.label(lb)
        self.attn_B()
        a.label(ld)
        llast = self.outproj()
        a(f"s_add_u32 {sL}, {sL}, 1")
        a(f"{STEP} {sXBout}, {sXBout}, 0x200000")
        a(f"{STEP} {sOBl}, {sOBl}, 0x200000")
        a(f"{STEP} {sOIN}, {sOIN}, 0x200000")
        a(f"s_add_u32 {sKVl}, {sKVl}, 0x400000")
        a(f"s_add_u32 {sSTin}, {sSTin}, 0x40000")
        a(f"s_add_u32 {sSTout}, {sSTout}, 0x40000")
        a(f"s_xor_b32 {sCSF}, {sCSF}, {L_CSF ^ (L_CSF + 768)}")
        a("s_branch L_layer")
        a.label(llast)
        a(f"v_lshlrev_b32 {vT0}, 10, {vC}")
        a(f"v_lshl_add_u32 {vT0}, {vH}, 3, {vT0}")
        a(f"s_lshl_b32 {sT0}, {sRT}, 15")
        a(f"s_lshl_b32 {sT1}, {sCT}, 6")
        a(f"s_add_u32 {sT0}, {sT0}, {sT1}")
        for q in range(4):
            a(f"buffer_store_dwordx2 {R(96+2*q,2)}, {vT0}, {srd(SRD_OUT)}, {sT0} offen offset:{q*16} {os.environ.get('OUTF', '')}")
        if self.dbg:
            self.stamp(11)
            a("s_memtime s[96:97]\ns_waitcnt lgkmcnt(0)\nv_writelane_b32 v0, s96, 61")
            a("v_writelane_b32 v0, s84, 56\nv_writelane_b32 v0, s85, 57\nv_writelane_b32 v0, s86, 58\nv_writelane_b32 v0, s87, 59")
            a(f"s_lshl_b32 {sT0}, s2, 10")
            a(f"s_lshl_b32 {sT1}, {sW}, 8")
            a(f"s_add_u32 {sT0}, {sT0}, {sT1}")
            a(f"s_add_u32 {sT0}, {sT0}, {WS_DBG + 0x10000}")
            a(f"v_lshlrev_b32 v22, 2, {vLANE}")
            a(f"buffer_store_dword v0, v22, {srd(SRD_WS)}, {sT0} offen")
            a(f"v_mov_b32 v20, {sERR}")
            a(f"v_mov_b32 v21, {sFAST}")
            a(f"s_lshl_b32 {sT0}, s2, 5")
            a(f"s_lshl_b32 {sT1}, {sW}, 3")
            a(f"s_add_u32 {sT0}, {sT0}, {sT1}")
            a(f"s_add_u32 {sT0}, {sT0}, {WS_DBG}")
            a("v_mov_b32 v22, 0")
            a("s_mov_b64 exec, 1")
            a(f"buffer_store_dwordx2 v[20:21], v22, {srd(SRD_WS)}, {sT0} offen")
        a.label("L_end")
        a("s_endpgm")
        return a.text() + self.tail.text() + "L_codeend:\n"


def full(dbg=False):
    HEADER = open("interleave_layers__sliding_block__sliding_local_dilated__prompt.s.ref").read().split("; Override launch")[0]
    g = Gen(dbg)
    body = g.build()
    return (HEADER + f"; @launch grid=(256,1,1) block=(256,1,1) lds={LDS_BYTES}\n" +
            '.amdgcn_target "amdgcn-amd-amdhsa--gfx950"\n' + f""".text
.globl {NAME}
.p2align 8
.type {NAME},@function
{NAME}:
{body}
.section .rodata,"a"
.p2align 6
.amdhsa_kernel {NAME}
  .amdhsa_next_free_vgpr 512
  .amdhsa_next_free_sgpr 102
  .amdhsa_accum_offset 256
  .amdhsa_group_segment_fixed_size 0
  .amdhsa_kernarg_size 72
  .amdhsa_user_sgpr_count 2
  .amdhsa_user_sgpr_kernarg_segment_ptr 1
  .amdhsa_system_sgpr_workgroup_id_x 1
.end_amdhsa_kernel
""")

if __name__ == "__main__":
    dbg = "--dbg" in sys.argv
    out = [x for x in sys.argv[1:] if not x.startswith("--")]
    txt = full(dbg)
    open(out[0], "w").write(txt)
    from asmlib import build
    build(txt, out[0].replace(".s", ".co"), NAME)
    print("ok", len(txt.splitlines()), "lines")
```

```python
import sys, os
sys.path.insert(0, "work")
from asmlib import Asm

NAME = "interleave_layers__sliding_block__sliding_local_dilated__prompt_kernel"

XB = lambda l: (l - 1) * 0x200000
OB = lambda l: 0x600000 + l * 0x200000
KV = lambda l: 0xE00000 + l * 0x400000
ST = lambda l: 0x1E00000 + l * 0x40000
WOF = 0x1F00000
WQF = 0x2000000
WS_USED = 0x2300000
WS_DBG = 0x2400000
WS_SIZE = 0x2800000
TP = 4128
PO = [0, 1024, 2048, 3088]
L_KV = 0
L_OT = 0
L_FW = 49536
L_XR = 49664
L_CSF = 57856
L_RS = 59392
L_MT = 59904
L_SCR = 61440
def CH(i): return (i // 4) * TP + PO[i % 4]
L_W = 65536
LDS_BYTES = 160 * 1024
sW, sR, sM, sL, sFAST = "s3", "s4", "s5", "s6", "s7"
SRD_X, SRD_WQA, SRD_WQB, SRD_WOA, SRD_WOB, SRD_OUT, SRD_DBG, SRD_WS, SRD_WN = 8, 12, 16, 20, 24, 28, 32, 36, 40
def srd(i): return f"s[{i}:{i+3}]"
sCHK = "s[44:45]"
sT0, sT1, sT2, sT3, sT4, sT5 = "s46", "s47", "s48", "s49", "s50", "s51"
sTRY = "s52"
sXCC = "s53"
sT = "s54"
sRT = "s55"
sCT = "s56"
sXBin, sOBl, sKVl, sSTin, sXBout, sSTout = "s57", "s58", "s59", "s60", "s61", "s62"
sOIN = "s63"
sLO32 = "s[66:67]"
sMSK = "s[68:69]"
sCSF = "s70"
sERR = "s71"
sPT = 72
sH0 = "s[72:73]"
sH1 = "s[74:75]"
sNB0, sNB1 = "s76", "s77"
sL0EX = "s[84:85]"
sWNEX = "s[86:87]"
sWQN = "s90"
sWOB = "s91"
sBIG, sTINY = "s100", "s101"
sU0, sU1, sU2, sU3 = "s92", "s93", "s94", "s95"
vTID, vLANE, vC, vH, vL16 = "v0", "v1", "v2", "v3", "v4"
vTR = 5
vWD = "v11"
vRSTD, vRSTDC = "v12", "v13"
vT0, vT1 = "v14", "v15"
vCSA = "v15"
vQ = 16
vMASK = 232
vCZ = 48
vSA = (64, 80)
vO = (96, 112)
vSB = (128, 144)
vSL = (160, 184, 208)
vXF = 128
vSTG = 64
vKA = "v248"
vVA = ("v249", "v250")
ACC_K, ACC_V, ACC_Q = 64, 80, 96
WF = [24, 32, 40, 48]
W2 = [32, 36, 40, 44, 24, 28]
vRS = 112
vSTAT = 112
vOWNK = 64
vOWNV = 80
SPIN_LIMIT = 40000
NEG_INF = 0xFF800000
QSCALE = 0.25 * 1.4426950408889634
CODE_KB = 40
PP = int(os.environ.get('PP', '1'))
STEP = 's_xor_b32' if PP else 's_add_u32'
sRHO = 's88'
OSL = int(os.environ.get('OSL', '0'))
TO = (1, 2, 0)
UP = int(os.environ.get('UP', '8'))
NA0 = int(os.environ.get('NA0', '8'))
WB = [int(x) for x in os.environ.get('WB', '24,24').split(',')]
NWB = int(os.environ.get('NWB', '8'))
NOB = int(os.environ.get('NOB', '16'))
DIRECTNB = int(os.environ.get('DIRECTNB', '1'))

def R(b, n=4): return f"v[{b}:{b+n-1}]"
def AR(b, n=4): return f"a[{b}:{b+n-1}]"
def f32hex(x):
    import struct
    return "0x%08x" % struct.unpack("<I", struct.pack("<f", x))[0]
MFMA = "v_mfma_f32_32x32x16_bf16"

def interleave(valu, extras):
    out = []
    ex = sorted(extras, key=lambda e: e[0])
    k = 0
    for i, v in enumerate(valu + [None]):
        while k < len(ex) and ex[k][0] <= i:
            out += ex[k][1]; k += 1
        if v is not None: out.append(v)
    while k < len(ex):
        out += ex[k][1]; k += 1
    return out

class Gen:
    def __init__(self, dbg=False):
        self.a = Asm()
        self.tail = Asm()
        self.dbg = dbg
        self.nl = 0
    def lab(self, p):
        self.nl += 1
        return f"L_{p}_{self.nl}"

    def stamp(self, p, inloop=True, alt=False):
        if not self.dbg: return
        if inloop and p in (7, 8) and bool(os.environ.get("P1ST")) != alt: return
        if not inloop and p > 0 and bool(os.environ.get("PST")) != alt: return
        a = self.a
        a("s_memtime s[96:97]" if os.environ.get("CYC") else "s_memrealtime s[96:97]")
        if inloop:
            a(f"s_mul_i32 s98, {sL}, 12")
            a(f"s_add_u32 m0, s98, {p + 8}")
        else:
            a(f"s_mov_b32 m0, {p}")
        a("s_waitcnt lgkmcnt(0)")
        a("v_writelane_b32 v0, s96, m0")

    def maxtree(self, a, regs, dst):
        regs = list(regs)
        a(f"v_max3_u32 {dst}, v{regs[0]}, v{regs[1]}, v{regs[2]}")
        i = 3
        while i < len(regs):
            if i + 1 < len(regs):
                a(f"v_max3_u32 {dst}, {dst}, v{regs[i]}, v{regs[i+1]}"); i += 2
            else:
                a(f"v_max_u32 {dst}, {dst}, v{regs[i]}"); i += 1
    def check_or_poll(self, chk_regs, reload_fn, tmp, errcode):
        a, t = self.a, self.tail
        slow, back, loop = self.lab("slow"), self.lab("back"), self.lab("sloop")
        self.maxtree(a, chk_regs, tmp)
        a(f"v_cmp_eq_u32 vcc, -1, {tmp}")
        a(f"s_and_b64 vcc, vcc, {sCHK}")
        a(f"s_cbranch_vccnz {slow}")
        a.label(back)
        t.label(slow)
        t(f"s_mov_b32 {sTRY}, 0")
        t.label(loop)
        if self.dbg:
            c = "s84" if errcode <= 4 else "s85" if errcode == 5 else "s86" if errcode == 10 else "s87"
            t(f"s_add_u32 {c}, {c}, 1")
        reload_fn(t)
        t("s_waitcnt vmcnt(0)")
        self.maxtree(t, chk_regs, tmp)
        t(f"v_cmp_eq_u32 vcc, -1, {tmp}")
        t(f"s_cbranch_vccz {back}")
        t(f"s_add_u32 {sTRY}, {sTRY}, 1")
        t(f"s_cmp_lt_u32 {sTRY}, {SPIN_LIMIT}")
        t(f"s_cbranch_scc1 {loop}")
        t(f"s_mov_b64 {sCHK}, 0")
        t(f"s_mov_b32 {sERR}, {errcode}")
        t(f"s_branch {back}")

    def probe(self, voff, sbase, va, vb, errcode):
        a = self.a
        loop, done, tmo = self.lab("pl"), self.lab("pd"), self.lab("pt")
        ld = lambda v: a(f"buffer_load_dword {v}, {voff}, {srd(SRD_WS)}, {sbase} offen sc1")
        a(f"s_mov_b32 {sTRY}, 0")
        ld(va);
        a("s_sleep 1")
        ld(vb)
        a.label(loop)
        for v in (va, vb):
            a("s_waitcnt vmcnt(1)")
            a(f"v_cmp_eq_u32 vcc, -1, {v}")
            a(f"s_and_b64 vcc, vcc, {sCHK}")
            a(f"s_cbranch_vccz {done}")
            ld(v)
        a(f"s_add_u32 {sTRY}, {sTRY}, 1")
        a(f"s_cmp_lt_u32 {sTRY}, {SPIN_LIMIT}")
        a(f"s_cbranch_scc1 {loop}")
        a(f"s_mov_b64 {sCHK}, 0")
        a(f"s_mov_b32 {sERR}, {errcode}")
        a.label(done)

    def store_msg(self, data, voff, width="dwordx4"):
        a, t = self.a, self.tail
        l1, l2 = self.lab("stsl"), self.lab("stdn")
        a(f"s_cmp_eq_u32 {sFAST}, 0")
        a(f"s_cbranch_scc1 {l1}")
        for d, s, im in data:
            o = f" offset:{im}" if im else ""
            a(f"buffer_store_{width} {d}, {voff}, {srd(SRD_WS)}, {s} offen{o}")
        a.label(l2)
        t.label(l1)
        for d, s, im in data:
            o = f" offset:{im}" if im else ""
            t(f"buffer_store_{width} {d}, {voff}, {srd(SRD_WS)}, {s} offen{o} sc1")
        t(f"s_branch {l2}")

    def w_dma(self, cts):
        a = self.a
        a(f"s_mul_i32 {sT0}, {sW}, {16*3072}")
        a(f"s_lshl_b32 {sT1}, {sM}, 6")
        a(f"s_add_u32 {sT0}, {sT0}, {sT1}")
        a(f"s_lshl_b32 {sT1}, {sW}, 10")
        for i in range(8):
            for ct in cts:
                a(f"s_add_u32 m0, {sT1}, {L_W + ct*32768 + i*4096}")
                a(f"s_add_u32 {sT2}, {sT0}, {i*64*3072 + ct*1024}")
                a(f"buffer_load_dwordx4 {vWD}, {srd(SRD_WN)}, {sT2} offen lds")

    def colsum1(self, tb, hook_at, hook):
        a = self.a
        a(f"s_lshl_b32 {sT2}, {sW}, 13")
        a(f"v_mov_b32 v20, 0x3f803f80")
        jobs = [(ct, hf) for ct in range(3) for hf in range(2)]
        def rd(n):
            ct, hf = jobs[n]; b = tb + 16 * (n % 2)
            a(f"v_add_u32 {vT0}, {sT2}, v{vTR+2*ct}")
            a(f"v_add_u32 {vT1}, {sT2}, v{vTR+2*ct+1}")
            for s in range(4):
                a(f"ds_read_b64_tr_b16 {R(b+4*s,2)}, {vT0} offset:{(hf*4+s)*1024}")
                a(f"ds_read_b64_tr_b16 {R(b+4*s+2,2)}, {vT1} offset:{(hf*4+s)*1024}")
        for ct in range(3): a(f"v_mov_b32 v{21+ct}, 0")
        rd(0)
        for n in range(6):
            if n + 1 < 6: rd(n + 1)
            if n == hook_at: hook()
            a(f"s_waitcnt lgkmcnt({8 if n + 1 < 6 else 0})")
            ct = jobs[n][0]; b = tb + 16 * (n % 2)
            for j in range(16):
                a(f"v_dot2_f32_bf16 v{21+ct}, v{b+j}, v20, v{21+ct}")
        a(f"v_lshlrev_b32 {vT0}, 2, {vLANE}")
        a(f"s_lshl_b32 {sT0}, {sW}, 8")
        a(f"v_add_u32 {vT0}, {sT0}, {vT0}")
        a("s_nop 2")
        for ct in range(3):
            a(f"ds_write_b32 {vT0}, v{21+ct} offset:{L_SCR + ct*1024}")
        a("s_waitcnt lgkmcnt(0)")

    def colsum2(self, mat, t):
        ad = f"v{t+10}"
        rd = [f"s_min_u32 {sT0}, {sW}, 2", f"s_lshl_b32 {sT1}, {sT0}, 10", f"v_lshlrev_b32 {ad}, 2, {vC}", f"v_add_u32 {ad}, {sT1}, {ad}"]
        rd += [f"ds_read_b32 v{t+p}, {ad} offset:{L_SCR + p*128}" for p in range(8)]
        F = [f"v_add_f32 v{t}, v{t}, v{t+k}" for k in range(1, 8)]
        F += [x.strip() for x in f"""
        v_cvt_pk_bf16_f32 v{t+1}, v{t}, v{t}
        v_and_b32 v{t+2}, 0xffff0000, v{t+1}
        v_sub_f32 v{t+3}, v{t}, v{t+2}
        v_cvt_pk_bf16_f32 v{t+4}, v{t+3}, v{t+3}
        v_and_b32 v{t+5}, 0xffff0000, v{t+4}
        v_sub_f32 v{t+6}, v{t+3}, v{t+5}
        v_cvt_pk_bf16_f32 v{t+7}, v{t+6}, v{t+6}
        v_lshrrev_b32 v{t+8}, 16, v{t+2}
        v_or_b32 v{t+8}, v{t+8}, v{t+5}
        v_and_b32 v{t+9}, 0xffff, v{t+7}
        s_lshl_b32 {sT0}, {sT0}, 8
        v_lshlrev_b32 {ad}, 3, {vC}
        v_add_u32 {ad}, {sT0}, {ad}
        """.strip().split("\n")]
        W = f"ds_write_b64 {ad}, v[{t+8}:{t+9}] offset:{L_CSF + mat*768}"
        return rd, F, W

    def set_tr_addr(self, permuted):
        a = self.a
        a(f"v_bfe_u32 {vT0}, {vLANE}, 2, 2")
        a(f"v_lshlrev_b32 {vT0}, 6, {vT0}")
        a(f"v_bfe_u32 {vT1}, {vLANE}, 4, 1")
        a(f"v_lshl_add_u32 {vT0}, {vT1}, 5, {vT0}")
        a(f"v_and_b32 {vT1}, 3, {vLANE}")
        a(f"v_lshl_add_u32 {vT0}, {vT1}, 3, {vT0}")
        a(f"v_lshl_add_u32 {vT0}, {vH}, {8 if permuted else 9}, {vT0}")
        for ct in range(3):
            a(f"v_add_u32 v{vTR+2*ct}, {L_W + ct*32768}, {vT0}")
            a(f"v_add_u32 v{vTR+2*ct+1}, {L_W + ct*32768 + (512 if permuted else 256)}, {vT0}")

    def xstats_store(self, src16, soff_s, hook):
        a = self.a
        a(f"v_add_f32 v20, v{src16}, v{src16+1}")
        a(f"v_mul_f32 v21, v{src16}, v{src16}")
        a(f"v_fmac_f32 v21, v{src16+1}, v{src16+1}")
        for i in range(2, 16):
            a(f"v_add_f32 v20, v20, v{src16+i}")
            a(f"v_fmac_f32 v21, v{src16+i}, v{src16+i}")
        a(f"v_lshlrev_b32 {vT0}, 3, {vLANE}")
        a(f"s_lshl_b32 {sT0}, {sW}, 9")
        a(f"v_add_u32 {vT1}, {sT0}, {vT0}")
        a(f"ds_write_b64 {vT1}, v[20:21] offset:{L_SCR}")
        a("s_waitcnt lgkmcnt(0)")
        a("s_barrier")
        hook()
        lsk = self.lab("xs")
        a(f"s_cmp_lg_u32 {sW}, 1")
        a(f"s_cbranch_scc1 {lsk}")
        for k, w in enumerate((0, 2, 3)):
            a(f"ds_read_b64 v[{22+2*k}:{23+2*k}], {vT0} offset:{L_SCR + w*512}")
        a(f"v_lshlrev_b32 {vT0}, 4, {vC}")
        for k in range(3):
            a(f"s_waitcnt lgkmcnt({2-k})")
            a(f"v_add_f32 v20, v20, v{22+2*k}")
            a(f"v_add_f32 v21, v21, v{23+2*k}")
        a("v_mov_b32 v22, v20")
        a("v_mov_b32 v23, v21")
        a("s_nop 1")
        a("v_permlane32_swap_b32 v20, v22")
        a("v_permlane32_swap_b32 v21, v23")
        a("s_nop 1")
        a("v_add_f32 v20, v20, v22")
        a("v_add_f32 v21, v21, v23")
        a("v_min_u32 v20, 0xfffffffe, v20")
        a(f"s_mov_b64 exec, {sLO32}")
        self.store_msg([("v[20:21]", soff_s, 0)], vT0, width="dwordx2")
        a("s_mov_b64 exec, -1")
        a.label(lsk)

    def mask_tables(self, a):
        a(f"v_mov_b32 v117, {NEG_INF:#x}")
        a(f"v_lshlrev_b32 {vT0}, 2, {vLANE}")
        a(f"v_cmp_ge_u32 vcc, 32, {vLANE}")
        a(f"v_sub_u32 {vT1}, 32, {vLANE}")
        a(f"v_cndmask_b32_e64 v112, v117, 0, vcc")
        a(f"v_cndmask_b32_e64 v113, 0, v117, vcc")
        a(f"v_and_b32 v114, 0xfffffff1, {vT1}")
        a(f"v_cmp_eq_u32 vcc, 0, v114")
        a(f"v_add_u32 {vT1}, 32, {vT1}")
        a(f"v_and_b32 v115, 0xfffffff1, {vT1}")
        a(f"v_cndmask_b32_e64 v114, v117, 0, vcc")
        a(f"v_cmp_eq_u32 vcc, 0, v115")
        a(f"v_mov_b32 v116, 0")
        a("s_nop 0")
        a(f"v_cndmask_b32_e64 v115, v117, 0, vcc")
        for k in range(6):
            a(f"ds_write_b32 {vT0}, v{112+k} offset:{L_MT + k*256}")

    def mask_load(self, dst, tbl, tmp):
        L = [f"v_lshlrev_b32 {tmp}, 2, {vH}", f"v_sub_u32 {tmp}, {tmp}, {vC}", f"v_lshlrev_b32 {tmp}, 2, {tmp}"]
        if isinstance(tbl, int): L += [f"v_add_u32 {tmp}, {L_MT + 128 + tbl*256}, {tmp}"]
        else: L += [f"v_add_u32 {tmp}, {L_MT + 128}, {tmp}", f"v_add_u32 {tmp}, {tbl}, {tmp}"]
        for k in range(8):
            b0 = 8 * (k // 2) + 2 * (k % 2)
            L += [f"ds_read2_b32 {R(dst+2*k,2)}, {tmp} offset0:{b0} offset1:{b0+1}"]
        return L

    def flag_set(self, sval, a=None, va=vT0, vb="v20"):
        a = a or self.a
        lsk = self.lab("hs")
        a(f"s_cmp_lg_u32 {sW}, 0")
        a(f"s_cbranch_scc1 {lsk}")
        a(f"v_mov_b32 {va}, {sval}")
        a(f"v_mov_b32 {vb}, 0")
        a("s_mov_b64 exec, 1")
        a(f"buffer_atomic_or {va}, {vb}, {srd(SRD_DBG)}, {sU3} offen sc1")
        a("s_mov_b64 exec, -1")
        a.label(lsk)

    def prologue(self):
        a = self.a
        a(f"""
        s_cmp_ge_u32 s2, 256
        s_cbranch_scc1 L_end
        s_load_dwordx16 s[{sPT}:{sPT+15}], s[0:1], 0
        s_load_dwordx2 s[88:89], s[0:1], 64
        s_getpc_b64 s[40:41]
        L_pc:
        v_and_b32 {vLANE}, 63, v0
        v_lshrrev_b32 {vT0}, 6, v0
        v_and_b32 {vC}, 31, v0
        v_readfirstlane_b32 {sW}, {vT0}
        s_and_b32 s41, s41, 0xffff
        s_mov_b32 s42, L_codeend-L_pc
        s_mov_b32 s43, 0x20000
        v_lshlrev_b32 {vT1}, 7, {vLANE}
        s_lshr_b32 {sT1}, s2, 3
        s_lshl_b32 {sT0}, {sT1}, 2
        s_add_u32 {sT0}, {sT0}, {sW}
        s_lshl_b32 {sT0}, {sT0}, 9
        s_mov_b64 exec, 15
        buffer_load_dword v24, {vT1}, s[40:43], {sT0} offen
        s_mov_b64 exec, -1
        v_bfe_u32 {vH}, v0, 5, 1
        v_lshlrev_b32 {vL16}, 4, {vLANE}
        s_and_b32 {sT0}, s2, 7
        s_lshl_b32 {sR}, {sT0}, 1
        s_lshr_b32 {sT2}, {sT1}, 4
        s_add_u32 {sR}, {sR}, {sT2}
        s_and_b32 {sM}, {sT1}, 15
        s_getreg_b32 {sXCC}, hwreg(HW_REG_XCC_ID)
        s_and_b32 {sXCC}, {sXCC}, 15
        s_mov_b32 {sL}, 0
        s_mov_b32 {sFAST}, 0
        s_mov_b32 {sERR}, 0
        s_mov_b64 {sCHK}, 0
        s_mov_b32 s66, -1
        s_mov_b32 s67, 0
        s_lshl_b32 {sT}, {sR}, 2
        s_lshr_b32 {sT0}, {sM}, 2
        s_add_u32 {sRT}, {sT}, {sT0}
        s_add_u32 {sT}, {sT}, {sW}
        s_and_b32 {sCT}, {sM}, 3
        s_lshl_b32 {sCT}, {sCT}, 2
        s_add_u32 {sCT}, {sCT}, {sW}
        v_lshrrev_b32 {vT0}, 2, {vLANE}
        v_mul_u32_u24 {vWD}, 3072, {vT0}
        v_and_b32 {vT0}, 3, {vLANE}
        v_lshl_add_u32 {vWD}, {vT0}, 4, {vWD}
        s_and_b32 {sT0}, {sM}, 1
        s_lshl_b32 {sT0}, {sT0}, 2
        s_and_b32 {sT1}, {sR}, 1
        s_lshl_b32 {sT1}, {sT1}, 1
        s_add_u32 {sT0}, {sT0}, {sT1}
        s_lshr_b32 {sT1}, {sM}, 1
        s_add_u32 s64, {sT0}, {sT1}
        s_mul_i32 s65, {sW}, {16*3072}
        s_lshl_b32 {sT1}, {sM}, 6
        s_add_u32 s65, s65, {sT1}
        s_lshl_b32 s98, {sW}, 10
        v_lshrrev_b32 {vT0}, 3, {vLANE}
        v_lshlrev_b32 v16, 10, {vT0}
        v_and_b32 {vT0}, 7, {vLANE}
        v_lshrrev_b32 {vT1}, 4, {vLANE}
        v_xor_b32 {vT0}, {vT0}, {vT1}
        v_lshl_add_u32 v16, {vT0}, 4, v16
        v_xor_b32 v17, 64, v16
        s_lshl_b32 {sU0}, {sT}, 15
        s_lshl_b32 {sU2}, {sW}, 14
        s_waitcnt lgkmcnt(0)
        """)
        self.stamp(0, False)
        if self.dbg:
            a("s_memtime s[96:97]\ns_waitcnt lgkmcnt(0)\nv_writelane_b32 v0, s96, 60")
        def mk(d, p, size):
            a(f"s_mov_b32 s{d}, s{p}")
            a(f"s_and_b32 s{d+1}, s{p+1}, 0xffff")
            a(f"s_mov_b32 s{d+2}, {size}")
            a(f"s_mov_b32 s{d+3}, 0x20000")
        vq = ["code"]
        def wait(tag):
            n = len(vq) - 1 - max(i for i, t in enumerate(vq) if t == tag)
            a(f"s_waitcnt vmcnt({n})")
        def wd_items(p, cts=(1, 2), tag="w"):
            its = []
            for n, ct in enumerate(cts):
                def f(n=n, ct=ct):
                    if n == 0:
                        a(f"s_add_u32 {sT4}, s64, {p}")
                        a(f"s_and_b32 {sT4}, {sT4}, 7")
                        a(f"s_mul_i32 {sT4}, {sT4}, {64*3072}")
                        a(f"s_add_u32 {sT4}, {sT4}, s65")
                    a(f"s_add_u32 m0, s98, {L_W + ct*32768 + p*4096}")
                    a(f"s_add_u32 {sT2}, {sT4}, {ct*1024}")
                    a(f"buffer_load_dwordx4 {vWD}, {srd(SRD_WQA)}, {sT2} offen lds")
                    vq.append(f"{tag}{p}")
                its.append(f)
            return its
        def xd_items(p):
            its = []
            for d in range(4):
                def f(d=d):
                    if d == 0:
                        a(f"s_add_u32 {sT4}, s64, {p}")
                        a(f"s_and_b32 {sT4}, {sT4}, 7")
                        a(f"s_lshl_b32 {sT4}, {sT4}, 7")
                        a(f"s_add_u32 {sT4}, {sT4}, {sU0}")
                    a(f"s_add_u32 m0, {sU2}, {(p%4)*4096 + d*1024}")
                    a(f"s_add_u32 {sT2}, {sT4}, {d*8192}")
                    a(f"buffer_load_dwordx4 v{16 + d%2}, {srd(SRD_X)}, {sT2} offen lds")
                    vq.append(f"x{p}")
                its.append(f)
            return its
        def wd(p):
            for f in wd_items(p): f()
        def xd(p):
            for f in xd_items(p): f()
        LA = int(os.environ.get("LA", "2"))
        mk(SRD_WQA, sPT + 2, 512 * 3072)
        mk(SRD_X, sPT + 0, 2048 * 1024)
        def tch():
            a(f"s_lshr_b32 {sT0}, s2, 3")
            a(f"s_lshl_b32 {sT0}, {sT0}, 2")
            a(f"s_add_u32 {sT0}, {sT0}, {sW}")
            a(f"s_mul_i32 {sT0}, {sT0}, {12*1024}")
            a(f"v_lshlrev_b32 {vT0}, 10, {vLANE}")
            a("s_mov_b64 exec, 0xfff")
            a(f"buffer_load_dword v107, {vT0}, {srd(SRD_WQA)}, {sT0} offen offset:384")
            a("s_mov_b64 exec, -1")
            vq.append("tch")
        def prod():
            self.wqf_loads(); vq.extend(["wqf"] * 2)
            self.wof_loads2(); vq.append("wof")
            a(f"v_mov_b32 {vT0}, {sOBl}")
            a(f"s_add_u32 {sT0}, {sKVl}, 0x400000")
            a(f"v_writelane_b32 {vT0}, {sKVl}, 1")
            a(f"v_writelane_b32 {vT0}, {sT0}, 2")
            a(f"v_writelane_b32 {vT0}, s100, 3")
            a(f"v_writelane_b32 {vT0}, s101, 4")
            a("s_mov_b64 exec, 31")
            a(f"buffer_load_dword v107, {vT0}, {srd(SRD_WS)}, 0 offen sc1")
            a("s_mov_b64 exec, -1")
            vq.append("pt")
        lq = []
        def ld(tag, ins): a(ins); lq.append(tag)
        def lwait(tag):
            n = len(lq) - 1 - max(i for i, t in enumerate(lq) if t == tag)
            a(f"s_waitcnt lgkmcnt({min(n,15)})")
        def st_items():
            def f0():
                wait("wof")
                a(f"buffer_store_dwordx4 {AR(244)}, v104, {srd(SRD_WS)}, s101 offen sc1"); vq.append("wqs")
                ld("wof", f"ds_read_b64_tr_b16 v[108:109], v103")
                ld("wof", f"ds_read_b64_tr_b16 v[110:111], v103 offset:512")
            def f1():
                a(f"s_add_u32 {sT0}, s101, 65536")
                a(f"s_mov_b64 exec, {sLO32}")
                a(f"buffer_store_dwordx4 {AR(248)}, v104, {srd(SRD_WS)}, {sT0} offen sc1"); vq.append("wqs")
                a("s_mov_b64 exec, -1")
            def f2():
                lwait("wof")
                a(f"buffer_store_dwordx4 v[108:111], {vL16}, {srd(SRD_WS)}, s100 offen sc1"); vq.append("wofs")
            return [f0, f1, f2]
        def items(sch):
            its = []
            for k in range(0, len(sch), 2):
                c, n = sch[k], int(sch[k + 1])
                if c == "w": its += wd_items(n)
                if c == "q": its += wd_items(n, (0,), "q")
                if c == "x": its += xd_items(n)
                if c == "t": its.append(tch)
                if c == "P": its.append(prod)
                if c == "s": its += st_items()
                if c == "C":
                    def f():
                        for x in self.code_touch(True, "v106", "v107"): a(x)
                        vq.append("ct"); self.ct_done = True
                    its.append(f)
                if c == "f":
                    def f():
                        n = len(vq) - 1 - max(i for i, t_ in enumerate(vq) if t_ in ("clr", "wqs", "wofs"))
                        a(f"s_waitcnt vmcnt({n})"); self.st_waited = True
                    its.append(f)
                if c == "c": its += (clr_items()[:4] if n == 0 else clr_items()[4:])
            return its
        SCH = os.environ.get("SCH", "t0w0x0|,P0w1x1,w2x2w3c0,s0c1x3w4,x4w5x5,w6w7x6,x7q0q1q2q3,q4q5q6q7").split(",")
        A0, A1 = SCH[0].split("|")
        for f in items(A0): f()
        mk(SRD_WOA, sPT + 4, 512 * 1024)
        mk(SRD_WOB, sPT + 10, 512 * 1024)
        mk(SRD_WQB, sPT + 8, 512 * 3072)
        self.stamp(5, False)
        if os.environ.get("WSOFF"):
            a(f"s_add_u32 s88, s88, {int(os.environ['WSOFF']) << 20}")
            a("s_addc_u32 s89, s89, 0")
        mk(SRD_WS, 88, WS_SIZE if self.dbg else WS_USED)
        a(f"s_lshl_b32 {sT0}, {sT}, 15")
        a(f"s_lshl_b32 {sT1}, {sM}, 11")
        a(f"s_add_u32 {sOBl}, {sT0}, {sT1}")
        a(f"s_add_u32 {sOBl}, {sOBl}, {OB(0)}")
        a(f"s_lshl_b32 {sT0}, {sT}, 16")
        a(f"s_lshl_b32 {sT1}, {sM}, 12")
        a(f"s_add_u32 {sKVl}, {sT0}, {sT1}")
        a(f"s_add_u32 {sKVl}, {sKVl}, {KV(0)}")
        for f in items(A1): f()
        def clr_items():
            def f0():
                a("v_mov_b32 v20, -1\nv_mov_b32 v21, -1\nv_mov_b32 v22, -1\nv_mov_b32 v23, -1")
                a(f"s_sub_u32 {sT0}, 3, {sW}")
                a(f"s_lshl_b32 {sT0}, {sT0}, 16")
                a(f"s_add_u32 {sT0}, {sT0}, {sKVl}")
                a(f"s_add_u32 {sT0}, {sT0}, s98")
                a(f"s_add_u32 {sT0}, {sT0}, 0x400000")
                a(f"buffer_store_dwordx4 v[20:23], {vL16}, {srd(SRD_WS)}, {sT0} offen sc1"); vq.append("clr")
            its = [f0]
            for so, off in [(sOBl, 0), (sOBl, 1024)] + [(sKVl, f * 1024) for f in range(4)]:
                def f(so=so, off=off):
                    a(f"buffer_store_dwordx4 v[20:23], {vL16}, {srd(SRD_WS)}, {so} offen offset:{off} sc1"); vq.append("clr")
                its.append(f)
            return its
        mk(SRD_OUT, sPT + 12, 2048 * 1024)
        mk(SRD_DBG, sPT + 14, 256)
        a(f"s_lshl_b32 {sT0}, {sRT}, 10")
        a(f"s_and_b32 {sT1}, {sM}, 2")
        a(f"s_lshl_b32 {sT1}, {sT1}, 8")
        a(f"s_add_u32 {sSTout}, {sT0}, {sT1}")
        a(f"s_and_b32 {sT1}, {sM}, 1")
        a(f"s_lshl_b32 {sT1}, {sT1}, 3")
        a(f"s_add_u32 {sSTout}, {sSTout}, {sT1}")
        a(f"s_add_u32 {sSTout}, {sSTout}, {ST(1)}")
        a(f"s_lshl_b32 {sT0}, {sT}, 10")
        a(f"s_add_u32 {sSTin}, {sT0}, {ST(0)}")
        a(f"s_lshl_b32 {sT0}, {sT}, 15")
        a(f"s_add_u32 {sXBin}, {sT0}, {0x200000 if PP else (XB(1) - 0x200000) & 0xffffffff}")
        a(f"s_lshl_b32 {sT0}, {sRT}, 15")
        a(f"s_lshl_b32 {sT1}, {sCT}, 11")
        a(f"s_add_u32 {sXBout}, {sT0}, {sT1}")
        a(f"s_add_u32 {sXBout}, {sXBout}, {XB(1)}")
        a(f"s_lshl_b32 {sT1}, {sW}, 13")
        a(f"s_add_u32 {sOIN}, {sT0}, {sT1}")
        a(f"s_add_u32 {sOIN}, {sOIN}, {OB(0)}")
        a(f"s_mov_b32 {sCSF}, {L_CSF}")
        a(f"s_mov_b32 {sRHO}, s64")
        a("s_mov_b32 s89, 0")
        a(f"s_lshl_b32 {sWOB}, {sCT}, 15")
        a(f"s_add_u32 {sWOB}, {sWOB}, {WOF}")
        for g in range(4):
            a(f"s_add_u32 {sT3}, {sW}, {g}")
            a(f"s_and_b32 {sT3}, {sT3}, 3")
            a(f"s_lshl_b32 {sT3}, {sT3}, 13")
            a(f"s_add_u32 s{40+g}, {sT3}, {sWOB}")
        a(f"s_mul_i32 {sWQN}, {sM}, 98304")
        a(f"s_add_u32 {sWQN}, {sWQN}, {WQF}")
        a(f"s_lshl_b32 {sT0}, {sR}, 4")
        a(f"s_add_u32 {sT0}, {sT0}, {sM}")
        a(f"s_and_b32 {sT1}, {sT0}, 3")
        a(f"s_lshl_b32 {sT1}, {sT1}, 3")
        a(f"s_or_b32 {sT2}, {sXCC}, 0x80")
        a(f"s_lshl_b32 {sU1}, {sT2}, {sT1}")
        a(f"s_lshl_b32 s99, 0x40, {sT1}")
        a(f"s_and_b32 {sU3}, {sT0}, 0xfc")
        a(f"""
        v_bfe_u32 {vT0}, {vC}, 1, 3
        v_xor_b32 {vT0}, {vT0}, {vH}
        v_lshlrev_b32 {vT0}, 4, {vT0}
        v_lshl_add_u32 {vT0}, {vC}, 7, {vT0}
        v_add_u32 v56, {sU2}, {vT0}
        v_xor_b32 v57, 32, v56
        v_xor_b32 v58, 64, v56
        v_xor_b32 v59, 0x60, v56
        """)
        a(f"v_cmp_gt_u32 {sH0}, 16, {vC}")
        a(f"v_cmp_le_u32 {sH1}, 16, {vC}")
        a(f"s_mov_b64 {sL0EX}, 0")
        a(f"s_mov_b64 {sWNEX}, 0")
        self.set_tr_addr(False)
        for j in range(6): a(f"v_add_u32 v{96+j}, s98, v{vTR+j}")
        q = vSTAT
        a("v_mov_b32 v60, 0x3f803f80")
        for i in range(4): a(f"v_mov_b32 v{q+i}, 0")
        for i in range(3): a(f"v_mov_b32 v{61+i}, 0")
        a(f"v_lshlrev_b32 {vCSA}, 3, {vC}")
        a(f"v_add_u32 {vCSA}, {sCSF}, {vCSA}")
        self.stamp(4, False)
        for f in items(SCH[1]): f()
        self.stamp(1, False)
        def wrd(s_):
            b = WF[s_ % 4]
            for j in range(4): ld(f"k{s_}", f"ds_read_b64_tr_b16 {R(b+2*j,2)}, v{vTR+2+j} offset:{s_*1024}")
        CT_ = 116
        def ctb(p): return 240 if p == 7 else CT_
        def csrd(p):
            for j in range(2, 6): ld(f"c{p}", f"ds_read_b64_tr_b16 {R(ctb(p)+2*j,2)}, v{96+j} offset:{p*4096}")
        def csdot(p):
            lwait(f"c{p}")
            for j in range(4):
                for ct in (1, 2): a(f"v_dot2_f32_bf16 v{61+ct}, v{ctb(p)+4*ct+j}, v60, v{61+ct}")
        def qrd(h, b):
            wait(f"q{4*h+3}")
            for k in range(4):
                for j in range(2): ld(f"cq{h}", f"ds_read_b64_tr_b16 {R(b+4*k+2*j,2)}, v{96+j} offset:{(4*h+k)*4096}")
        def qdot(h, b):
            lwait(f"cq{h}")
            for j in range(16): a(f"v_dot2_f32_bf16 v61, v{b+j}, v60, v61")
        def mf(s_, fill=None):
            b = WF[s_ % 4]; c0 = "0" if s_ == 0 else None
            lwait(f"k{s_}")
            a(f"{MFMA} {R(ACC_K,16)}, {R(b)}, {R(vXF+4*s_)}, {c0 or R(ACC_K,16)}")
            if fill: fill()
            a(f"{MFMA} {R(ACC_V,16)}, {R(vXF+4*s_)}, {R(b+4)}, {c0 or R(ACC_V,16)}")
            if fill: fill()
        SC0 = 0
        fdone = False
        FLP = int(os.environ.get("FLP", "6"))
        def early_flags():
            wait("fl")
            self.flag_check("v20", "v21", 0x80, True)
            a(f"s_and_b32 {sT4}, {sR}, 1")
            a(f"s_lshl_b32 {sT4}, {sT4}, 2")
            a(f"s_add_u32 {sT4}, {sT4}, {sW}")
            a(f"s_mul_i32 {sT4}, {sT4}, 12288")
            a(f"s_add_u32 {sT4}, {sT4}, {sWQN}")
            a(f"s_add_u32 {sT5}, {sT4}, 6144")
            a(f"v_min_u32 v22, 47, {vLANE}")
            a(f"v_lshlrev_b32 v22, 7, v22")
            a(f"buffer_load_dword {vWD}, v22, {srd(SRD_WS)}, {sT4} offen"); vq.append("t2")
            a(f"buffer_load_dword {vWD}, v22, {srd(SRD_WS)}, {sT5} offen"); vq.append("t2")
        for p in range(8):
            wait(f"x{p}")
            for k in range(4):
                ld(f"x{p}", f"ds_read_b128 {R(vXF + 4*(4*p+k))}, v{56+k} offset:{(p%4)*4096}")
            if p < 7: csrd(p)
            if p == 7:
                for s_ in range(28, 30): wrd(s_)
            a("s_barrier")
            if p == 7: self.stamp(6, False)
            if p < 7: self.stamp(p + 1, False, alt=True)
            if p < 7:
                for s_ in range(4 * p, 4 * p + 2): wrd(s_)
            else:
                a(f"v_lshlrev_b32 v102, 2, {vC}")
                a(f"v_add_u32 v102, s98, v102")
                for k in range(8): ld("sc", f"ds_read_b32 v{CT_+k}, v102 offset:{SC0 + k*128}")
            sch = SCH[p + 2] if p + 2 < len(SCH) else ""
            for k in range(0, len(sch), 2):
                if sch[k] == "x": assert int(sch[k + 1]) < p + 4
                if sch[k:k+2] == "q7": assert "wofs" in vq
            its = items(sch)
            last = lambda tags: max(i for i, t_ in enumerate(vq) if t_ in tags)
            if vq.count("clr") == 7 and "wofs" in vq and not fdone and (last([f"x{p}"]) > last(["clr", "wqs", "wofs"]) or getattr(self, "st_waited", False)):
                its = [lambda: self.flag_set(sU1)] + its
                fdone = True
            if p == 6: assert last(["x6"]) > last(["w7"])
            if p == 7: assert fdone
            assert last([f"x{p}"]) > last([f"w{p}"])
            nit = len(its); cnt = [0]
            def tick(w=1.0, total=13.0):
                cnt[0] += w
                while its and (nit - len(its)) < cnt[0] * nit / total: its.pop(0)()
            tick()
            def sdot(p):
                for j in range(16):
                    r = vXF + 16 * p + j
                    a(f"v_dot2_f32_bf16 v{q+2*(j%2)}, v{r}, v60, v{q+2*(j%2)}")
                    a(f"v_dot2_f32_bf16 v{q+1+2*(j%2)}, v{r}, v{r}, v{q+1+2*(j%2)}")
                    if j % 4 == 3: tick()
            if p > 0: sdot(p - 1)
            else: tick(4)
            if p < 7:
                csdot(p)
                for s_ in range(4 * p + 2, 4 * p + 4): wrd(s_)
                if p == 6: csrd(7)
                for s_ in range(4 * p, 4 * p + 3): mf(s_, tick)
                if p == 5: qrd(0, 240)
                if p == 6: csdot(7); qrd(1, 240)
                mf(4 * p + 3, tick)
                assert not its
                if p == 5:
                    qdot(0, 240)
                    a(f"v_mov_b32 v102, 0")
                    ld("fw", f"ds_write_b32 v102, v102 offset:{L_FW}")
                    a("s_waitcnt lgkmcnt(0)")
                if p == FLP:
                    assert fdone
                    self.flag_load("v20"); vq.append("fl")
                if p == 6:
                    qdot(1, 240)
                    a(f"v_lshlrev_b32 {vT0}, 2, {vLANE}")
                    a(f"s_lshl_b32 {sT0}, {sW}, 8")
                    a(f"v_add_u32 {vT0}, {sT0}, {vT0}")
                    a("s_nop 2")
                    for ct in range(3): ld("cw", f"ds_write_b32 {vT0}, v{61+ct} offset:{SC0 + ct*1024}")
                    a("s_waitcnt lgkmcnt(0)")
                    if FLP == 5: early_flags()
            else:
                for s_ in range(30, 32): wrd(s_)
                lwait("x7")
                sdot(7)
                if FLP == 6: early_flags()
                t = CT_
                F = [f"v_add_f32 v{t}, v{t}, v{t+k}" for k in range(1, 8)]
                F += [x.strip() for x in f"""
                v_cvt_pk_bf16_f32 v{t+1}, v{t}, v{t}
                v_and_b32 v{t+2}, 0xffff0000, v{t+1}
                v_sub_f32 v{t+3}, v{t}, v{t+2}
                v_cvt_pk_bf16_f32 v{t+4}, v{t+3}, v{t+3}
                v_and_b32 v{t+5}, 0xffff0000, v{t+4}
                v_sub_f32 v{t+6}, v{t+3}, v{t+5}
                v_cvt_pk_bf16_f32 v{t+7}, v{t+6}, v{t+6}
                v_lshrrev_b32 v{t+8}, 16, v{t+2}
                v_or_b32 v{t+8}, v{t+8}, v{t+5}
                v_and_b32 v{t+9}, 0xffff, v{t+7}
                s_lshl_b32 {sT1}, {sW}, 8
                v_add_u32 v102, {sT1}, {vCSA}
                ds_write_b64 v102, v[{t+8}:{t+9}]
                """.strip().split("\n")]
                F += self.stats_ops()
                F += [f"ds_write_b32 {vT0}, {vRSTD} offset:{L_RS}"]
                F += [f"ds_read_b128 {R(vRS+4*qq)}, v21 offset:{L_RS + qq*32}" for qq in range(4)]
                lwait("sc")
                fi = [0]
                def fill():
                    for x in F[fi[0]:fi[0] + 8]:
                        if x.startswith("ds_"): ld("f", x)
                        else: a(x)
                    fi[0] += 8
                for s_ in range(28, 32): mf(s_, fill)
                assert fi[0] >= len(F)
                for i in (1, 2, 3):
                    for x in self.rd2(i): a(x)
                a("s_waitcnt lgkmcnt(0)")
                a("s_barrier")
                a(f"ds_read_b64 {R(WF[0],2)}, {vCSA} offset:256")
                a(f"ds_read_b64 {R(WF[0]+4,2)}, {vCSA} offset:512")
                for x in self.rd2(0): a(x)
                a("s_waitcnt lgkmcnt(0)")
        self.stamp(2, False); self.stamp(3, False); self.stamp(0); self.stamp(1)
        a("s_branch L_join")

    def l0_block(self, t):
        self.mask_tables(t)
        self.pads_init(t)
        t(f"s_mov_b32 {sBIG}, 0x5d800000")
        t(f"s_mov_b32 {sTINY}, 0x21800000")
        t("s_waitcnt lgkmcnt(0)")

    def pads_init(self, a):
        a(f"""
        v_lshrrev_b32 {vT0}, 1, {vLANE}
        v_mul_u32_u24 {vT0}, {TP}, {vT0}
        v_and_b32 {vT1}, 1, {vLANE}
        v_mul_u32_u24 {vT1}, 1040, {vT1}
        v_add_u32 {vT0}, {vT0}, {vT1}
        v_mov_b32 v120, 0x3f803f80
        v_mov_b32 v121, 0x3f803f80
        v_mov_b32 v122, 0x3f803f80
        v_mov_b32 v123, 0x3f803f80
        s_mov_b64 exec, 0xffffff
        ds_write_b128 {vT0}, v[120:123] offset:{L_KV + 3072}
        s_mov_b64 exec, -1
        """)

    def wof_loads2(self):
        a = self.a
        a(f"s_lshl_b32 {sT0}, s2, 2")
        a(f"s_add_u32 {sT0}, {sT0}, {sW}")
        a(f"s_bfe_u32 {sT1}, {sT0}, 0x50004")
        a(f"s_and_b32 {sT2}, {sT0}, 15")
        a(f"s_lshl_b32 {sT3}, {sT1}, 14")
        a(f"s_lshl_b32 {sT4}, {sT2}, 6")
        a(f"s_add_u32 {sT3}, {sT3}, {sT4}")
        a(f"v_lshrrev_b32 v103, 2, {vLANE}")
        a(f"v_lshlrev_b32 v103, 10, v103")
        a(f"v_and_b32 v106, 3, {vLANE}")
        a(f"v_lshl_add_u32 v103, v106, 4, v103")
        a(f"s_add_u32 m0, s98, {L_W + 7*4096}")
        lB, lD = self.lab("wob"), self.lab("wod")
        a(f"s_cmp_ge_u32 {sT0}, 512")
        a(f"s_cbranch_scc1 {lB}")
        a(f"buffer_load_dwordx4 v103, {srd(SRD_WOA)}, {sT3} offen lds")
        a(f"s_branch {lD}")
        a.label(lB)
        a(f"buffer_load_dwordx4 v103, {srd(SRD_WOB)}, {sT3} offen lds")
        a.label(lD)
        a(f"s_and_b32 s100, {sT0}, 512")
        a(f"s_lshl_b32 {sT2}, {sT2}, 5")
        a(f"s_add_u32 s100, s100, {sT2}")
        a(f"s_add_u32 s100, s100, {sT1}")
        a(f"s_lshl_b32 s100, s100, 10")
        a(f"s_add_u32 s100, s100, {WOF}")
        a(f"v_bfe_u32 v103, {vLANE}, 2, 2")
        a(f"v_lshlrev_b32 v103, 6, v103")
        a(f"v_lshl_add_u32 v103, v106, 3, v103")
        a(f"v_bfe_u32 v106, {vLANE}, 4, 1")
        a(f"v_lshl_add_u32 v103, v106, 5, v103")
        a(f"v_lshl_add_u32 v103, {vH}, 8, v103")
        a(f"s_add_u32 {sT0}, s98, {L_W + 7*4096}")
        a(f"v_add_u32 v103, {sT0}, v103")

    def wqf_loads(self):
        a = self.a
        a(f"s_lshl_b32 {sT0}, s2, 2")
        a(f"s_add_u32 {sT0}, {sT0}, {sW}")
        a(f"s_lshr_b32 {sT1}, {sT0}, 3")
        a(f"s_and_b32 {sT5}, {sT0}, 7")
        a(f"s_mul_i32 {sT3}, {sT1}, {4*3072}")
        a(f"s_lshl_b32 {sT0}, {sT5}, 7")
        a(f"s_add_u32 {sT3}, {sT3}, {sT0}")
        a(f"v_bfe_u32 {vT0}, {vLANE}, 3, 2")
        a(f"v_mul_u32_u24 v105, 3072, {vT0}")
        a(f"v_and_b32 v106, 7, {vLANE}")
        a(f"v_lshl_add_u32 v105, v106, 4, v105")
        a(f"v_lshl_add_u32 v105, {vH}, 10, v105")
        a(f"buffer_load_dwordx4 {AR(244)}, v105, {srd(SRD_WQB)}, {sT3} offen")
        a(f"s_mov_b64 exec, {sLO32}")
        a(f"buffer_load_dwordx4 {AR(248)}, v105, {srd(SRD_WQB)}, {sT3} offen offset:2048")
        a("s_mov_b64 exec, -1")
        a(f"s_mul_i32 {sT3}, {sT5}, {2*98304}")
        a(f"s_lshl_b32 {sT5}, {sT1}, 8")
        a(f"s_add_u32 s101, {sT3}, {sT5}")
        a(f"s_add_u32 s101, s101, {WQF}")
        a(f"v_lshlrev_b32 v104, 6, {vT0}")
        a(f"v_and_b32 v106, 3, {vLANE}")
        a(f"v_lshl_add_u32 v104, v106, 4, v104")
        a(f"v_bfe_u32 v106, {vLANE}, 2, 1")
        a(f"v_mul_u32_u24 v106, 98304, v106")
        a(f"v_add_u32 v104, v104, v106")
        a(f"v_lshl_add_u32 v104, {vH}, 15, v104")

    def resid_loads(self, t):
        t(f"v_lshrrev_b32 {vT0}, 2, {vLANE}")
        t(f"v_lshlrev_b32 {vT0}, 10, {vT0}")
        t(f"v_and_b32 {vT1}, 3, {vLANE}")
        t(f"v_lshl_add_u32 {vT0}, {vT1}, 4, {vT0}")
        t(f"s_lshl_b32 {sT0}, {sRT}, 15")
        t(f"s_lshl_b32 {sT1}, {sCT}, 6")
        t(f"s_add_u32 {sT0}, {sT0}, {sT1}")
        t(f"s_lshl_b32 {sT1}, {sW}, 11")
        for d in range(2):
            t(f"s_add_u32 m0, {sT1}, {L_XR + d*1024}")
            t(f"buffer_load_dwordx4 {vT0}, {srd(SRD_X)}, {sT0} offen lds")
            if d == 0: t(f"s_add_u32 {sT0}, {sT0}, 16384")

    def flag_load(self, dst):
        a = self.a
        a(f"v_lshlrev_b32 {vT0}, 2, {vLANE}")
        a(f"buffer_load_dword {dst}, {vT0}, {srd(SRD_DBG)}, 0 offen sc1")

    def flag_check(self, x, y, bit, setfast, layer=0):
        a, t = self.a, self.tail
        skip, slow, loop, back = self.lab("fsk"), self.lab("fsl"), self.lab("flp"), self.lab("fbk")
        l2, nw = self.lab("fl2"), self.lab("fnw")
        m = bit * 0x01010101
        a(f"s_cmp_lg_u32 {sL}, {layer}")
        a(f"s_cbranch_scc1 {skip}")
        a(f"v_and_b32 {y}, {m:#x}, {x}")
        a(f"v_cmp_ne_u32 vcc, {m:#x}, {y}")
        a(f"s_cbranch_vccnz {slow}")
        a.label(back)
        a(f"s_cmp_lg_u32 {sW}, 0")
        a(f"s_cbranch_scc1 {nw}")
        a(f"v_mov_b32 {y}, {layer+1}")
        a(f"v_mov_b32 {vT0}, 0")
        a(f"ds_write_b32 {vT0}, {y} offset:{L_FW}")
        a("s_waitcnt lgkmcnt(0)")
        a.label(nw)
        t.label(slow)
        t(f"s_mov_b32 {sTRY}, 0")
        t(f"s_cmp_eq_u32 {sW}, 0")
        t(f"s_cbranch_scc1 {loop}")
        t(f"v_mov_b32 {vT0}, 0")
        t.label(l2)
        t("s_sleep 2")
        t(f"ds_read_b32 {y}, {vT0} offset:{L_FW}")
        t("s_waitcnt lgkmcnt(0)")
        t(f"v_cmp_eq_u32 vcc, {layer+1}, {y}")
        t(f"s_cbranch_vccnz {loop}x")
        t(f"s_add_u32 {sTRY}, {sTRY}, 1")
        t(f"s_cmp_lt_u32 {sTRY}, {SPIN_LIMIT*8}")
        t(f"s_cbranch_scc1 {l2}")
        t.label(loop)
        t("s_sleep %s" % os.environ.get("POLLS", "12"))
        t.label(loop + "x")
        t(f"v_lshlrev_b32 {vT0}, 2, {vLANE}")
        t(f"buffer_load_dword {x}, {vT0}, {srd(SRD_DBG)}, 0 offen sc1")
        t("s_waitcnt vmcnt(0)")
        t(f"v_and_b32 {y}, {m:#x}, {x}")
        t(f"v_cmp_ne_u32 vcc, {m:#x}, {y}")
        t(f"s_cbranch_vccz {back}")
        t(f"s_add_u32 {sTRY}, {sTRY}, 1")
        t(f"s_cmp_lt_u32 {sTRY}, {SPIN_LIMIT}")
        t(f"s_cbranch_scc1 {loop}")
        t(f"s_mov_b32 {sERR}, 100")
        t(f"s_branch {back}")
        if setfast:
            a(f"s_mul_i32 {sT0}, {sXCC}, 0x01010101")
            a(f"v_and_b32 {y}, 0x0f0f0f0f, {x}")
            a(f"v_cmp_eq_u32 vcc, {sT0}, {y}")
            a(f"s_lshl_b32 {sT1}, {sR}, 2")
            a(f"s_lshr_b64 {sMSK}, vcc, {sT1}")
            a(f"s_and_b32 {sT0}, s68, 15")
            a(f"s_cmp_eq_u32 {sT0}, 15")
            a(f"s_cselect_b32 {sFAST}, 1, 0")
            if os.environ.get("NOFAST"): a(f"s_mov_b32 {sFAST}, 0")
            a(f"s_cmp_eq_u32 {sERR}, 0")
            a(f"s_cselect_b64 {sCHK}, -1, 0")
        a.label(skip)

    def flag_wait(self, bit, setfast):
        a = self.a
        loop, done = self.lab("hw"), self.lab("hwd")
        m = bit * 0x01010101
        a(f"s_mov_b32 {sTRY}, 0")
        a(f"v_lshlrev_b32 {vT0}, 2, {vLANE}")
        a.label(loop)
        a(f"buffer_load_dword v20, {vT0}, {srd(SRD_DBG)}, 0 offen sc1")
        a("s_waitcnt vmcnt(0)")
        a(f"v_and_b32 v21, {m:#x}, v20")
        a(f"v_cmp_ne_u32 vcc, {m:#x}, v21")
        a(f"s_cbranch_vccz {done}")
        a("s_sleep 2")
        a(f"s_add_u32 {sTRY}, {sTRY}, 1")
        a(f"s_cmp_lt_u32 {sTRY}, {SPIN_LIMIT}")
        a(f"s_cbranch_scc1 {loop}")
        a(f"s_mov_b32 {sERR}, 100")
        a.label(done)
        if setfast:
            a(f"s_mul_i32 {sT0}, {sXCC}, 0x01010101")
            a(f"v_and_b32 v21, 0x0f0f0f0f, v20")
            a(f"v_cmp_eq_u32 vcc, {sT0}, v21")
            a(f"s_lshl_b32 {sT1}, {sR}, 2")
            a(f"s_lshr_b64 {sMSK}, vcc, {sT1}")
            a(f"s_and_b32 {sT0}, s68, 15")
            a(f"s_cmp_eq_u32 {sT0}, 15")
            a(f"s_cselect_b32 {sFAST}, 1, 0")
            if os.environ.get("NOFAST"): a(f"s_mov_b32 {sFAST}, 0")
            a(f"s_cmp_eq_u32 {sERR}, 0")
            a(f"s_cselect_b64 {sCHK}, -1, 0")

    def x_loads(self, t, g):
        t(f"s_add_u32 {sT0}, {sXBin}, {g*8192}")
        t(f"s_add_u32 {sT1}, {sXBin}, {g*8192+4096}")
        for i in range(8):
            s = 8 * g + i
            t(f"buffer_load_dwordx4 {R(vXF+4*s)}, {vL16}, {srd(SRD_WS)}, {sT0 if i < 4 else sT1} offen offset:{(i%4)*1024} sc1")

    def st_load(self):
        return f"buffer_load_dwordx4 {R(vSTAT)}, {vL16}, {srd(SRD_WS)}, {sSTin} offen sc1"
    def st_loads(self, t):
        t(self.st_load())

    def layer_start(self):
        a = self.a
        a("v_mov_b32 v20, -1\nv_mov_b32 v21, -1\nv_mov_b32 v22, -1\nv_mov_b32 v23, -1")
        lk = self.lab("clrk")
        a(f"s_bitcmp1_b32 {sL}, 0")
        a(f"s_cbranch_scc1 {lk}")
        a(f"s_cmp_lg_u32 {sW}, 3")
        a(f"s_cbranch_scc1 {lk}")
        a(f"s_add_u32 {sT0}, {sKVl}, 0x400000")
        for f in range(4):
            a(f"buffer_store_dwordx4 v[20:23], {vL16}, {srd(SRD_WS)}, {sT0} offen offset:{f*1024} sc1")
        a.label(lk)

    def group_clear_items(self):
        a = self.a
        def f0():
            assert self.flags_done
            a("v_mov_b32 v20, -1\nv_mov_b32 v21, -1\nv_mov_b32 v22, -1\nv_mov_b32 v23, -1")
        def f1():
            a(f"{STEP} s79, {sOBl}, 0x200000")
            a(f"s_cmp_eq_u32 {sL}, 3")
            a(f"s_cselect_b32 s78, 0x7f000000, {sXBout}")
            a(f"s_cselect_b32 s79, 0x7f000000, s79")
            a(f"s_cselect_b32 s80, 0x7f000000, {sSTout}")
        its = [f0, f1]
        for so in ("s78", "s79"):
            its.append(lambda so=so: self.store_msg([("v[20:23]", so, 0), ("v[20:23]", so, 1024)], vL16))
        def f2():
            a(f"v_lshlrev_b32 {vT1}, 4, {vC}")
            self.store_msg([("v[20:21]", "s80", 0)], vT1, width="dwordx2")
        its.append(f2)
        return its

    def kv2_clear(self, half):
        L = []
        if half == 0: L += ["v_mov_b32 v28, -1", "v_mov_b32 v29, -1", "v_mov_b32 v30, -1", "v_mov_b32 v31, -1", f"s_add_u32 {sT5}, {sKVl}, {KV(2)-KV(0)}"]
        L += [f"s_mov_b64 exec, {sL0EX}"]
        for f in (2 * half, 2 * half + 1):
            L += [f"buffer_store_dwordx4 v[28:31], {vL16}, {srd(SRD_WS)}, {sT5} offen offset:{f*1024} sc1"]
        L += ["s_mov_b64 exec, -1"]
        return L

    def nb_loads(self, t):
        for k, s in enumerate((sNB0, sNB1)):
            for f in range(4):
                t(f"buffer_load_dwordx4 {R(vSTG+16*k+4*f)}, {vL16}, {srd(SRD_WS)}, {s} offen offset:{f*1024} sc1")

    def stats_ops(self):
        q = vSTAT
        L = []
        for i in range(1, 2):
            L.append(f"v_add_f32 v{q}, v{q}, v{q+2*i}")
            L.append(f"v_add_f32 v{q+1}, v{q+1}, v{q+2*i+1}")
        L += [x.strip() for x in f"""
        v_mov_b32 v{q+2}, v{q}
        v_mov_b32 v{q+3}, v{q+1}
        v_mov_b32 v18, 0
        v_mov_b32 v19, 0
        v_permlane32_swap_b32 v{q}, v{q+2}
        v_permlane32_swap_b32 v{q+1}, v{q+3}
        s_lshl_b32 {sT0}, {sW}, 7
        v_lshlrev_b32 {vT0}, 2, {vC}
        v_add_f32 v{q}, v{q}, v{q+2}
        v_add_f32 v{q+1}, v{q+1}, v{q+3}
        v_mul_f32 v{q}, {f32hex(1/512)}, v{q}
        v_mul_f32 v{q+1}, {f32hex(1/512)}, v{q+1}
        v_fma_f32 v{q+1}, -v{q}, v{q}, v{q+1}
        v_max_f32 v{q+1}, 0, v{q+1}
        v_cvt_pk_bf16_f32 v{q+2}, v{q}, v{q+1}
        v_and_b32 v{q+3}, 0xffff0000, v{q+2}
        v_add_f32 v{q+3}, {f32hex(1e-5)}, v{q+3}
        v_cvt_pk_bf16_f32 v{q+3}, v{q+3}, v{q+3}
        v_and_b32 v{q+3}, 0xffff0000, v{q+3}
        v_sqrt_f32 v{q+3}, v{q+3}
        v_and_b32 v{q+2}, 0xffff, v{q+2}
        v_xor_b32 v{q+2}, 0x8000, v{q+2}
        v_cvt_pk_bf16_f32 v{q+3}, v{q+3}, v{q+3}
        v_and_b32 v{q+3}, 0xffff0000, v{q+3}
        v_rcp_f32 {vRSTD}, v{q+3}
        v_cndmask_b32_e64 v17, 0, v{q+2}, {sLO32}
        v_lshl_or_b32 v16, v17, 16, v17
        v_add_u32 {vT0}, {sT0}, {vT0}
        v_mul_f32 {vRSTDC}, {f32hex(QSCALE)}, {vRSTD}
        v_lshlrev_b32 v21, 4, {vH}
        v_add_u32 v21, {sT0}, v21
        """.strip().split("\n")]
        return L

    def x_load1(self, s):
        so = ["s78", "s79", "s80", "s81", "s82", "s83", "s64", "s65"][s // 4]
        return f"buffer_load_dwordx4 {R(vXF+4*s)}, {vL16}, {srd(SRD_WS)}, {so} offen offset:{(s%4)*1024} sc1"

    def q_order(self):
        return [32] + list(range(31, -1, -1))
    def rd2(self, i):
        order = self.q_order()
        if i >= len(order): return []
        s = order[i]; b = W2[i % len(W2)]
        if s == 32: return [f"ds_read_b64 {R(b,2)}, {vCSA} offset:0"]
        return [f"ds_read_b64_tr_b16 {R(b,2)}, v{vTR} offset:{s*1024}",
                f"ds_read_b64_tr_b16 {R(b+2,2)}, v{vTR+1} offset:{s*1024}"]

    def pass1(self, first):
        a = self.a
        PF = 3
        lq = []
        def ld(tag, ins): a(ins); lq.append(tag)
        def lwait(tag):
            n = len(lq) - 1 - max(i for i, t in enumerate(lq) if t == tag)
            a(f"s_waitcnt lgkmcnt({min(n,15)})")
        def rd1(s):
            b = WF[s % 4]
            if s < 32:
                return [(s, f"ds_read_b64_tr_b16 {R(b+2*j,2)}, v{vTR+2+j} offset:{s*1024}") for j in range(4)]
            if s == 32:
                return [(s, f"ds_read_b64 {R(b,2)}, {vCSA} offset:256"), (s, f"ds_read_b64 {R(b+4,2)}, {vCSA} offset:512")]
            i = 2 * (s - 33)
            return [(f"q{i}", x) for x in self.rd2(i)] + [(f"q{i+1}", x) for x in self.rd2(i + 1)]
        issued = []
        def vm(tag, ins): a(ins); issued.append(tag)
        def wait(tag):
            n = len(issued) - 1 - max(i for i, t in enumerate(issued) if t == tag)
            a(f"s_waitcnt vmcnt({n})")
        if not first:
            issued += list(range(UP))
            a("v_mov_b32 v60, 0")
        a(f"v_lshlrev_b32 {vCSA}, 3, {vC}")
        a(f"v_add_u32 {vCSA}, {sCSF}, {vCSA}")
        for s in range(PF):
            for t_, x in rd1(s): ld(t_, x)
        st = self.stats_ops(); si = 0
        SS = 25
        for s in range(32):
            if not first:
                wait(s)
                if s == SS:
                    wait("st")
                    a(f"v_max3_u32 v60, v60, v{vSTAT}, v{vSTAT+2}")
            if os.environ.get("P1ST"):
                p1, p2 = map(int, os.environ["P1ST"].split(","))
                if s == p1: self.stamp(7, alt=True)
                if s == p2: self.stamp(8, alt=True)
            b = WF[s % 4]
            nxt = rd1(s + PF)
            lwait(s)
            c0 = "0" if s == 0 else None
            def fill():
                nonlocal si
                if s >= SS:
                    for x in st[si:si + 3]: a(x)
                    si += 3
                    if si >= len(st) and si - 3 < len(st):
                        ld("rsw", f"ds_write_b32 {vT0}, {vRSTD} offset:{L_RS}")
                        for qq in range(4):
                            ld("rs", f"ds_read_b128 {R(vRS+4*qq)}, v21 offset:{L_RS + qq*32}")
            a(f"{MFMA} {R(ACC_K,16)}, {R(b)}, {R(vXF+4*s)}, {c0 or R(ACC_K,16)}")
            for t_, x in nxt[:2]: ld(t_, x)
            fill()
            if not first:
                if s + UP < 32: vm(s + UP, self.x_load1(s + UP))
                if s % 2 == 1: a(f"v_max3_u32 v60, v60, v{vXF+4*s}, v{vXF+4*s-4}")
            a(f"{MFMA} {R(ACC_V,16)}, {R(vXF+4*s)}, {R(b+4)}, {c0 or R(ACC_V,16)}")
            for t_, x in nxt[2:]: ld(t_, x)
            fill()
            if not first:
                if s == 17: vm("st", self.st_load())
            if s == 21:
                self.flag_load("v20"); issued.append("f")
            if not first and s == UP:
                a("v_cmp_eq_u32 vcc, -1, v60")
                a(f"s_and_b64 vcc, vcc, {sCHK}")
                a(f"s_cbranch_vccnz {self.l_restart}")
            if not first and s == 27:
                lnb = self.lab("nq")
                a(f"s_cmp_lg_u32 {sL}, 2")
                a(f"s_cbranch_scc1 {lnb}")
                a("s_barrier")
                a.label(lnb)
            if not first and s in (25, 28):
                h = (WB[0] + WB[1]) // 2 // 4 * 4
                lo, hi = (WB[0], h) if s == 25 else (h, WB[1])
                if hi > lo: self.l1_wob(lo, hi)
        assert si >= len(st)
        self.lq_end = lq

    def gemm(self):
        a, t = self.a, self.tail
        self.stamp(0)
        l0, ljoin, lredo, lrl = self.lab("g_l0"), self.lab("g_join"), self.lab("g_redo"), self.lab("g_rl")
        self.w_swap(0, layer=2)
        lpf, lpb = self.lab("xpf"), self.lab("xpb")
        a(f"s_waitcnt vmcnt({UP})")
        a("v_cmp_eq_u32 vcc, -1, v109")
        a(f"s_and_b64 vcc, vcc, {sCHK}")
        a(f"s_cbranch_vccnz {lpf}")
        a.label(lpb)
        self.l_restart = self.lab("xrs")
        t.label(self.l_restart)
        if self.dbg: t("s_add_u32 s84, s84, 1")
        t("s_waitcnt vmcnt(0) lgkmcnt(0)")
        t("s_add_u32 s89, s89, 1")
        t(f"s_cmp_lt_u32 s89, {SPIN_LIMIT}")
        t(f"s_cselect_b64 {sCHK}, {sCHK}, 0")
        t.label(lpf)
        if self.dbg: t("s_add_u32 s85, s85, 1")
        self.a = t
        self.probe("v108", sXBin, "v20", "v21", 1)
        self.a = a
        for k in range(UP): t(self.x_load1(k))
        t(f"s_branch {lpb}")
        self.stamp(1)
        self.pass1(False)
        a("v_cmp_eq_u32 vcc, -1, v60")
        a(f"s_and_b64 vcc, vcc, {sCHK}")
        a(f"s_cbranch_vccnz {lredo}")
        t.label(lredo)
        t(f"s_mov_b32 {sTRY}, 0")
        t("s_waitcnt vmcnt(0) lgkmcnt(0)")
        t("s_nop 7\ns_nop 7")
        t.label(lrl)
        if self.dbg: t("s_add_u32 s84, s84, 1")
        for k in range(32): t(self.x_load1(k))
        self.st_loads(t)
        t("s_waitcnt vmcnt(0)")
        self.maxtree(t, [vXF + 4 * k for k in range(32)] + [vSTAT + 2 * i for i in range(2)], vT0)
        t(f"v_cmp_eq_u32 vcc, -1, {vT0}")
        t(f"s_cbranch_vccz {l0}")
        t(f"s_add_u32 {sTRY}, {sTRY}, 1")
        t(f"s_cmp_lt_u32 {sTRY}, {SPIN_LIMIT}")
        t(f"s_cbranch_scc1 {lrl}")
        t(f"s_mov_b64 {sCHK}, 0")
        t(f"s_mov_b32 {sERR}, 2")
        t(f"s_branch {l0}")
        t.label(l0)
        self.a = t
        self.pass1(True)
        self.a = a
        t("s_waitcnt vmcnt(0)")
        t("s_branch L_join")
        a.label("L_join")
        self.stamp(2)
        lq = list(self.lq_end)
        if self.dbg: lq = [t_ for t_ in lq]
        def ld(tag, ins): a(ins); lq.append(tag)
        def lwait(tag):
            n = len(lq) - 1 - max(i for i, t_ in enumerate(lq) if t_ == tag)
            a(f"s_waitcnt lgkmcnt({min(n,15)})")
        b = WF[32 % 4]
        PF2 = 5
        lwait(32)
        a(f"{MFMA} {R(ACC_K,16)}, {R(b)}, v[16:19], {R(ACC_K,16)}")
        a(f"{MFMA} {R(ACC_V,16)}, v[16:19], {R(b+4)}, {R(ACC_V,16)}")
        for x in self.rd2(4): ld("q4", x)
        F = []
        def I(x): F.append((1, lambda x=x: a(x)))
        def L(tag, x): F.append((1, lambda tag=tag, x=x: ld(tag, x)))
        def G(n, fn): F.append((n, fn))
        for r in range(16): I(f"v_mul_f32 v{ACC_K+r}, {vRSTD}, v{ACC_K+r}")
        for j in range(8): I(f"v_cvt_pk_bf16_f32 v{vOWNK+j}, v{ACC_K+2*j}, v{ACC_K+2*j+1}")
        for f in (vOWNK, vOWNK + 4): I(f"v_min_u32 v{f}, 0xfffffffe, v{f}")
        G(4, lambda: self.kv_publish(0))
        G(1, lambda: lwait("rs"))
        for r in range(16): I(f"v_mul_f32 v{ACC_V+r}, v{vRS+r}, v{ACC_V+r}")
        for j in range(8): I(f"v_cvt_pk_bf16_f32 v{vOWNV+j}, v{ACC_V+2*j}, v{ACC_V+2*j+1}")
        for f in (vOWNV, vOWNV + 4): I(f"v_min_u32 v{f}, 0xfffffffe, v{f}")
        G(4, lambda: self.kv_publish(1))
        NF = len(F)
        G(0, lambda: self.stamp(3))
        I(f"s_mul_i32 {sT0}, {sW}, {TP}")
        I(f"v_add_u32 {vKA}, {sT0}, {vL16}")
        OWN = [vOWNK, vOWNK + 4, vOWNV, vOWNV + 4]
        for f in range(4): L("own", f"ds_write_b128 {vKA}, {R(OWN[f])} offset:{L_KV + 8*TP + PO[f]}")
        I(f"s_add_u32 {sT0}, {sT0}, 1024")
        I(f"v_mov_b32 {vT0}, {sT0}")
        I(f"v_cndmask_b32_e64 {vVA[0]}, {vT0}, {vKA}, {sH0}")
        I(f"v_cndmask_b32_e64 {vVA[1]}, {vT0}, {vKA}, {sH1}")
        self.flags_done = False
        def flags():
            self.flags_done = True
            lfs = self.lab("nofl")
            a(f"s_bitcmp1_b32 {sL}, 0")
            a(f"s_cbranch_scc1 {lfs}")
            lb = self.lab("l0b")
            a(f"s_cmp_eq_u32 {sL}, 0")
            a(f"s_cbranch_scc1 {lb}")
            t.label(lb)
            self.l0_block(t)
            t(f"s_branch {lfs}")
            a("s_waitcnt vmcnt(4)")
            self.flag_check("v20", "v21", 0x20, False, layer=2)
            a.label(lfs)
        G(6, flags)
        for x in self.nb_addr(): G(x.count("\n") + 1, lambda x=x: a(x))
        G(0, lambda: setattr(self, "nb_ready", True))
        def msel():
            a(f"s_bitcmp1_b32 {sL}, 0")
            a(f"s_cselect_b32 {sT2}, 512, 0")
            a(f"s_cselect_b32 {sT3}, 3, 4")
            a(f"s_cmp_eq_u32 {sT}, 0")
            a(f"s_cselect_b32 {sT3}, 5, {sT3}")
            a(f"s_lshl_b32 {sT3}, {sT3}, 8")
        G(6, msel)
        for x in self.mask_load(vMASK, sT2, vT0) + self.mask_load(vCZ, sT3, vT0):
            if x.startswith("ds_"): L("m", x)
            else: I(x)
        self.nb_ready = False
        NBAT = int(os.environ.get("NBAT", "24")); CLAT = int(os.environ.get("CLAT", "14"))
        placed = {}
        def place(g, fn): placed.setdefault(g, []).append(fn)
        for k in range(8):
            def f(k=k):
                assert self.nb_ready
                a(f"buffer_load_dwordx4 {R(vSTG+4*k)}, {vL16}, {srd(SRD_WS)}, {(sNB0, sNB1)[k//4]} offen offset:{(k%4)*1024} sc1")
            place(NBAT + k // 2, f)
        for k, f in enumerate(self.group_clear_items()): place(CLAT + k, f)
        order = self.q_order()
        fi = 0
        for i, s_ in enumerate(order):
            b = W2[i % len(W2)]
            lwait(f"q{i}")
            bop = "v[16:19]" if s_ == 32 else R(vXF + 4 * s_)
            a(f"{MFMA} {R(ACC_Q,16)}, {R(b)}, {bop}, {'0' if i == 0 else R(ACC_Q,16)}")
            for x in self.rd2(i + PF2): ld(f"q{i+PF2}", x)
            budget = 8 if fi < NF else 3
            for f in placed.get(i, []): f(); budget -= 2
            while fi < len(F) and budget > 0:
                budget -= F[fi][0]; F[fi][1](); fi += 1
            if i in (10, 14, 18, 22) and WB[1] + (i - 10) < 32:
                self.l1_wob(WB[1] + (i - 10), WB[1] + (i - 10) + 4 if i < 22 else 32)
            if i == 16: assert self.flags_done
            if i in (16, 20) and NA0: self.l1_wob((i - 16) // 4 * NA0 // 2, ((i - 16) // 4 + 1) * NA0 // 2, layer=0, mat=0)
            if s_ == 6:
                assert fi > NF + 10
                for x in self.rd_tile(0): ld("t0", x)
        assert fi == len(F), (fi, len(F))
        a("s_nop 7\ns_nop 3")
        for r in range(16): a(f"v_mul_f32 v{ACC_Q+r}, {vRSTDC}, v{ACC_Q+r}")
        for j in range(8): a(f"v_cvt_pk_bf16_f32 v{vQ+j}, v{ACC_Q+2*j}, v{ACC_Q+2*j+1}")
        a("s_waitcnt lgkmcnt(0)")
        self.stamp(4)

    def kv_publish(self, half):
        a = self.a
        OWN = [vOWNK, vOWNK + 4, vOWNV, vOWNV + 4]
        lsk = self.lab("kvsk")
        if half == 0:
            a(f"s_cmp_lg_u32 {sW}, 3")
            a(f"s_cselect_b32 {sT4}, {sL}, 0")
            a(f"s_and_b32 {sT4}, {sT4}, 1")
        else:
            a(f"s_cmp_lg_u32 {sT4}, 0")
        a(f"s_cbranch_scc1 {lsk}")
        for f in (2 * half, 2 * half + 1):
            a(f"buffer_store_dwordx4 {R(OWN[f])}, {vL16}, {srd(SRD_WS)}, {sKVl} offen offset:{f*1024} sc1")
        if half == 1 and os.environ.get("DUAL"):
            a(f"s_bitcmp1_b32 {sR}, 0")
            a(f"s_cbranch_scc1 {lsk}")
            for f in range(4):
                a(f"buffer_store_dwordx4 {R(OWN[f])}, {vL16}, {srd(SRD_WS)}, {sKVl} offen offset:{f*1024}")
        a.label(lsk)

    def nb_addr(self):
        return [f"s_sub_u32 {sT0}, {sW}, 8", f"s_lshl_b32 {sT1}, {sT0}, 16", f"s_add_u32 {sNB0}, {sKVl}, {sT1}",
                f"s_add_u32 {sNB1}, {sNB0}, 65536", f"s_add_i32 {sT0}, {sT0}, {sT}",
                f"s_cmp_lt_i32 {sT0}, 0\n s_cselect_b32 {sNB0}, 0x7f000000, {sNB0}\n s_cselect_b32 {sNB1}, 0x7f000000, {sNB1}",
                f"s_bitcmp1_b32 {sL}, 0\n s_cselect_b32 {sNB0}, 0x7f000000, {sNB0}",
                f"s_cmp_lg_u32 {sT4}, 0\n s_cselect_b32 {sNB1}, 0x7f000000, {sNB1}"]

    def flag_wait_safe(self):
        a = self.a
        loop, done = self.lab("hw"), self.lab("hwd")
        m = 0x80808080
        x, y = f"v{vSTG}", f"v{vSTG+1}"
        a(f"s_mov_b32 {sTRY}, 0")
        a(f"v_lshlrev_b32 {vT0}, 2, {vLANE}")
        a.label(loop)
        a(f"buffer_load_dword {x}, {vT0}, {srd(SRD_DBG)}, 0 offen sc1")
        a("s_waitcnt vmcnt(0)")
        a(f"v_and_b32 {y}, {m:#x}, {x}")
        a(f"v_cmp_ne_u32 vcc, {m:#x}, {y}")
        a(f"s_cbranch_vccz {done}")
        a("s_sleep 2")
        a(f"s_add_u32 {sTRY}, {sTRY}, 1")
        a(f"s_cmp_lt_u32 {sTRY}, {SPIN_LIMIT}")
        a(f"s_cbranch_scc1 {loop}")
        a(f"s_mov_b32 {sERR}, 100")
        a.label(done)
        a(f"s_mul_i32 {sT0}, {sXCC}, 0x01010101")
        a(f"v_and_b32 {y}, 0x0f0f0f0f, {x}")
        a(f"v_cmp_eq_u32 vcc, {sT0}, {y}")
        a(f"s_lshl_b32 {sT1}, {sR}, 2")
        a(f"s_lshr_b64 {sMSK}, vcc, {sT1}")
        a(f"s_and_b32 {sT0}, s68, 15")
        a(f"s_cmp_eq_u32 {sT0}, 15")
        a(f"s_cselect_b32 {sFAST}, 1, 0")
        if os.environ.get("NOFAST"): a(f"s_mov_b32 {sFAST}, 0")
        a(f"s_cmp_eq_u32 {sERR}, 0")
        a(f"s_cselect_b64 {sCHK}, -1, 0")

    def rd_tile(self, i, k=True):
        sl = vSL[i % 3]; o = L_KV + (8 - i) * TP
        r = [f"ds_read_b128 {R(sl)}, {vKA} offset:{o}", f"ds_read_b128 {R(sl+4)}, {vKA} offset:{o+1024}"]
        for h in range(2):
            r += [f"ds_read_b128 {R(sl+8+8*h)}, {vVA[h]} offset:{o+PO[2]}", f"ds_read_b128 {R(sl+12+8*h)}, {vVA[h]} offset:{o+PO[3]}"]
        return r
    def Sbuf(self, i, h): return (vSB if i % 2 == 0 else vSA)[h]
    def S_mfma(self, i, h, cm):
        ksrc = vSL[i % 3] + 4 * h
        return f"{MFMA} {R(self.Sbuf(i,h),16)}, {R(ksrc)}, {R(vQ+4*h)}, {R(cm,16)}"
    def PV(self, i, h, f):
        S = self.Sbuf(i, h); sl = vSL[i % 3]
        c = "0" if (i == 0 and f == 0) else R(vO[h], 16)
        return f"{MFMA} {R(vO[h],16)}, {R(sl+8+8*h+4*f)}, {R(S+4*f)}, {c}"
    def expcvt(self, i, h):
        S = self.Sbuf(i, h)
        v = [f"v_exp_f32 v{S+r}, v{S+r}" for r in range(16)]
        v += [f"v_cvt_pk_bf16_f32 v{S+j}, v{S+2*j}, v{S+2*j+1}" for j in range(8)]
        return v

    def attention(self, n, cmask, extra_at=None, bg=None, post_g5=None, pre_g5=None):
        a = self.a
        a("s_nop 0")
        a(self.S_mfma(0, 0, cmask(0)))
        a(self.S_mfma(0, 1, cmask(0)))
        def take(): return bg.pop(0) if bg else []
        def slots(ps): return [(p, take()) for p in ps]
        for t in range(n + 1):
            ex = []
            if t == 0:
                ex += [(0, ["s_nop 7", "s_nop 3"])]
            if t >= 1:
                ex += [(1, [self.PV(t - 1, 1, 0)]), (7, [self.PV(t - 1, 1, 1)])]
                if t + 1 <= n:
                    pre = self.invalid_fix(t + 1) if self.fix_invalid else []
                    ex += [(14, pre + ["s_waitcnt lgkmcnt(0)", self.S_mfma(t + 1, 0, cmask(t + 1))])]
                ex += slots((3, 9, 16, 21))
            for x in interleave(self.expcvt(t, 0), ex): a(x)
            if t == 0:
                if pre_g5: pre_g5()
                if os.environ.get("P1ST") == "99,99": self.stamp(7, alt=True)
                a("s_waitcnt vmcnt(0)")
                if os.environ.get("P1ST") == "99,99": self.stamp(8, alt=True)
                lsk = self.lab("nbw")
                if n == 1:
                    a(f"s_cmp_lg_u32 {sW}, 3")
                    a(f"s_cbranch_scc1 {lsk}")
                fs = range(8) if n == 8 else range(4, 8)
                self.check_or_poll([vSTG + 4 * f for f in fs], lambda t_: self.nb_loads(t_), vT0, 10)
                a(f"s_mul_i32 {sT0}, {sW}, {2*TP}")
                a(f"v_add_u32 {vT0}, {sT0}, {vL16}")
                for f in fs:
                    a(f"ds_write_b128 {vT0}, {R(vSTG+4*f)} offset:{L_KV + CH(f)}")
                a("s_waitcnt lgkmcnt(0)")
                a.label(lsk)
                a("s_barrier")
                self.stamp(5)
                for x in self.rd_tile(1): a(x)
                if post_g5: post_g5()
            if extra_at and t in extra_at: extra_at[t]()
            ex = []
            if t == 0:
                ex += [(1, [self.PV(0, 0, 0)]), (6, [self.PV(0, 0, 1)])]
                pre = self.invalid_fix(1) if self.fix_invalid else []
                ex += [(11, pre + ["s_waitcnt lgkmcnt(0)", self.S_mfma(1, 0, cmask(1))])]
                if 2 <= n: ex += [(12, self.rd_tile(2))]
                ex += [(17, [self.S_mfma(1, 1, cmask(1))])]
                ex += slots((3, 8, 14, 21))
            else:
                if t + 2 <= n: ex += [(0, self.rd_tile(t + 2))]
                ex += [(2, [self.PV(t, 0, 0)]), (8, [self.PV(t, 0, 1)])]
                if t + 1 <= n: ex += [(14, [self.S_mfma(t + 1, 1, cmask(t + 1))])]
                ex += slots((4, 10, 16, 21))
            for x in interleave(self.expcvt(t, 1), ex): a(x)
        a("s_nop 1")
        a(self.PV(n, 1, 0)); a(self.PV(n, 1, 1))
        while bg:
            for x in bg.pop(0): a(x)

    def invalid_fix(self, i):
        t = self.tail
        lf, lb = self.lab("fix"), self.lab("fixb")
        t.label(lf)
        t("s_nop 7\ns_nop 7")
        t(f"v_mov_b32 {vT0}, {NEG_INF:#x}")
        for r in range(16): t(f"v_mov_b32 v{vCZ+r}, {vT0}")
        t("s_nop 1")
        t(f"s_branch {lb}")
        return [f"s_cmp_eq_u32 {sT}, {i-1}", f"s_cbranch_scc1 {lf}", f"{lb}:"]

    def softmax_fallback(self, n, tdiag, tlast, lentry, lback):
        t = self.tail
        t.label(lentry)
        if self.dbg: t("s_add_u32 s85, s85, 1")
        S = vSA[0]; K = vSL[1]; V = vSL[0]; M = "v25"; AD = "v26"
        def tile_setup(h):
            t(f"s_cmp_eq_u32 {sT4}, 0")
            t(f"s_cselect_b32 {sT2}, {tdiag}, 4")
            t(f"s_cmp_eq_u32 {sT4}, {n}")
            t(f"s_cselect_b32 {sT2}, {tlast}, {sT2}")
            t(f"s_cmp_gt_u32 {sT4}, {sT}")
            t(f"s_cselect_b32 {sT2}, 5, {sT2}")
            t(f"s_lshl_b32 {sT2}, {sT2}, 8")
            for x in self.mask_load(vMASK, sT2, vT0): t(x)
            t(f"s_mul_i32 {sT3}, {sT4}, {TP}")
            t(f"s_sub_u32 {sT3}, {8*TP}, {sT3}")
            t(f"v_add_u32 {AD}, {sT3}, {vKA}")
            t(f"v_add_u32 v28, {sT3}, {vVA[h]}")
        for h in range(2):
            la, lb = self.lab("fbA"), self.lab("fbB")
            t(f"v_mov_b32 {M}, {NEG_INF:#x}")
            t(f"s_mov_b32 {sT4}, 0")
            t.label(la)
            tile_setup(h)
            t(f"ds_read_b128 {R(K)}, {AD} offset:{L_KV + h*1024}")
            t("s_waitcnt lgkmcnt(0)")
            t(f"{MFMA} {R(S,16)}, {R(K)}, {R(vQ+4*h)}, {R(vMASK,16)}")
            t("s_nop 7\ns_nop 7")
            for r in range(0, 16, 2): t(f"v_max3_f32 {M}, {M}, v{S+r}, v{S+r+1}")
            t(f"s_add_u32 {sT4}, {sT4}, 1")
            t(f"s_cmp_le_u32 {sT4}, {n}")
            t(f"s_cbranch_scc1 {la}")
            t(f"v_mov_b32 v27, {M}")
            t("s_nop 1")
            t(f"v_permlane32_swap_b32 {M}, v27")
            t("s_nop 1")
            t(f"v_max_f32 {M}, {M}, v27")
            for r in range(16): t(f"v_mov_b32 v{vO[h]+r}, 0")
            t(f"s_mov_b32 {sT4}, 0")
            t.label(lb)
            tile_setup(h)
            t(f"ds_read_b128 {R(K)}, {AD} offset:{L_KV + h*1024}")
            t(f"ds_read_b128 {R(V+8+8*h)}, v28 offset:{L_KV + PO[2]}")
            t(f"ds_read_b128 {R(V+12+8*h)}, v28 offset:{L_KV + PO[3]}")
            t("s_waitcnt lgkmcnt(0)")
            t(f"{MFMA} {R(S,16)}, {R(K)}, {R(vQ+4*h)}, {R(vMASK,16)}")
            t("s_nop 7\ns_nop 7")
            for r in range(16): t(f"v_sub_f32 v{S+r}, v{S+r}, {M}")
            for r in range(16): t(f"v_exp_f32 v{S+r}, v{S+r}")
            t("s_nop 0")
            for j in range(8): t(f"v_cvt_pk_bf16_f32 v{S+j}, v{S+2*j}, v{S+2*j+1}")
            t("s_nop 1")
            t(f"{MFMA} {R(vO[h],16)}, {R(V+8+8*h)}, {R(S)}, {R(vO[h],16)}")
            t(f"{MFMA} {R(vO[h],16)}, {R(V+12+8*h)}, {R(S+4)}, {R(vO[h],16)}")
            t("s_nop 7\ns_nop 7")
            t(f"s_add_u32 {sT4}, {sT4}, 1")
            t(f"s_cmp_le_u32 {sT4}, {n}")
            t(f"s_cbranch_scc1 {lb}")
        t(f"s_branch {lback}")

    def attn_finish(self, n, tdiag, tlast):
        a = self.a
        self.stamp(6)
        lfb, lbk = self.lab("fb"), self.lab("fbk")
        a("s_nop 7\ns_nop 3")
        a(f"v_max_f32 v25, v{vO[0]+8}, v{vO[1]}")
        a(f"v_min_f32 v26, v{vO[0]+8}, v{vO[1]}")
        a(f"v_add_f32 v27, v{vO[0]+8}, v{vO[1]}")
        a(f"v_cmp_nle_f32 vcc, v25, {sBIG}")
        a(f"v_cmp_nge_f32 {sMSK}, v26, {sTINY}")
        a(f"s_or_b64 vcc, vcc, {sMSK}")
        a(f"v_cmp_u_f32 {sMSK}, v27, v27")
        a(f"s_or_b64 vcc, vcc, {sMSK}")
        a(f"s_cbranch_vccnz {lfb}")
        a.label(lbk)
        self.softmax_fallback(n, tdiag, tlast, lfb, lbk)
        a(f"v_rcp_f32 v20, v{vO[0]+8}")
        a(f"v_rcp_f32 v21, v{vO[1]}")
        a("s_nop 0")
        for r in range(8): a(f"v_mul_f32 v{vO[0]+r}, v20, v{vO[0]+r}")
        for r in range(8): a(f"v_mul_f32 v{vO[1]+8+r}, v21, v{vO[1]+8+r}")
        d = vSA[0]
        for j in range(4): a(f"v_cvt_pk_bf16_f32 v{d+j}, v{vO[0]+2*j}, v{vO[0]+2*j+1}")
        for j in range(4): a(f"v_cvt_pk_bf16_f32 v{d+4+j}, v{vO[1]+8+2*j}, v{vO[1]+8+2*j+1}")
        a(f"v_min_u32 v{d}, 0xfffffffe, v{d}")
        a(f"v_min_u32 v{d+4}, 0xfffffffe, v{d+4}")
        self.store_msg([(R(d), sOBl, 0), (R(d + 4), sOBl, 1024)], vL16)
        self.stamp(7)

    def wo_items(self, mat, dst, so, order=None):
        its = []
        for n in (order or range(32)):
            L = []
            if n % 4 == 0: L += [f"s_add_u32 {so}, s{40+n//8}, {mat*0x80000 + (n%8)*1024}"]
            L += [f"buffer_load_dwordx4 {AR(dst + n*4)}, {vL16}, {srd(SRD_WS)}, {so} offen offset:{(n%4)*1024}"]
            its.append(L)
        return its
    def wloc(self, ct, p):
        return ("v33", p * 1024) if ct == 2 else ("v32", ct * 32768 + p * 1024)
    def wloc_setup(self, a):
        a(f"s_lshl_b32 {sT0}, {sW}, 13")
        a(f"s_add_u32 {sT0}, {sT0}, {L_W}")
        a(f"v_add_u32 v32, {sT0}, {vL16}")
        a(f"v_add_u32 v33, 0x10000, v32")

    def code_touch(self, first, va="v39", vd=vWD):
        L = []
        if first:
            l = self.lab("pc")
            L += ["s_getpc_b64 s[20:21]", f"{l}:", f"s_sub_u32 s20, s20, {l}-L_pc", "s_subb_u32 s21, s21, 0", "s_and_b32 s21, s21, 0xffff",
                  "s_mov_b32 s22, L_codeend-L_pc", "s_mov_b32 s23, 0x20000",
                  "s_lshr_b32 s24, s2, 3", "s_lshl_b32 s24, s24, 2", f"s_add_u32 s24, s24, {sW}", "s_lshl_b32 s24, s24, 9"]
        L += [f"v_and_b32 {va}, 3, {vLANE}", f"v_lshlrev_b32 {va}, 7, {va}", f"buffer_load_dword {vd}, {va}, s[20:23], s24 offen"]
        return L

    def attn_A(self, l0):
        a = self.a
        self.fix_invalid = True
        def first_mask():
            a(f"s_cmp_ge_u32 {sT}, 8")
            a(f"s_cselect_b32 {sT2}, 1, 5")
            a(f"s_lshl_b32 {sT2}, {sT2}, 8")
            for x in self.mask_load(vMASK, sT2, vT0): a(x)
        NS = 66
        bg = [[] for _ in range(NS)]
        def spread(items, s0, s1):
            for k, it in enumerate(items): bg[s0 + int(k * (s1 - s0) / len(items))] += it
        locs = [(ct, p) for ct in (1, 2, 0) for p in range(8)]
        if l0:
            sv = []
            for ct, p in locs:
                ad, of = self.wloc(ct, p)
                sv.append([f"ds_read_b128 {AR(128 + 4*(8 + TO.index(ct)*8 + p))}, {ad} offset:{of}"])
            pre = [x for it in sv for x in it]
            dm = []
            for k, (ct, p) in enumerate(locs):
                L = []
                if k == 0: L += [f"s_lshl_b32 s64, {sW}, 13", f"s_add_u32 s65, s64, {sWQN}"]
                if p % 4 == 0: L += [f"s_add_u32 m0, s64, {L_W + ct*32768 + p*1024}", f"s_add_u32 s82, s65, {ct*32768 + p*1024}"]
                L += [f"buffer_load_dwordx4 {vL16}, {srd(SRD_WS)}, s82 offen offset:{(p%4)*1024} lds"]
                dm.append(L)
            XP = os.environ.get("XP", "")
            if "d" in XP: dm = [x[:-1] for x in dm]
            spread(dm, 0, int(os.environ.get("DME", "60")))
            if "w" not in XP: spread(self.wo_items(0, 0, "s83")[NA0:], 0, int(os.environ.get("WOE", "56")))
            cl = []
            if int(os.environ.get("TLBW", "0")):
                fl = [f"v_and_b32 v35, 15, {vLANE}", "v_lshlrev_b32 v35, 7, v35", f"v_bfe_u32 v36, {vLANE}, 4, 1", "v_lshlrev_b32 v36, 21, v36",
                      f"v_mov_b32 v37, {sXBout}", f"v_mov_b32 v38, {sOBl}", f"v_cndmask_b32_e64 v37, v38, v37, {sLO32}",
                      "v_xor_b32 v37, v37, v36", "v_add_u32 v35, v35, v37",
                      f"buffer_load_dword {vWD}, v35, {srd(SRD_WS)}, 0 offen sc1"]
                bg[int(os.environ.get("FLS", "2"))] += fl
            if int(os.environ.get("CT", "36")): bg[int(os.environ.get("CT", "36"))] += self.code_touch(not getattr(self, "ct_done", False))
            cl.append([f"s_lshr_b32 s80, s2, 3", f"s_lshl_b32 s80, s80, 2", f"s_add_u32 s80, s80, {sW}", f"s_lshl_b32 s80, s80, 12",
                       f"s_add_u32 s80, s80, {WOF + 0x80000}", f"v_lshlrev_b32 v34, 7, {vC}",
                       f"buffer_load_dword {vWD}, v34, {srd(SRD_WS)}, s80 offen"])
            if "c" not in XP: spread(cl, int(os.environ.get("CLS", "40")), int(os.environ.get("CLS", "40")) + 12)
        else:
            rs = []
            for j, (ct, p) in enumerate(locs):
                ad, of = self.wloc(ct, p)
                rs.append([f"ds_write_b128 {ad}, {AR(128 + 4*(TO.index(ct)*8+p))} offset:{of}"])
            pre = ["s_barrier"] + [x for it in rs for x in it]
            spread(self.wo_items(0, 128, "s83"), 0, 56)
        def post():
            if l0: self.resid_loads(a)
        def pre_():
            self.wloc_setup(a)
            for x in pre: a(x)
        self.attention(8, lambda i: vMASK if i in (0, 8) else vCZ, {3: first_mask}, bg, post, pre_)

    def attn_B(self):
        self.fix_invalid = False
        def post():
            a, t = self.a, self.tail
            lp, lpb = self.lab("pb"), self.lab("pbb")
            a(f"s_cmp_eq_u32 {sL}, 1")
            a(f"s_cbranch_scc1 {lp}")
            a.label(lpb)
            t.label(lp)
            t("v_mov_b32 v28, -1\nv_mov_b32 v29, -1\nv_mov_b32 v30, -1\nv_mov_b32 v31, -1")
            t(f"s_add_u32 {sT3}, {sKVl}, 0x400000")
            for f in range(4): t(f"buffer_store_dwordx4 v[28:31], {vL16}, {srd(SRD_WS)}, {sT3} offen offset:{f*1024} sc1")
            t(f"s_sub_u32 {sT4}, 3, {sW}")
            t(f"s_lshl_b32 {sT4}, {sT4}, 16")
            t(f"s_add_u32 {sT3}, {sT3}, {sT4}")
            t(f"s_lshl_b32 {sT4}, {sW}, 10")
            t(f"s_add_u32 {sT3}, {sT3}, {sT4}")
            t(f"s_add_u32 {sT3}, {sT3}, 0x400000")
            t(f"buffer_store_dwordx4 v[28:31], {vL16}, {srd(SRD_WS)}, {sT3} offen sc1")
            t(f"s_branch {lpb}")
        self.attention(1, lambda i: vMASK if i == 0 else vCZ, None, [], post)
        self.attn_finish(1, 2, 3)

    def w_swap(self, ct, layer=1):
        a, t = self.a, self.tail
        k = TO.index(ct)
        lsw, lswr = self.lab("sw"), self.lab("swr")
        a(f"s_cmp_eq_u32 {sL}, {layer}")
        a(f"s_cbranch_scc1 {lsw}")
        a.label(lswr)
        t.label(lsw)
        if k == 0: self.wloc_setup(t)
        for p in range(8):
            ad, of = self.wloc(ct, p)
            t(f"ds_read_b128 {AR(128 + 4*(k*8 + p))}, {ad} offset:{of}")
            t(f"ds_write_b128 {ad}, {AR(128 + 4*(8 + k*8 + p))} offset:{of}")
        t(f"s_branch {lswr}")

    def l1_wob(self, lo, hi, layer=1, mat=1):
        a, t = self.a, self.tail
        lb, lr = self.lab("wb"), self.lab("wbr")
        a(f"s_cmp_eq_u32 {sL}, {layer}")
        a(f"s_cbranch_scc1 {lb}")
        a.label(lr)
        t.label(lb)
        for it in self.wo_items(mat, 0, sT5)[lo:hi]:
            for x in it: t(x)
        t(f"s_branch {lr}")

    def o_loads(self, t):
        t(f"s_add_u32 {sT1}, {sOIN}, 4096")
        for i in range(8):
            t(f"buffer_load_dwordx4 {R(vXF+4*i)}, {vL16}, {srd(SRD_WS)}, {sOIN if i < 4 else sT1} offen offset:{(i%4)*1024} sc1")

    def outproj(self):
        a, t = self.a, self.tail
        ACC = 64
        self.stamp(8)
        def accinit(a):
            for i in range(8):
                a(f"v_lshlrev_b32 v{ACC+2*i}, 16, v{96+i}")
                a(f"v_and_b32 v{ACC+2*i+1}, 0xffff0000, v{96+i}")
        a(f"s_lshl_b32 {sT0}, {sW}, 11")
        a(f"v_add_u32 {vT0}, {sT0}, {vL16}")
        a(f"ds_read_b128 v[96:99], {vT0} offset:{L_XR}")
        a(f"ds_read_b128 v[100:103], {vT0} offset:{L_XR+1024}")
        a(f"s_mul_i32 {sT0}, {sW}, {2*TP}")
        a(f"v_add_u32 v104, {sT0}, {vL16}")
        for g in (1, 2, 3):
            a(f"s_add_u32 {sT0}, {sW}, {g}")
            a(f"s_and_b32 {sT0}, {sT0}, 3")
            a(f"s_mul_i32 {sT0}, {sT0}, {2*TP}")
            a(f"v_add_u32 v{104+g}, {sT0}, {vL16}")
        a("s_waitcnt lgkmcnt(0)")
        accinit(a)
        l0, l0r = self.lab("trp"), self.lab("trr")
        a(f"s_cmp_eq_u32 {sL}, 0")
        a(f"s_cbranch_scc1 {l0}")
        t.label(l0)
        t("s_waitcnt vmcnt(2)")
        if os.environ.get("P1ST") == "98,98": self.a = t; self.stamp(7, alt=True); self.a = a
        t(f"v_lshlrev_b32 {vT0}, 6, {vC}")
        t(f"v_lshl_add_u32 {vT0}, {vH}, 3, {vT0}")
        t(f"s_lshl_b32 {sT0}, {sW}, 11")
        t(f"v_add_u32 {vT0}, {sT0}, {vT0}")
        for q in range(4): t(f"ds_read_b64 {R(96+2*q,2)}, {vT0} offset:{L_XR + q*16}")
        self.a = t
        self.set_tr_addr(True)
        self.colsum1(160, int(os.environ.get("CSH", "0")), lambda: self.o_loads(t))
        if os.environ.get("P1ST") == "98,98": self.stamp(8, alt=True)
        self.a = a
        accinit(t)
        t(f"s_branch {l0r}")
        self.o_loads(a)
        a.label(l0r)
        BS = [f"{STEP} {sXBin}, {sXBin}, 0x200000", f"s_cmp_eq_u32 {sL}, 1\n s_cselect_b32 {sT2}, {sRHO}, 0"]
        for k, so in enumerate(["s78", "s79", "s80", "s81", "s82", "s83", "s64", "s65"]):
            BS += [f"s_add_u32 {so}, {sT2}, {k}", f"s_and_b32 {so}, {so}, 7", f"s_lshl_b32 {so}, {so}, 12", f"s_add_u32 {so}, {so}, {sXBin}"]
        BS += [f"v_and_b32 v108, 15, {vLANE}", f"v_lshlrev_b32 v108, 11, v108", f"v_add_u32 v108, 2032, v108"]
        self.w_swap(1)
        self.w_swap(2)
        a("s_waitcnt vmcnt(0)")
        self.check_or_poll([vXF + 4 * i for i in range(8)], lambda t: self.o_loads(t), vT0, 30)
        a("s_barrier")
        lf, lfb = self.lab("f5"), self.lab("f5b")
        a(f"s_cmp_eq_u32 {sL}, 1")
        a(f"s_cbranch_scc1 {lf}")
        a.label(lfb)
        t.label(lf)
        t(f"s_lshr_b32 s99, s99, 1")
        self.flag_set("s99", t, "v25", "v26")
        t(f"s_branch {lfb}")
        self.stamp(9)
        lB, lD, lZ = self.lab("opB"), self.lab("opD"), self.lab("opZ")
        a(f"s_bitcmp1_b32 {sL}, 0")
        a(f"s_cbranch_scc1 {lB}")
        a(f"s_cmp_eq_u32 {sL}, 0")
        a(f"s_cbranch_scc1 {lZ}")
        for var in (2, 0, 1):
            mat = 1 if var == 2 else 0
            if var == 1: a.label(lB)
            if var == 0: a.label(lZ)
            side = self.wo_items(1, 0, sT5)[:NOB] if var == 0 else []
            ns = len(side); k = [0]
            def mf(i):
                a(f"{MFMA} {R(ACC,16)}, {AR(mat*128+4*i)}, {R(vXF+4*i)}, {R(ACC,16)}")
            def sd(n):
                while k[0] < ns and k[0] < (n + 1) * ns / 32.0 and k[0] <= n:
                    for x in side[k[0]]: a(x)
                    k[0] += 1
            F2 = []
            if var == 0:
                rd2_, F2, W2_ = self.colsum2(1, 32)
                for x in rd2_: a(x)
            F2 = F2 + BS
            nf = (len(F2) + 27) // 28
            for i in range(4):
                mf(i)
                for c in (2 * i, 2 * i + 1):
                    a(f"ds_write_b128 v104, {R(vXF+4*c)} offset:{L_OT + CH(c)}")
            sd(3)
            a("s_waitcnt lgkmcnt(0)")
            a("s_barrier")
            rd = lambda i: a(f"ds_read_b128 {R(vXF+4*i)}, v{104 + i//8} offset:{L_OT + CH(i%8)}")
            for i in range(8, 12): rd(i)
            nr = 12
            for i in range(4, 32):
                if i >= 8: a(f"s_waitcnt lgkmcnt({min(15, nr - 1 - i)})")
                mf(i)
                for _ in range(2):
                    if nr < 32 and nr - i < 12: rd(nr); nr += 1
                sd(i)
                for x in F2[:nf]: a(x)
                F2 = F2[nf:]
            assert k[0] == ns and not F2
            if var == 0: a(W2_)
            if var != 1: a(f"s_branch {lD}")
        a.label(lD)
        self.stamp(10)
        a("s_nop 7\ns_nop 3")
        for j in range(8): a(f"v_cvt_pk_bf16_f32 v{96+j}, v{ACC+2*j}, v{ACC+2*j+1}")
        llast = self.lab("last")
        a(f"s_cmp_eq_u32 {sL}, 3")
        a(f"s_cbranch_scc1 {llast}")
        a(f"v_min_u32 v96, 0xfffffffe, v96")
        a(f"v_min_u32 v100, 0xfffffffe, v100")
        self.store_msg([("v[96:99]", sXBout, 0), ("v[100:103]", sXBout, 1024)], vL16)
        if WB[0] > NOB: self.l1_wob(NOB, WB[0], layer=0)
        for i in range(8):
            a(f"v_lshlrev_b32 v{ACC+2*i}, 16, v{96+i}")
            a(f"v_and_b32 v{ACC+2*i+1}, 0xffff0000, v{96+i}")
        def hook():
            a(f"buffer_load_dword v109, v108, {srd(SRD_WS)}, {sXBin} offen sc1")
            for k in range(UP): a(self.x_load1(k))
        self.xstats_store(ACC, sSTout, hook)
        a(f"s_lshl_b32 {sT0}, {sW}, 11")
        a(f"v_add_u32 {vT0}, {sT0}, {vL16}")
        a(f"ds_write_b128 {vT0}, v[96:99] offset:{L_XR}")
        a(f"ds_write_b128 {vT0}, v[100:103] offset:{L_XR+1024}")
        return llast

    def build(self):
        a = self.a
        self.prologue()
        a.label("L_layer")
        self.gemm()
        lb, ld = self.lab("aB"), self.lab("aD")
        a(f"s_bitcmp1_b32 {sL}, 0")
        a(f"s_cbranch_scc1 {lb}")
        l2, lf = self.lab("a2"), self.lab("af")
        a(f"s_cmp_lg_u32 {sL}, 0")
        a(f"s_cbranch_scc1 {l2}")
        self.attn_A(True)
        a(f"s_branch {lf}")
        a.label(l2)
        self.attn_A(False)
        a.label(lf)
        self.attn_finish(8, 0, 1)
        a(f"s_branch {ld}")
        a.label(lb)
        self.attn_B()
        a.label(ld)
        llast = self.outproj()
        a(f"s_add_u32 {sL}, {sL}, 1")
        a(f"{STEP} {sXBout}, {sXBout}, 0x200000")
        a(f"{STEP} {sOBl}, {sOBl}, 0x200000")
        a(f"{STEP} {sOIN}, {sOIN}, 0x200000")
        a(f"s_add_u32 {sKVl}, {sKVl}, 0x400000")
        a(f"s_add_u32 {sSTin}, {sSTin}, 0x40000")
        a(f"s_add_u32 {sSTout}, {sSTout}, 0x40000")
        a(f"s_xor_b32 {sCSF}, {sCSF}, {L_CSF ^ (L_CSF + 768)}")
        a("s_branch L_layer")
        a.label(llast)
        a(f"v_lshlrev_b32 {vT0}, 10, {vC}")
        a(f"v_lshl_add_u32 {vT0}, {vH}, 3, {vT0}")
        a(f"s_lshl_b32 {sT0}, {sRT}, 15")
        a(f"s_lshl_b32 {sT1}, {sCT}, 6")
        a(f"s_add_u32 {sT0}, {sT0}, {sT1}")
        for q in range(4):
            a(f"buffer_store_dwordx2 {R(96+2*q,2)}, {vT0}, {srd(SRD_OUT)}, {sT0} offen offset:{q*16} {os.environ.get('OUTF', '')}")
        if self.dbg:
            self.stamp(11)
            a("s_memtime s[96:97]\ns_waitcnt lgkmcnt(0)\nv_writelane_b32 v0, s96, 61")
            a("v_writelane_b32 v0, s84, 56\nv_writelane_b32 v0, s85, 57\nv_writelane_b32 v0, s86, 58\nv_writelane_b32 v0, s87, 59")
            a(f"s_lshl_b32 {sT0}, s2, 10")
            a(f"s_lshl_b32 {sT1}, {sW}, 8")
            a(f"s_add_u32 {sT0}, {sT0}, {sT1}")
            a(f"s_add_u32 {sT0}, {sT0}, {WS_DBG + 0x10000}")
            a(f"v_lshlrev_b32 v22, 2, {vLANE}")
            a(f"buffer_store_dword v0, v22, {srd(SRD_WS)}, {sT0} offen")
            a(f"v_mov_b32 v20, {sERR}")
            a(f"v_mov_b32 v21, {sFAST}")
            a(f"s_lshl_b32 {sT0}, s2, 5")
            a(f"s_lshl_b32 {sT1}, {sW}, 3")
            a(f"s_add_u32 {sT0}, {sT0}, {sT1}")
            a(f"s_add_u32 {sT0}, {sT0}, {WS_DBG}")
            a("v_mov_b32 v22, 0")
            a("s_mov_b64 exec, 1")
            a(f"buffer_store_dwordx2 v[20:21], v22, {srd(SRD_WS)}, {sT0} offen")
        a.label("L_end")
        a("s_endpgm")
        return a.text() + self.tail.text() + "L_codeend:\n"


def full(dbg=False):
    HEADER = open("interleave_layers__sliding_block__sliding_local_dilated__prompt.s.ref").read().split("; Override launch")[0]
    g = Gen(dbg)
    body = g.build()
    return (HEADER + f"; @launch grid=(256,1,1) block=(256,1,1) lds={LDS_BYTES}\n" +
            '.amdgcn_target "amdgcn-amd-amdhsa--gfx950"\n' + f""".text
.globl {NAME}
.p2align 8
.type {NAME},@function
{NAME}:
{body}
.section .rodata,"a"
.p2align 6
.amdhsa_kernel {NAME}
  .amdhsa_next_free_vgpr 512
  .amdhsa_next_free_sgpr 102
  .amdhsa_accum_offset 256
  .amdhsa_group_segment_fixed_size 0
  .amdhsa_kernarg_size 72
  .amdhsa_user_sgpr_count 2
  .amdhsa_user_sgpr_kernarg_segment_ptr 1
  .amdhsa_system_sgpr_workgroup_id_x 1
.end_amdhsa_kernel
""")

if __name__ == "__main__":
    dbg = "--dbg" in sys.argv
    out = [x for x in sys.argv[1:] if not x.startswith("--")]
    txt = full(dbg)
    open(out[0], "w").write(txt)
    from asmlib import build
    build(txt, out[0].replace(".s", ".co"), NAME)
    print("ok", len(txt.splitlines()), "lines")
```
